```python
import torch

def _softmax(x, axis=-1):
    return torch.softmax(x, dim=axis)
def _gelu(x):
    return torch.nn.functional.gelu(x, approximate="tanh")
def _silu(x):
    return torch.nn.functional.silu(x)
def _sigmoid(x):
    return torch.sigmoid(x)
def _layernorm(x, axis=-1, eps=1e-5):
    m = x.mean(dim=axis, keepdim=True)
    v = x.var(dim=axis, keepdim=True, unbiased=False)
    return (x - m) / torch.sqrt(v + eps)
def _scatter_add(tgt, idx, src, axis=0):
    return tgt.clone().index_add_(axis, idx, src)
def _segment_sum(src, seg, n):
    out = torch.zeros((n,) + src.shape[1:], dtype=src.dtype)
    return out.index_add_(0, seg, src)
def _pad(x, pw):
    flat = tuple(v for pair in reversed(pw) for v in pair)
    return torch.nn.functional.pad(x, flat)

kernel_name = 'parallel_sum__softmax_full_mha__glu_gated_reglu__prompt'

def setup_inputs():

    _w = (lambda a: (lambda t: t.to(torch.bfloat16) if t.is_floating_point() else t)(torch.as_tensor(a)))
    def _A_setup():
        B, S, D = 1, 2048, 640
        return {
            "x": _w((lambda *s: torch.randn(*s, dtype=torch.bfloat16) * 0.05)(B, S, D)),
            "wqkv": _w((lambda *s: torch.randn(*s, dtype=torch.bfloat16) * 0.05)(D, 3 * D)),
            "wo": _w((lambda *s: torch.randn(*s, dtype=torch.bfloat16) * 0.05)(D, D)),
        }
    _A_in = _A_setup()

    def _B_setup():
        B, S, D, F = 1, 2048, 640, 1536
        return {
            "x": _w((lambda *s: torch.randn(*s, dtype=torch.bfloat16) * 0.05)(B, S, D)),
            "W_gate": _w((lambda *s: torch.randn(*s, dtype=torch.bfloat16) * 0.4)(D, F) * (2.0 / D) ** 0.5),
            "W_up": _w((lambda *s: torch.randn(*s, dtype=torch.bfloat16) * 0.4)(D, F) * (2.0 / D) ** 0.5),
            "W_down": _w((lambda *s: torch.randn(*s, dtype=torch.bfloat16) * 0.4)(F, D) * (1.0 / F) ** 0.5),
        }
    _B_in = _B_setup()

    return {
        "A_x": _A_in["x"],
        "A_wqkv": _A_in["wqkv"],
        "A_wo": _A_in["wo"],
        "B_x": _B_in["x"],
        "B_W_gate": _B_in["W_gate"],
        "B_W_up": _B_in["W_up"],
        "B_W_down": _B_in["W_down"],
    }

def reference(A_x, A_wqkv, A_wo, B_x, B_W_gate, B_W_up, B_W_down):
    def _A_ref(x, wqkv, wo):
        B, S, D = x.shape
        H = 32; Dh = D // H
        qkv = (lambda x, *d: x.permute(*d))((x @ wqkv).reshape(B, S, 3, H, Dh), 2, 0, 3, 1, 4)
        q, k, v = qkv[0], qkv[1], qkv[2]
        scale = Dh ** -0.5
        scores = torch.einsum("bhqd,bhkd->bhqk", q, k) * scale
        p = _softmax(scores, axis=-1)
        o = torch.einsum("bhqk,bhkd->bhqd", p, v)
        return (lambda x, *d: x.permute(*d))(o, 0, 2, 1, 3).reshape(B, S, D) @ wo

    def _B_ref(x, W_gate, W_up, W_down):
        gate = torch.einsum("bsd,df->bsf", x, W_gate)
        up = torch.einsum("bsd,df->bsf", x, W_up)
        gate = gate * (lambda x, dt: x.to(dt))(gate > 0, gate.dtype)
        h = gate * up
        return torch.einsum("bsf,fd->bsd", h, W_down)

    x = A_x
    xn = _layernorm(x, axis=-1)
    return x + _A_ref(xn, A_wqkv, A_wo) + _B_ref(xn, B_W_gate, B_W_up, B_W_down)
```

```python
import re

TRANS = ('v_exp_', 'v_log_', 'v_rcp_', 'v_rsq_', 'v_sqrt_', 'v_sin_', 'v_cos_')
REG_RE = re.compile(r'^(-|\|)?(?:abs\()?([vsa])(?:(\d+)|\[(\d+):(\d+)\])\)?\|?$')


def regs_of(tok):
    tok = tok.strip()
    if tok in ('vcc',):
        return [('s', 106), ('s', 107)]
    if tok == 'vcc_lo':
        return [('s', 106)]
    if tok == 'vcc_hi':
        return [('s', 107)]
    if tok == 'exec':
        return [('x', 0), ('x', 1)]
    if tok == 'exec_lo':
        return [('x', 0)]
    if tok == 'exec_hi':
        return [('x', 1)]
    if tok == 'm0':
        return [('m', 0)]
    m = REG_RE.match(tok)
    if not m:
        return []
    k = m.group(2)
    if m.group(3) is not None:
        return [(k, int(m.group(3)))]
    return [(k, i) for i in range(int(m.group(4)), int(m.group(5)) + 1)]


class Ins:
    __slots__ = ('text', 'op', 'dst', 'src', 'kind', 'passes', 'srcc', 'srcab', 'data', 'label', 'target',
                 'states', 'tag', 'needs', 'dpp', 'trans', 'dot', 'perm', 'rdlane', 'loop', 'wide', 'note')

    def __init__(self, text):
        self.text = text
        self.label = None
        self.target = None
        self.dst = set()
        self.src = set()
        self.kind = 'other'
        self.passes = 0
        self.srcc = set()
        self.srcab = set()
        self.data = set()
        self.states = 1
        self.tag = None
        self.needs = None
        self.dpp = self.trans = self.dot = self.perm = self.rdlane = self.wide = False
        self.loop = False
        self.op = ''
        self.note = None


def split_ops(s):
    out, depth, cur = [], 0, ''
    for ch in s:
        if ch in '[(':
            depth += 1
        if ch in '])':
            depth -= 1
        if ch == ',' and depth == 0:
            out.append(cur.strip())
            cur = ''
        else:
            cur += ch
    if cur.strip():
        out.append(cur.strip())
    return out


def parse(text):
    ins = Ins(text)
    code = text.split(';')[0].strip()
    if code.endswith(':'):
        ins.label = code[:-1]
        ins.kind = 'label'
        ins.states = 0
        return ins
    if code.startswith('.') or not code:
        ins.kind = 'directive'
        ins.states = 0
        return ins
    parts = code.split(None, 1)
    op = parts[0]
    ins.op = op
    rest = parts[1] if len(parts) > 1 else ''
    ops = split_ops(rest)
    toks = []
    mods = []
    for i, o in enumerate(ops):
        w = o.split()
        if not w:
            continue
        toks.append(w[0])
        mods += w[1:]
    R = [regs_of(t) for t in toks]

    def allregs(lst):
        s = set()
        for r in lst:
            s.update(r)
        return s
    if op.startswith('v_mfma'):
        ins.kind = 'mfma'
        ins.passes = 8 if ('32x32x16' in op or '32x32x8' in op) else 4 if '16x16x32' in op else 16
        ins.dst = set(R[0])
        ins.srcab = set(R[1]) | set(R[2])
        ins.srcc = set(R[3])
        ins.src = ins.srcab | ins.srcc
    elif op.startswith('v_'):
        ins.kind = 'valu'
        ins.trans = op.startswith(TRANS)
        ins.dpp = ('_dpp' in op) or any(m.startswith(('row_', 'quad_perm', 'wave_')) for m in mods)
        ins.dot = op.startswith('v_dot')
        if op.startswith('v_permlane') and 'swap' in op:
            ins.perm = True
            ins.dst = allregs(R[:2])
            ins.src = allregs(R[:2])
        elif op.startswith('v_cmpx'):
            ins.dst = set(R[0]) | {('x', 0), ('x', 1)}
            ins.src = allregs(R[1:])
        elif op.startswith(('v_add_co', 'v_sub_co', 'v_subrev_co', 'v_addc_co', 'v_subb_co', 'v_mad_u64', 'v_div_scale')):
            ins.dst = allregs(R[:2])
            ins.src = allregs(R[2:])
        elif op.startswith(('v_readfirstlane', 'v_readlane')):
            ins.rdlane = True
            ins.dst = set(R[0])
            ins.src = allregs(R[1:])
        elif op == 'v_nop':
            pass
        else:
            ins.dst = set(R[0])
            ins.src = allregs(R[1:])
            if op.startswith(('v_fmac', 'v_dot2c', 'v_pk_fmac', 'v_writelane', 'v_mac')):
                ins.src |= ins.dst
            if ins.dpp:
                ins.src |= ins.dst
            if op.startswith('v_cndmask') and len(toks) == 3:
                ins.src |= {('s', 106), ('s', 107)}
    elif op.startswith(('buffer_', 'global_')):
        ins.kind = 'vmem'
        is_lds = 'lds' in mods or '_lds_' in op
        if 'load' in op and not is_lds:
            ins.dst = set(R[0])
            ins.src = allregs(R[1:])
        elif 'load' in op:
            ins.src = allregs(R) | {('m', 0)}
            ins.kind = 'dma'
        elif 'store' in op:
            ins.src = allregs(R)
            d = R[0] if op.startswith('buffer_') else R[1]
            ins.data = set(d)
            ins.wide = ('x3' in op) or ('x4' in op)
            ins.kind = 'store'
        elif 'atomic' in op:
            ins.src = allregs(R)
            if 'sc0' in mods:
                ins.dst = set(R[0])
        else:
            pass
    elif op.startswith('ds_'):
        ins.kind = 'ds'
        if op.startswith(('ds_read', 'ds_bpermute', 'ds_permute', 'ds_swizzle')) or '_rtn' in op:
            ins.dst = set(R[0])
            ins.src = allregs(R[1:])
        else:
            ins.src = allregs(R)
    elif op.startswith('s_'):
        ins.kind = 'salu'
        if op == 's_nop':
            ins.states = int(toks[0], 0) + 1
            ins.kind = 'nop'
        elif op == 's_waitcnt':
            ins.kind = 'wait'
        elif op == 's_barrier':
            ins.kind = 'barrier'
        elif op in ('s_branch',) or op.startswith('s_cbranch'):
            ins.kind = 'branch'
            ins.target = toks[0]
        elif op == 's_endpgm':
            ins.kind = 'end'
        elif op.startswith(('s_load', 's_memtime', 's_memrealtime', 's_buffer_load')):
            ins.kind = 'smem'
            ins.dst = set(R[0])
            ins.src = allregs(R[1:])
        elif op.startswith(('s_cmp', 's_bitcmp', 's_setprio', 's_sleep')):
            ins.src = allregs(R)
        elif 'saveexec' in op:
            ins.dst = set(R[0]) | {('x', 0), ('x', 1)}
            ins.src = allregs(R[1:]) | {('x', 0), ('x', 1)}
        else:
            ins.dst = set(R[0]) if R else set()
            ins.src = allregs(R[1:])
            if op.startswith(('s_addk', 's_mulk')):
                ins.src |= ins.dst
    else:
        raise ValueError('unknown instr: ' + text)
    return ins


def vregs(s):
    return {r for r in s if r[0] in 'va'}


def sregs(s):
    return {r for r in s if r[0] == 's'}


def need_states(p, c):
    n = 0
    pv = p.kind == 'valu'
    if pv:
        wv = vregs(p.dst)
        ws = sregs(p.dst)
        if c.kind == 'mfma' and wv & c.src:
            n = max(n, 2)
        if c.kind == 'valu':
            if p.trans and not c.trans and wv & c.src:
                n = max(n, 1)
            if c.rdlane and wv & c.src:
                n = max(n, 1)
            if (c.dpp or c.perm) and wv & c.src:
                n = max(n, 2)
            if ws & c.src:
                n = max(n, 4 if c.rdlane else 2)
            if p.dot and (wv & (c.src | c.dst)):
                same = c.op == p.op
                if not (same and (wv & c.dst) and c.op.startswith('v_dot2c')):
                    if same and c.op.startswith('v_dot2_'):
                        pass
                    n = max(n, 3)
            if ('x', 0) in p.dst:
                n = max(n, 5 if c.dpp else 4 if (c.rdlane or c.perm) else 2)
        if p.dot and c.kind in ('mfma', 'vmem', 'store', 'ds', 'dma') and wv & (c.src | c.dst):
            n = max(n, 3)
        if c.kind in ('vmem', 'store', 'dma') and ws & c.src:
            n = max(n, 5)
        if c.kind in ('salu', 'branch', 'smem') and ws & c.src:
            n = max(n, 2)
        if c.kind == 'branch' and ws & {('s', 106), ('s', 107)} and 'vcc' in c.op:
            n = max(n, 5)
        if c.kind == 'mfma' and ('x', 0) in p.dst:
            n = max(n, 4)
    if p.kind == 'mfma':
        big = {4: 8, 8: 12, 16: 20}[p.passes]
        ovl = {4: 6, 8: 10, 16: 18}[p.passes]
        war = {4: 3, 8: 7, 16: 15}[p.passes]
        if c.kind == 'mfma':
            if p.dst & c.srcab:
                n = max(n, big)
            if p.dst & c.srcc:
                if not (c.srcc == p.dst and c.passes == p.passes):
                    n = max(n, ovl)
            elif p.dst & c.dst:
                n = max(n, ovl)
        elif c.kind in ('valu', 'vmem', 'store', 'ds', 'dma'):
            if p.dst & (c.src | c.dst):
                n = max(n, big)
            if c.kind == 'valu' and p.srcc & c.dst:
                n = max(n, war)
    if p.kind == 'salu' and ('m', 0) in p.dst and c.kind == 'dma':
        n = max(n, 1)
    if p.kind == 'store' and p.wide and p.data & c.dst:
        n = max(n, 2 if c.kind in ('valu', 'mfma') else 1)
    return n


MAXD = 20


class Asm:
    def __init__(self):
        self.ins = []

    def I(self, text, tag=None, needs=None, loop=False):
        for line in text.split('\n'):
            if not line.strip():
                continue
            x = parse(line.strip())
            x.tag = tag
            x.needs = needs
            x.loop = loop
            self.ins.append(x)
        return self.ins[-1]

    def label(self, name):
        self.I(name + ':')

    def comment(self, c):
        x = Ins('; ' + c)
        x.kind = 'directive'
        x.states = 0
        self.ins.append(x)

    def fix_hazards(self, verbose=False):
        total = 0
        start = 0
        passes_clean = False
        while True:
            ins = self.ins
            labels = {x.label: i for i, x in enumerate(ins) if x.label}
            preds = [[] for _ in range(len(ins))]
            for i, x in enumerate(ins):
                if i + 1 < len(ins) and not (x.kind == 'end' or x.op == 's_branch'):
                    preds[i + 1].append(i)
                if x.kind == 'branch':
                    preds[labels[x.target]].append(i)
            found = None
            for i in range(start, len(ins)):
                c = ins[i]
                if c.kind in ('label', 'directive', 'nop', 'wait', 'barrier', 'end'):
                    continue
                need = 0
                stack = [(p, 0) for p in preds[i]]
                seen = {}
                while stack:
                    j, d = stack.pop()
                    if j in seen and seen[j] <= d:
                        continue
                    seen[j] = d
                    p = ins[j]
                    if p.kind in ('valu', 'mfma', 'salu', 'store'):
                        n = need_states(p, c)
                        if n > d:
                            need = max(need, n - d)
                            if verbose:
                                print(f'hazard: [{p.text}] -> [{c.text}] need {n} have {d}')
                    d2 = d + p.states
                    if d2 < MAXD:
                        for q in preds[j]:
                            stack.append((q, d2))
                if need:
                    found = (i, need)
                    break
            if found is None:
                if start == 0:
                    break
                start = 0
                continue
            i, n = found
            total += n
            nops = []
            while n > 0:
                k = min(n, 16)
                nops.append(parse(f's_nop {k - 1}'))
                n -= k
            self.ins[i:i] = nops
            start = i
        return total

    def check_waits(self, start=0, take=()):
        ins = self.ins
        labels = {x.label: i for i, x in enumerate(ins) if x.label}
        vm, lg = [], []
        retired, visible = set(), set()
        looped = {}
        errs = []
        i = start
        steps = 0
        while i < len(ins):
            steps += 1
            x = ins[i]
            if x.kind == 'wait':
                m = re.search(r'vmcnt\((\d+)\)', x.text)
                if m:
                    n = int(m.group(1))
                    while len(vm) > n:
                        o = vm.pop(0)
                        if o.tag:
                            retired.add(o.tag)
                m = re.search(r'lgkmcnt\((\d+)\)', x.text)
                if m:
                    n = int(m.group(1))
                    if n > 0 and any(o.kind == 'smem' for o in lg):
                        pass
                    else:
                        while len(lg) > n:
                            o = lg.pop(0)
                            if o.tag:
                                retired.add(o.tag)
            elif x.kind == 'barrier':
                visible |= retired
            elif x.kind == 'end':
                break
            elif x.kind in ('label', 'directive'):
                pass
            else:
                touched = x.src | x.dst
                for q, nm in ((vm, 'vm'), (lg, 'lgkm')):
                    for o in q:
                        if o.dst & touched and not (o.tag == 'pf' and x.tag == 'pf'):
                            errs.append(f'{nm} not waited: [{o.text}] -> [{x.text}] (idx {i})')
                if x.needs:
                    for nd in (x.needs if isinstance(x.needs, (list, tuple)) else [x.needs]):
                        if nd.startswith('~'):
                            if nd[1:] not in retired:
                                errs.append(f'private tag {nd} not retired at [{x.text}] idx {i}')
                        elif nd not in visible:
                            errs.append(f'tag {nd} not visible at [{x.text}] idx {i}')
                if x.kind in ('vmem', 'store', 'dma'):
                    if x.tag:
                        retired.discard(x.tag)
                        visible.discard(x.tag)
                    vm.append(x)
                    if len(vm) > 63:
                        errs.append(f'vmcnt overflow at idx {i}')
                elif x.kind in ('ds', 'smem'):
                    if x.tag:
                        retired.discard(x.tag)
                        visible.discard(x.tag)
                    lg.append(x)
                if x.kind == 'branch':
                    t = labels[x.target]
                    if x.op == 's_branch':
                        if t < i:
                            if looped.get(i, 0) >= 1:
                                break
                            looped[i] = 1
                        i = t
                        continue
                    if t < i:
                        c = looped.get(i, 0)
                        if c < 2:
                            looped[i] = c + 1
                            i = t
                            continue
                        looped[i] = 0
                    elif x.target in take:
                        i = t
                        continue
            i += 1
        return errs

    def lint_scc(self):
        NOSCC = ('s_getreg', 's_mov', 's_movk', 's_mul_i32', 's_mul_hi', 's_cselect', 's_waitcnt', 's_nop', 's_barrier', 's_load', 's_memtime',
                 's_memrealtime', 's_setprio', 's_sleep', 's_getpc', 's_cbranch', 's_branch')
        out = []
        for i, x in enumerate(self.ins):
            if x.op.startswith(('s_cselect', 's_cbranch_scc', 's_addc', 's_subb')):
                j = i - 1
                while j >= 0:
                    p = self.ins[j]
                    if p.kind == 'label':
                        out.append(f'scc user after label: {x.text}')
                        break
                    if p.op.startswith('s_') and not p.op.startswith(NOSCC):
                        ok = p.op.startswith(('s_cmp', 's_bitcmp')) or (x.op.startswith(('s_addc', 's_subb')) and p.op.startswith(('s_add_u32', 's_sub_u32', 's_addc', 's_subb')))
                        if not ok:
                            out.append(f'scc from [{p.text}] used by [{x.text}]')
                        break
                    j -= 1
        return out

    def text(self):
        out = []
        for x in self.ins:
            if x.kind == 'label' or x.text.startswith('.'):
                out.append(x.text)
            else:
                out.append('    ' + x.text)
        return '\n'.join(out) + '\n'

    def max_regs(self):
        mv = ms = ma = -1
        for x in self.ins:
            for k, n in (x.src | x.dst):
                if k == 'v':
                    mv = max(mv, n)
                elif k == 'a':
                    ma = max(ma, n)
                elif k == 's' and n < 106:
                    ms = max(ms, n)
        return mv + 1, ms + 1, ma + 1
```

```python
import sys, importlib
from asmlib import Asm
HDR = open('parallel_sum__softmax_full_mha__glu_gated_reglu__prompt.s.ref').read().split('; Override launch')[0]

def assemble(kernels, path, plain=False):
    out = [HDR.rstrip('\n')]
    for name, a, grid, block, lds in kernels:
        out.append(f'; @launch grid=({grid},1,1) block=({block},1,1) lds={lds}' if plain else f'; @launch kernel={name} grid=({grid},1,1) block=({block},1,1) lds={lds}')
    out.append('.amdgcn_target "amdgcn-amd-amdhsa--gfx950"')
    out.append('.text')
    seen = set()
    descs = []
    for name, a, grid, block, lds in kernels:
        if name in seen: continue
        seen.add(name)
        n = a.fix_hazards()
        errs = a.check_waits()
        for e in errs[:20]:
            if 's_memtime' not in e: print('WAITERR', name, e)
        for e in a.lint_scc(): print('SCC', name, e)
        nv, ns, na = a.max_regs()
        acc = (nv + 3) // 4 * 4
        tot = acc + na if na else nv
        print(f'{name}: {len(a.ins)} lines, nops inserted {n}, vgpr {nv} agpr {na} sgpr {ns}')
        out.append(f'.globl {name}\n.p2align 8\n.type {name},@function')
        out.append(a.text())
        descs.append(f""".p2align 6
.amdhsa_kernel {name}
  .amdhsa_next_free_vgpr {tot}
  .amdhsa_next_free_sgpr {max(ns, 16)}
  .amdhsa_accum_offset {acc}
  .amdhsa_group_segment_fixed_size 0
  .amdhsa_kernarg_size 80
  .amdhsa_user_sgpr_count 2
  .amdhsa_user_sgpr_kernarg_segment_ptr 1
  .amdhsa_system_sgpr_workgroup_id_x 1
.end_amdhsa_kernel""")
    out.append('.section .rodata,"a"')
    out += descs
    open(path, 'w').write('\n'.join(out) + '\n')
```

```python
from asmlib import Asm
from layout import *
from stamp import Stamps
import struct

def f2u(f): return struct.unpack('<I', struct.pack('<f', f))[0]

def gen_attn(name, NS=4, stamps=False, kidx=1, a=None, entry=True):
    if a is None:
        a = Asm()
    I = a.I
    st = Stamps(a, stamps, kidx)
    vLane16, vTok8, vV0, vV1, vTmp, vTmp2, vTok16 = 1, 2, 3, 4, 5, 6, 7
    QA = [8, 16]; QB = [12, 20]
    S_ = [24, 40]
    P_ = [56, 64]
    O_ = [72, 88]
    KV0 = 104
    def KA(s): return KV0 + 16 * s
    def KB(s): return KV0 + 16 * s + 4
    def V0(s): return KV0 + 16 * s + 8
    def V1(s): return KV0 + 16 * s + 12
    vEND = KV0 + 16 * NS
    vM = [vEND, vEND + 1]
    sWS = 8
    sHead, sQT, sKV, sCnt, sKV0, sKmax, sFlag, sT = 12, 13, 14, 16, 17, 18, 19, 20
    sLo = 24
    sQ = 26
    def vr(b, n=4): return f'v[{b}:{b+n-1}]'
    def mfma(d, x, y, c=None):
        cc = vr(d, 16) if c is None else c
        return f'v_mfma_f32_32x32x16_bf16 {vr(d,16)}, {vr(x)}, {vr(y)}, {cc}'
    srd = f's[{sWS}:{sWS+3}]'

    if entry:
        a.label(name)
        I('s_cmp_ge_u32 s2, 256')
        I(f's_cbranch_scc1 {name}_end')
    st.start()
    I(f's_load_dwordx2 s[{sWS}:{sWS+1}], s[0:1], {KA_WS}')
    I(f'v_lshrrev_b32 v{vTmp}, 6, v0')
    I('v_and_b32 v0, 63, v0')
    I(f'v_readfirstlane_b32 s3, v{vTmp}')
    I(f's_and_b32 s6, s2, 7')
    I(f's_lshr_b32 s7, s2, 3')
    I(f's_lshr_b32 s{sHead}, s7, 3')
    I(f's_lshl_b32 s6, s6, 2')
    I(f's_add_u32 s{sHead}, s{sHead}, s6')
    I(f's_and_b32 s7, s7, 7')
    I(f's_lshl_b32 s{sQT}, s7, 3')
    I(f's_lshl_b32 s6, s3, 1')
    I(f's_add_u32 s{sQT}, s{sQT}, s6')
    I(f'v_lshlrev_b32 v{vLane16}, 4, v0')
    I(f'v_and_b32 v{vTmp}, 31, v0')
    I(f'v_lshlrev_b32 v{vTok8}, 3, v{vTmp}')
    I(f's_mul_i32 s{sKV0}, s{sHead}, {NT*KVREC}')
    I(f's_add_u32 s{sKV0}, s{sKV0}, {KV_OFF}')
    I(f's_lshl_b32 s{sQ}, s{sHead}, 6')
    I(f's_add_u32 s{sQ}, s{sQ}, s{sQT}')
    I(f's_mul_i32 s{sQ}, s{sQ}, {QREC}')
    I(f's_mul_i32 s{sT}, s{sHead}, {5*256}')
    I(f's_add_u32 s{sT}, s{sT}, {KN_OFF}')
    I(f'v_lshlrev_b32 v{vTmp2}, 2, v0')
    I(f's_mov_b32 s{sWS+2}, {WS_SIZE}')
    I(f's_mov_b32 s{sWS+3}, 0x20000')
    I(f'v_lshlrev_b32 v{vTok16}, 4, v{vTmp}')
    I('s_waitcnt lgkmcnt(0)')
    for q in range(2):
        I(f'buffer_load_dwordx4 {vr(QA[q])}, v{vLane16}, {srd}, s{sQ} offen offset:{q*QREC}')
        I(f'buffer_load_dwordx2 {vr(QB[q],2)}, v{vTok8}, {srd}, s{sQ} offen offset:{q*QREC+1024}')
    for g in range(5):
        I(f'buffer_load_dword v{S_[1]+g}, v{vTmp2}, {srd}, s{sT} offen offset:{g*256}')
    I(f'v_lshrrev_b32 v{vTmp2}, 5, v0')
    I(f'v_mul_u32_u24 v{vTmp2}, 320, v{vTmp2}')
    I(f'v_add_u32 v{vV0}, v{vTok16}, v{vTmp2}')
    I(f'v_and_b32 v{vTmp2}, 27, v0')
    I(f'v_cmp_eq_u32 vcc, 24, v{vTmp2}')
    I(f'v_mov_b32 v{vTmp2}, {1280+16}')
    I(f'v_mov_b32 v{vV1}, 1280')
    I(f'v_cndmask_b32 v{vTmp2}, v{vTmp2}, v{vV1}, vcc')
    I(f'v_cmp_gt_u32 vcc, 20, v{vTmp}')
    I(f'v_subrev_u32 v{vV1}, 640, v{vTmp2}')
    I(f'v_cndmask_b32 v{vV1}, v{vV1}, v{vV0}, vcc')
    I(f'v_cndmask_b32 v{vV0}, v{vTmp2}, v{vV0}, vcc')
    I(f's_mov_b32 s{sLo}, -1')
    I(f's_mov_b32 s{sLo+1}, 0')
    I(f's_mov_b32 s{sFlag}, 0')

    def ldKa(s, off): return f'buffer_load_dwordx4 {vr(KA(s))}, v{vLane16}, {srd}, s{sKV} offen offset:{off}'
    def ldKb(s, off): return f'buffer_load_dwordx2 {vr(KB(s),2)}, v{vTok8}, {srd}, s{sKV} offen offset:{off+1024}'
    def ldV0(s): return f'buffer_load_dwordx4 {vr(V0(s))}, v{vV0}, {srd}, s{sKV} offen offset:1280'
    def ldV1(s): return f'buffer_load_dwordx4 {vr(V1(s))}, v{vV1}, {srd}, s{sKV} offen offset:1920'
    adv = f's_add_u32 s{sKV}, s{sKV}, {KVREC}'

    a.label(f'{name}_restart')
    I(f's_mov_b32 s{sKV}, s{sKV0}')
    I(ldKa(0, 0)); I(ldKb(0, 0))
    for s in range(NS - 1):
        I(ldV0(s)); I(ldV1(s)); I(ldKa(s + 1, KVREC)); I(ldKb(s + 1, KVREC)); I(adv)
    nkv = 2 + 4 * (NS - 1)
    for s in range(NS):
        I(f'v_mov_b32 v{KB(s)+2}, 0x3f803f80')
        I(f'v_mov_b32 v{KB(s)+3}, 0x00003f80')
    for r in range(4):
        I(f'v_mov_b32 v{V1(NS-1)+r}, 0')
    for q in range(2):
        for r in range(16):
            I(f'v_mov_b32 v{O_[q]+r}, 0')
    for r in range(4, 8):
        I(f'v_mov_b32 v{P_[1]+r}, 0')
    I(f's_mov_b32 s{sCnt}, {NT // NS}')
    I(f's_cmp_lg_u32 s{sFlag}, 0')
    I(f's_cbranch_scc1 {name}_haveq')
    I(f's_waitcnt vmcnt({nkv})')
    kn = S_[1]
    I(f'v_add_f32 v{kn}, v{kn}, v{kn+1}')
    I(f'v_add_f32 v{kn+2}, v{kn+2}, v{kn+3}')
    I(f'v_add_f32 v{kn}, v{kn}, v{kn+4}')
    I(f'v_add_f32 v{kn}, v{kn}, v{kn+2}')
    T = [S_[0], S_[0] + 2]; U = [S_[0] + 1, S_[0] + 3]; W = [S_[0] + 4, S_[0] + 5]
    for q in range(2):
        I(f'v_mov_b32 v{T[q]}, 0')
        I(f'v_mov_b32 v{W[q]}, 0')
    dpps = ['quad_perm:[1,0,3,2]', 'quad_perm:[2,3,0,1]', 'row_half_mirror', 'row_mirror']
    for r in range(4):
        I(f'v_max_f32_dpp v{kn}, v{kn}, v{kn} {dpps[r]} row_mask:0xf bank_mask:0xf')
        for q in range(2):
            I(f'v_dot2c_f32_bf16 v{T[q]}, v{QA[q]+r}, v{QA[q]+r}')
    for r in range(2):
        for q in range(2):
            I(f'v_dot2c_f32_bf16 v{W[q]}, v{QB[q]+r}, v{QB[q]+r}')
    I(f'v_readlane_b32 s{sKmax}, v{kn}, 0')
    I(f'v_readlane_b32 s6, v{kn}, 16')
    I(f'v_readlane_b32 s7, v{kn}, 32')
    I(f'v_readlane_b32 s{sT}, v{kn}, 48')
    for q in range(2):
        I(f'v_mov_b32 v{U[q]}, v{T[q]}')
    I(f's_max_u32 s{sKmax}, s{sKmax}, s6')
    I(f's_max_u32 s7, s7, s{sT}')
    I(f's_max_u32 s{sKmax}, s{sKmax}, s7')
    for q in range(2):
        I(f'v_permlane32_swap_b32 v{U[q]}, v{T[q]}')
    for q in range(2):
        I(f'v_add_f32 v{T[q]}, v{T[q]}, v{U[q]}')
    for q in range(2):
        I(f'v_add_f32 v{T[q]}, v{T[q]}, v{W[q]}')
    for q in range(2):
        I(f'v_mul_f32 v{T[q]}, s{sKmax}, v{T[q]}')
    for q in range(2):
        I(f'v_sqrt_f32 v{T[q]}, v{T[q]}')
    for q in range(2):
        I(f'v_cndmask_b32 v{QB[q]}, 0, v{QB[q]}, s[{sLo}:{sLo+1}]')
        I(f'v_cndmask_b32 v{QB[q]+1}, 0, v{QB[q]+1}, s[{sLo}:{sLo+1}]')
        I(f'v_mov_b32 v{QB[q]+3}, 0')
    for q in range(2):
        I(f'v_mul_f32 v{T[q]}, 0x{f2u(-(1.0 + 2.0**-7)):08x}, v{T[q]}')
    for q in range(2):
        I(f'v_cvt_pk_bf16_f32 v{T[q]}, v{T[q]}, 0')
    for q in range(2):
        I(f'v_cndmask_b32 v{QB[q]+2}, 0, v{T[q]}, s[{sLo}:{sLo+1}]')
    a.label(f'{name}_haveq')
    I(f's_waitcnt vmcnt({nkv - 2})')
    I(mfma(S_[0], KA(0), QA[0], '0'))
    I(mfma(S_[0], KB(0), QB[0]))
    st.mark()
    I('s_nop 9')
    I(f'v_exp_f32 v{S_[0]}, v{S_[0]}')
    I(f'v_exp_f32 v{S_[0]+1}, v{S_[0]+1}')
    a.I('.p2align 3')
    a.label(f'{name}_loop')
    W1 = 4 * NS - 6
    for s in range(NS):
        for q in range(2):
            Sb, Pb = S_[q], P_[q]
            e = [f'v_exp_f32 v{Sb+r}, v{Sb+r}' for r in range(16)]
            c = [f'v_cvt_pk_bf16_f32 v{Pb+r}, v{Sb+2*r}, v{Sb+2*r+1}' for r in range(8)]
            nq = 1 - q
            ns = s if q == 0 else (s + 1) % NS
            M2 = mfma(S_[nq], KA(ns), QA[nq], '0')
            M3 = mfma(S_[nq], KB(ns), QB[nq])
            M4 = mfma(O_[q], V0(s), Pb)
            M1n = mfma(O_[q], V1(s), Pb + 4)
            ps = (s - 1) % NS
            if q == 0:
                f1, f2, f3, f4 = ldV0(ps), ldV1(ps), f's_waitcnt vmcnt({W1})', None
            else:
                f1, f2, f3, f4 = ldKa(s, KVREC), ldKb(s, KVREC), adv, None
            if s == NS - 1 and q == 0:
                f4 = f's_sub_u32 s{sCnt}, s{sCnt}, 1'
            if s == NS - 1 and q == 1:
                f4 = f's_cmp_lg_u32 s{sCnt}, 0'
            if not (s == 0 and q == 0) or True:
                I(f1)
            for r in range(2, 6): I(e[r])
            I(M2); I(f2)
            I(e[6]); I(e[7])
            for r in range(4): I(c[r])
            I(M3); I(f3)
            for r in range(8, 12): I(e[r])
            I(M4)
            if f4: I(f4)
            for r in range(12, 16): I(e[r])
            for r in range(4, 8): I(c[r])
            I(f'v_exp_f32 v{S_[nq]}, v{S_[nq]}')
            I(f'v_exp_f32 v{S_[nq]+1}, v{S_[nq]+1}')
            I(M1n)
    I(f's_cbranch_scc1 {name}_loop')
    st.mark()
    I(f's_cmp_lg_u32 s{sFlag}, 0')
    I(f's_cbranch_scc1 {name}_store')
    I(f'v_mov_b32 v{vTmp}, 0x{f2u(2.0**-60):08x}')
    I(f'v_cmp_ge_f32 vcc, v{O_[0]+12}, v{vTmp}')
    I(f'v_cmp_ge_f32 s[6:7], v{O_[1]+12}, v{vTmp}')
    I('s_and_b64 s[6:7], s[6:7], vcc')
    I('s_cmp_eq_u64 s[6:7], -1')
    I(f's_cbranch_scc1 {name}_store')
    I('s_waitcnt vmcnt(0)')
    for q in range(2):
        I(f'v_mov_b32 v{QB[q]+2}, 0')
        I(f'v_mov_b32 v{QB[q]+3}, 0')
        I(f'v_mov_b32 v{vM[q]}, 0xff800000')
    I(f's_mov_b32 s{sKV}, s{sKV0}')
    I(f's_mov_b32 s{sCnt}, {NT}')
    a.label(f'{name}_maxloop')
    I(ldKa(0, 0)); I(ldKb(0, 0)); I(adv)
    I('s_waitcnt vmcnt(0)')
    for q in range(2):
        I(mfma(S_[q], KA(0), QA[q], '0'))
        I(mfma(S_[q], KB(0), QB[q]))
    for q in range(2):
        for r in range(0, 16, 2):
            I(f'v_max3_f32 v{vM[q]}, v{S_[q]+r}, v{S_[q]+r+1}, v{vM[q]}')
    I(f's_sub_u32 s{sCnt}, s{sCnt}, 1')
    I(f's_cmp_lg_u32 s{sCnt}, 0')
    I(f's_cbranch_scc1 {name}_maxloop')
    for q in range(2):
        m, t, u, w = vM[q], S_[0], S_[0] + 1, S_[0] + 2
        I(f'v_mov_b32 v{t}, v{m}')
        I(f'v_permlane32_swap_b32 v{t}, v{m}')
        I(f'v_max_f32 v{m}, v{m}, v{t}')
        I(f'v_sub_f32 v{m}, 0, v{m}')
        I(f'v_and_b32 v{t}, 0xffff0000, v{m}')
        I(f'v_sub_f32 v{m}, v{m}, v{t}')
        I(f'v_and_b32 v{u}, 0xffff0000, v{m}')
        I(f'v_sub_f32 v{m}, v{m}, v{u}')
        I(f'v_lshrrev_b32 v{t}, 16, v{t}')
        I(f'v_or_b32 v{t}, v{t}, v{u}')
        I(f'v_lshrrev_b32 v{w}, 16, v{m}')
        I(f'v_cndmask_b32 v{QB[q]+2}, 0, v{t}, s[{sLo}:{sLo+1}]')
        I(f'v_cndmask_b32 v{QB[q]+3}, 0, v{w}, s[{sLo}:{sLo+1}]')
    I(f's_mov_b32 s{sFlag}, 1')
    I(f's_branch {name}_restart')
    a.label(f'{name}_store')
    I(f'v_lshrrev_b32 v{vTmp}, 5, v0')
    I(f's_mul_i32 s6, s{sHead}, 5')
    I(f'v_add_u32 v{vTmp}, s6, v{vTmp}')
    offs = [S_[0], S_[0] + 1, S_[0] + 2]
    for q in range(2):
        I(f'v_rcp_f32 v{S_[1]+q}, v{O_[q]+12}')
    for rq in range(3):
        g, o, t = S_[0] + 4, offs[rq], S_[0] + 5
        I(f'v_add_u32 v{g}, {2*rq}, v{vTmp}')
        I(f'v_lshrrev_b32 v{o}, 2, v{g}')
        I(f'v_lshlrev_b32 v{o}, 10, v{o}')
        I(f'v_and_b32 v{t}, 1, v{g}')
        I(f'v_lshl_add_u32 v{o}, v{t}, 9, v{o}')
        I(f'v_bfe_u32 v{t}, v{g}, 1, 1')
        I(f'v_lshlrev_b32 v{t}, 3, v{t}')
        I(f'v_add3_u32 v{o}, v{o}, v{t}, v{vTok16}')
    I(f's_mul_i32 s6, s{sQT}, {AREC}')
    I(f's_add_u32 s6, s6, {AF_OFF}')
    I(f's_add_u32 s7, s6, {AREC}')
    for q in range(2):
        rl = S_[1] + q
        for rq in range(3):
            for r in range(4 * rq, 4 * rq + 4):
                I(f'v_mul_f32 v{O_[q]+r}, v{O_[q]+r}, v{rl}')
            for r in range(2 * rq, 2 * rq + 2):
                I(f'v_cvt_pk_bf16_f32 v{P_[q]+r}, v{O_[q]+2*r}, v{O_[q]+2*r+1}')
            if rq < 2:
                I(f'buffer_store_dwordx2 {vr(P_[q]+2*rq,2)}, v{offs[rq]}, {srd}, s{6+q} offen')
    I(f's_mov_b64 exec, s[{sLo}:{sLo+1}]')
    for q in range(2):
        I(f'buffer_store_dwordx2 {vr(P_[q]+4,2)}, v{offs[2]}, {srd}, s{6+q} offen')
    I('s_mov_b64 exec, -1')
    st.end(3, 4, 5)
    if entry:
        a.label(f'{name}_end')
        I('s_endpgm')
    return a
```

```python
from asmlib import Asm
from layout import *
from stamp import Stamps
import struct
def f2u(f): return struct.unpack('<I', struct.pack('<f', f))[0]

BSLOT, XSLOT = 20480, 16384
RS_LDS = 0
NM_LDS = RS_LDS + 2048
RR_LDS = NM_LDS + 512
CSP_LDS = RR_LDS + 512
CS_LDS = CSP_LDS + 5120
B_LDS = 10240
X_LDS = B_LDS + 4 * BSLOT
K1_LDS = X_LDS + 2 * XSLOT

def gen_gemm1(name, stamps=False, kidx=0):
    a = Asm()
    I = a.I
    st = Stamps(a, stamps, kidx)
    def vr(b, n=4): return f'v[{b}:{b+n-1}]'
    vLane16, vT0, vT1, vT2, vT3, vTok, vHk = 1, 2, 3, 4, 5, 6, 7
    vD = [8, 9, 10]
    vDX = [11, 12]
    vXF = [13, 14, 15, 16]
    vXS = [17, 18]
    vWB = [[20 + i for i in range(5)], [25 + i for i in range(5)]]
    vCB = [[30 + i for i in range(5)], [35 + i for i in range(5)]]
    vCA = 40
    vSA = 50
    vU = 54
    vCT = 58
    vC4 = [66, 68]
    vST = [72, 76]
    FR = [80, 104]
    ACC = 128
    vEP = 208
    def Wf(s, u): return FR[s] + 4 * u
    def Xf(s): return FR[s] + 20
    sWave, sRB, sCG, sG, sRT, sTile, sT, sT2 = 3, 28, 29, 30, 31, 32, 33, 34
    sX, sD0, sD1, sD2, sWS = 8, 12, 16, 20, 24
    sO0, sO1, sO2, sOX, sSt0, sSt2, sCnt, sXi = 35, 36, 37, 38, 39, 40, 41, 42
    sLo = 44
    sMB, sMX = 46, 47
    sType = 48
    def srd(s): return f's[{s}:{s+3}]'

    a.label(name)
    I('s_cmp_ge_u32 s2, 256')
    I(f's_cbranch_scc1 {name}_end')
    st.start()
    I(f's_load_dwordx4 s[4:7], s[0:1], {KA_X}')
    I(f's_load_dwordx4 s[52:55], s[0:1], {KA_WG}')
    I(f's_load_dwordx2 s[{sWS}:{sWS+1}], s[0:1], {KA_WS}')
    I(f'v_lshrrev_b32 v{vT0}, 6, v0')
    I(f'v_mov_b32 v{vT3}, v0')
    I('v_and_b32 v0, 63, v0')
    I(f'v_readfirstlane_b32 s{sWave}, v{vT0}')
    I(f's_and_b32 s{sT}, s2, 7')
    I(f's_lshr_b32 s{sT2}, s2, 3')
    I(f's_and_b32 s{sRB}, s{sT}, 1')
    I(f's_lshl_b32 s{sRB}, s{sRB}, 3')
    I(f's_and_b32 s{sCG}, s{sT2}, 7')
    I(f's_add_u32 s{sRB}, s{sRB}, s{sCG}')
    I(f's_lshr_b32 s{sCG}, s{sT}, 1')
    I(f's_lshl_b32 s{sCG}, s{sCG}, 2')
    I(f's_lshr_b32 s{sT2}, s{sT2}, 3')
    I(f's_add_u32 s{sCG}, s{sCG}, s{sT2}')
    I(f's_lshr_b32 s{sG}, s{sWave}, 2')
    I(f's_and_b32 s{sRT}, s{sWave}, 3')
    I(f's_lshl_b32 s{sTile}, s{sRB}, 2')
    I(f's_add_u32 s{sTile}, s{sTile}, s{sRT}')
    I(f's_mov_b32 s{sLo}, -1')
    I(f's_mov_b32 s{sLo+1}, 0')
    I(f'v_lshlrev_b32 v{vLane16}, 4, v0')
    I(f'v_and_b32 v{vTok}, 31, v0')
    I(f'v_lshrrev_b32 v{vHk}, 5, v0')
    for jj in range(2):
        I(f'v_lshrrev_b32 v{vT0}, 3, v0')
        I(f'v_add_u32 v{vT0}, {8*jj}, v{vT0}')
        I(f'v_lshrrev_b32 v{vT1}, 1, v{vT0}')
        I(f'v_xor_b32 v{vT1}, v{vT1}, v0')
        I(f'v_and_b32 v{vT1}, 7, v{vT1}')
        I(f'v_lshlrev_b32 v{vT1}, 4, v{vT1}')
        I(f'v_mul_u32_u24 v{vT0}, 1280, v{vT0}')
        I(f'v_add_u32 v{vDX[jj]}, v{vT0}, v{vT1}')
    I(f'v_subrev_u32 v{vDX[1]}, 1024, v{vDX[1]}')
    I(f's_lshl_b32 s{sOX}, s{sRB}, 7')
    I(f's_lshl_b32 s{sT}, s{sWave}, 4')
    I(f's_add_u32 s{sOX}, s{sOX}, s{sT}')
    I(f's_mul_i32 s{sOX}, s{sOX}, 1280')
    I(f's_lshl_b32 s{sMX}, s{sWave}, 11')
    I(f's_add_u32 s{sMX}, s{sMX}, {X_LDS}')
    I(f's_mov_b32 s{sX+2}, {S*D*2}')
    I(f's_mov_b32 s{sX+3}, 0x20000')
    for s in (sD0, sD1, sD2, sWS):
        I(f's_mov_b32 s{s+3}, 0x20000')
    I(f's_mov_b32 s{sWS+2}, {WS_SIZE}')
    I(f's_mov_b32 s{sD2+2}, {D*3*D*2}')
    I(f's_cmp_ge_u32 s{sCG}, 12')
    I(f's_cbranch_scc1 {name}_setup_qk')
    I(f'v_lshrrev_b32 v{vT0}, 4, v0')
    I(f'v_bfe_u32 v{vT1}, v0, 1, 3')
    I(f'v_lshlrev_b32 v{vT2}, 1, v{vT0}')
    I(f'v_xor_b32 v{vT1}, v{vT1}, v{vT2}')
    I(f'v_mul_u32_u24 v{vT0}, 3072, v{vT0}')
    I(f'v_and_b32 v{vT2}, 1, v0')
    I(f'v_lshl_add_u32 v{vT0}, v{vT2}, 4, v{vT0}')
    I(f'v_lshl_add_u32 v{vD[0]}, v{vT1}, 5, v{vT0}')
    I(f'v_xor_b32 v{vT1}, 1, v{vT1}')
    I(f'v_lshl_add_u32 v{vD[1]}, v{vT1}, 5, v{vT0}')
    I(f'v_bfe_u32 v{vT0}, v0, 3, 2')
    I(f'v_bfe_u32 v{vT1}, v0, 2, 1')
    I(f'v_lshrrev_b32 v{vT2}, 1, v{vT0}')
    I(f'v_xor_b32 v{vT1}, v{vT1}, v{vT2}')
    I(f'v_mul_u32_u24 v{vT0}, 3840, v{vT0}')
    I(f'v_lshl_add_u32 v{vT0}, v{vT1}, 6, v{vT0}')
    I(f'v_and_b32 v{vT1}, 3, v0')
    I(f'v_lshl_add_u32 v{vD[2]}, v{vT1}, 4, v{vT0}')
    I(f's_mul_i32 s{sO0}, s{sWave}, {4*3072}')
    I(f's_lshl_b32 s{sT}, s{sCG}, 8')
    I(f's_add_u32 s{sO0}, s{sO0}, s{sT}')
    I(f's_mov_b32 s{sO1}, s{sO0}')
    I(f's_mul_i32 s{sO2}, s{sWave}, {4*3840}')
    I(f's_min_u32 s{sT}, s{sCG}, 9')
    I(f's_lshl_b32 s{sT}, s{sT}, 7')
    I(f's_add_u32 s{sO2}, s{sO2}, s{sT}')
    I(f's_add_u32 s{sO2}, s{sO2}, 2560')
    I(f's_mov_b32 s{sSt0}, {32*3072}')
    I(f's_mov_b32 s{sD0+2}, {D*F*2}')
    I(f's_mov_b32 s{sD1+2}, {D*F*2}')
    I(f's_cmp_ge_u32 s{sCG}, 10')
    I(f's_cselect_b32 s{sType}, 1, 0')
    I(f's_cselect_b32 s{sD2+2}, 0, s{sD2+2}')
    I('s_waitcnt lgkmcnt(0)')
    I(f's_mov_b32 s{sD0}, s52'); I(f's_mov_b32 s{sD0+1}, s53')
    I(f's_mov_b32 s{sD1}, s54'); I(f's_mov_b32 s{sD1+1}, s55')
    I(f's_branch {name}_setup_done')
    a.label(f'{name}_setup_qk')
    for j in range(3):
        I(f'v_add_u32 v{vT0}, {64*j}, v0')
        I(f'v_mul_u32_u24 v{vT1}, 1639, v{vT0}')
        I(f'v_lshrrev_b32 v{vT1}, 16, v{vT1}')
        I(f'v_mul_u32_u24 v{vT2}, 40, v{vT1}')
        I(f'v_sub_u32 v{vT0}, v{vT0}, v{vT2}')
        I(f'v_bfe_u32 v{vT2}, v{vT1}, 1, 1')
        I(f'v_lshlrev_b32 v{vT2}, 2, v{vT2}')
        I(f'v_xor_b32 v{vT0}, v{vT0}, v{vT2}')
        I(f'v_mul_u32_u24 v{vT1}, 3840, v{vT1}')
        I(f'v_lshl_add_u32 v{vD[j]}, v{vT0}, 4, v{vT1}')
    I(f's_mul_i32 s{sO0}, s{sWave}, {4*3840}')
    I(f's_sub_u32 s{sT}, s{sCG}, 12')
    I(f's_mul_i32 s{sT}, s{sT}, 640')
    I(f's_add_u32 s{sO0}, s{sO0}, s{sT}')
    I(f's_mov_b32 s{sO1}, s{sO0}')
    I(f's_mov_b32 s{sO2}, s{sO0}')
    I(f's_mov_b32 s{sSt0}, {32*3840}')
    I(f's_mov_b32 s{sD0+2}, {D*3*D*2}')
    I(f's_mov_b32 s{sD1+2}, {D*3*D*2}')
    I(f's_cmp_ge_u32 s{sCG}, 14')
    I(f's_cselect_b32 s{sType}, 3, 2')
    I('s_waitcnt lgkmcnt(0)')
    I(f's_mov_b32 s{sD0}, s6'); I(f's_mov_b32 s{sD0+1}, s7')
    I(f's_mov_b32 s{sD1}, s6'); I(f's_mov_b32 s{sD1+1}, s7')
    a.label(f'{name}_setup_done')
    I(f's_mov_b32 s{sD2}, s6'); I(f's_mov_b32 s{sD2+1}, s7')
    I(f's_mov_b32 s{sX}, s4'); I(f's_mov_b32 s{sX+1}, s5')
    I(f's_mov_b32 s{sXi}, 0')

    sM = [49, 50, 51]
    I(f's_mul_i32 s{sT}, s{sWave}, 2560')
    I(f's_lshl_b32 s{sT2}, s{sWave}, 10')
    I(f's_cmp_ge_u32 s{sType}, 2')
    I(f's_cselect_b32 s{sM[0]}, s{sT}, s{sT2}')
    I(f's_add_u32 s{sT}, s{sT}, 1024')
    I(f's_add_u32 s{sT2}, s{sT2}, 8192')
    I(f's_cmp_ge_u32 s{sType}, 2')
    I(f's_cselect_b32 s{sM[1]}, s{sT}, s{sT2}')
    I(f's_add_u32 s{sT}, s{sT}, 1024')
    I(f's_lshl_b32 s{sT2}, s{sWave}, 9')
    I(f's_add_u32 s{sT2}, s{sT2}, 16384')
    I(f's_cmp_ge_u32 s{sType}, 2')
    I(f's_cselect_b32 s{sM[2]}, s{sT}, s{sT2}')

    def dmaB(slot, tag=None):
        return [
            f's_add_u32 m0, s{sM[0]}, {B_LDS+slot*BSLOT}\n'
            f's_add_u32 s{sO1}, s{sO0}, 0\n'
            f'buffer_load_dwordx4 v{vD[0]}, {srd(sD0)}, s{sO0} offen lds',
            f's_add_u32 m0, s{sM[1]}, {B_LDS+slot*BSLOT}\n'
            f's_add_u32 s{sO0}, s{sO0}, s{sSt0}\n'
            f'buffer_load_dwordx4 v{vD[1]}, {srd(sD1)}, s{sO1} offen lds',
            f's_add_u32 m0, s{sM[2]}, {B_LDS+slot*BSLOT}\n'
            f's_mov_b64 exec, s[{sLo}:{sLo+1}]\n'
            f'buffer_load_dwordx4 v{vD[2]}, {srd(sD2)}, s{sO2} offen lds\n'
            's_mov_b64 exec, -1\n'
            f's_add_u32 s{sO2}, s{sO2}, {32*3840}']
    def dmaX(slot):
        return [
            f's_cmp_ge_u32 s{sXi}, 10\n'
            f's_cselect_b32 s{sX+2}, 0, s{sX+2}\n'
            f's_add_u32 m0, s{sMX}, {slot*XSLOT}\n'
            f's_add_u32 s{sXi}, s{sXi}, 1\n'
            f'buffer_load_dwordx4 v{vDX[0]}, {srd(sX)}, s{sOX} offen lds',
            f'buffer_load_dwordx4 v{vDX[1]}, {srd(sX)}, s{sOX} offen offset:1024 lds\n'
            f's_add_u32 s{sOX}, s{sOX}, 128']
    for x in dmaX(0) + dmaB(0) + dmaB(1) + dmaB(2) + dmaX(1) + dmaB(3):
        I(x)

    I(f's_lshl_b32 s{sT}, s{sRT}, 12')
    I(f's_add_u32 s{sT}, s{sT}, {X_LDS}')
    I(f'v_lshlrev_b32 v{vT0}, 7, v{vTok}')
    I(f'v_add_u32 v{vT0}, s{sT}, v{vT0}')
    I(f'v_bfe_u32 v{vT1}, v0, 1, 3')
    I(f'v_xor_b32 v{vT1}, v{vT1}, v{vHk}')
    for ks in range(4):
        I(f'v_xor_b32 v{vT2}, {2*ks}, v{vT1}')
        I(f'v_lshl_add_u32 v{vXF[ks]}, v{vT2}, 4, v{vT0}')
    I(f's_lshl_b32 s{sT}, s{sG}, 1')
    for h in range(2):
        I(f'v_xor_b32 v{vT2}, s{sT}, v{vT1}')
        if h: I(f'v_xor_b32 v{vT2}, 4, v{vT2}')
        I(f'v_lshl_add_u32 v{vXS[h]}, v{vT2}, 4, v{vT0}')
    I(f'v_bfe_u32 v{vT0}, v0, 2, 2')
    I(f'v_lshl_add_u32 v{vT1}, v{vHk}, 3, v{vT0}')
    I(f'v_and_b32 v{vT2}, 3, v0')
    I(f'v_lshlrev_b32 v{vT2}, 3, v{vT2}')
    I(f'v_add_u32 v{vT2}, {B_LDS}, v{vT2}')
    vG16 = vU
    I(f'v_bfe_u32 v{vG16}, v0, 4, 1')
    I(f's_and_b32 s{sOX+0 if False else sT2}, s{sWave}, 3')
    I(f's_cmp_ge_u32 s{sType}, 2')
    I(f's_cbranch_scc1 {name}_rd_qk')
    I(f'v_lshlrev_b32 v{vU+1}, 8, v{vT1}')
    I(f'v_lshl_add_u32 v{vU+1}, v{vG16}, 13, v{vU+1}')
    I(f'v_add_u32 v{vU+1}, v{vU+1}, v{vT2}')
    I(f'v_lshlrev_b32 v{vU+2}, 1, v{vT0}')
    I(f'v_xor_b32 v{vU+2}, v{vU+2}, v{vG16}')
    I(f's_lshl_b32 s{sT}, s{sG}, 2')
    I(f'v_xor_b32 v{vU+2}, s{sT}, v{vU+2}')
    for i in range(4):
        I(f'v_xor_b32 v{vU+3}, {i}, v{vU+2}')
        I(f'v_lshl_add_u32 v{vWB[0][i]}, v{vU+3}, 5, v{vU+1}')
    I(f'v_lshrrev_b32 v{vU+3}, 1, v{vT0}')
    I(f'v_xor_b32 v{vU+3}, s{sG}, v{vU+3}')
    I(f'v_lshlrev_b32 v{vU+3}, 6, v{vU+3}')
    I(f'v_lshl_add_u32 v{vU+3}, v{vT1}, 7, v{vU+3}')
    I(f'v_lshl_add_u32 v{vU+3}, v{vG16}, 5, v{vU+3}')
    I(f'v_add_u32 v{vU+3}, v{vU+3}, v{vT2}')
    I(f'v_add_u32 v{vWB[0][4]}, 16384, v{vU+3}')
    I(f's_lshr_b32 s{sT}, s{sT2}, 1')
    I(f's_lshl_b32 s{sT}, s{sT}, 4')
    I(f's_and_b32 s{sT2}, s{sT2}, 1')
    I(f's_lshl_b32 s{sT2}, s{sT2}, 2')
    I(f's_add_u32 s{sT}, s{sT}, s{sT2}')
    I(f's_lshl_b32 s{sT2}, s{sT}, 8')
    I(f's_lshl_b32 s{sT}, s{sT}, 7')
    for i in range(5):
        I(f'v_add_u32 v{vCB[0][i]}, s{sT2 if i < 4 else sT}, v{vWB[0][i]}')
    I(f's_branch {name}_rd_done')
    a.label(f'{name}_rd_qk')
    I(f'v_mul_u32_u24 v{vU+1}, 640, v{vT1}')
    I(f'v_lshl_add_u32 v{vU+1}, v{vG16}, 5, v{vU+1}')
    I(f'v_add_u32 v{vU+1}, v{vU+1}, v{vT2}')
    I(f'v_lshrrev_b32 v{vU+2}, 1, v{vT0}')
    I(f's_lshl_b32 s{sT}, s{sG}, 2')
    I(f'v_xor_b32 v{vU+3}, s{sT}, v{vU+2}')
    for i in range(4):
        I(f'v_xor_b32 v{vT0}, {i}, v{vU+3}')
        I(f'v_lshl_add_u32 v{vWB[0][i]}, v{vT0}, 6, v{vU+1}')
    I(f'v_xor_b32 v{vU+3}, s{sG}, v{vU+2}')
    I(f'v_add_u32 v{vU+3}, 8, v{vU+3}')
    I(f'v_lshl_add_u32 v{vWB[0][4]}, v{vU+3}, 6, v{vU+1}')
    I(f's_lshr_b32 s{sT}, s{sT2}, 1')
    I(f's_lshl_b32 s{sT}, s{sT}, 4')
    I(f's_and_b32 s{sT2}, s{sT2}, 1')
    I(f's_lshl_b32 s{sT2}, s{sT2}, 2')
    I(f's_add_u32 s{sT}, s{sT}, s{sT2}')
    I(f's_mul_i32 s{sT}, s{sT}, 640')
    for i in range(5):
        I(f'v_add_u32 v{vCB[0][i]}, s{sT}, v{vWB[0][i]}')
    a.label(f'{name}_rd_done')
    for i in range(5):
        I(f'v_add_u32 v{vWB[1][i]}, {2*BSLOT}, v{vWB[0][i]}')
        I(f'v_add_u32 v{vCB[1][i]}, {2*BSLOT}, v{vCB[0][i]}')
    for r in range(14):
        I(f'v_mov_b32 v{vCA+r}, 0')
    for r in list(range(vC4[1], vC4[1] + 2)) + list(range(vST[1], vST[1] + 4)):
        I(f'v_mov_b32 v{r}, 0')
    for r in range(80):
        I(f'v_mov_b32 v{ACC+r}, 0')
    I(f's_mov_b32 s{sCnt}, 5')
    I('s_waitcnt vmcnt(11)')
    I('s_barrier')
    st.mark()

    def loop(typ):
        rs = [256] * 4 + [128] if typ == 'A' else [640] * 5
        def rdW(fs, u, slot, sp):
            b = vWB[slot >> 1][u]
            o = (slot & 1) * BSLOT + 16 * sp * rs[u]
            return [f'ds_read_b64_tr_b16 {vr(Wf(fs,u),2)}, v{b} offset:{o}',
                    f'ds_read_b64_tr_b16 {vr(Wf(fs,u)+2,2)}, v{b} offset:{o+4*rs[u]}']
        def rdX(fs, kstep):
            return f'ds_read_b128 {vr(Xf(fs))}, v{vXF[kstep & 3]} offset:{((kstep >> 2) & 1) * XSLOT}'
        def mf(fs, u):
            acc = vr(ACC + 16 * u, 16)
            if typ == 'A' and u == 4:
                return f'v_mfma_f32_32x32x16_bf16 {acc}, {vr(Xf(fs))}, {vr(Wf(fs,u))}, {acc}'
            return f'v_mfma_f32_32x32x16_bf16 {acc}, {vr(Wf(fs,u))}, {vr(Xf(fs))}, {acc}'
        def cs_ops(src, u):
            o = []
            for d in range(2):
                t = vU + 2 * d
                o += [f'v_lshlrev_b32 v{t}, 16, v{src+d}', f'v_and_b32 v{t+1}, 0xffff0000, v{src+d}',
                      f'v_add_f32 v{vCA+2*u}, v{vCA+2*u}, v{t}', f'v_add_f32 v{vCA+2*u+1}, v{vCA+2*u+1}, v{t+1}']
            return o
        def st_ops(src):
            o = []
            for d in range(4):
                t = vU + 2 * (d & 1)
                o += [f'v_lshlrev_b32 v{t}, 16, v{src+d}', f'v_and_b32 v{t+1}, 0xffff0000, v{src+d}',
                      f'v_add_f32 v{vSA}, v{vSA}, v{t}', f'v_add_f32 v{vSA+1}, v{vSA+1}, v{t+1}',
                      f'v_fmac_f32 v{vSA+2}, v{t}, v{t}', f'v_fmac_f32 v{vSA+3}, v{t+1}, v{t+1}']
            return o
        def emit_phase(mf_list, lds_list, valu_list, pre=()):
            n = len(mf_list)
            pre = list(pre)
            for k in range(n):
                I(mf_list[k])
                for lst in (pre, lds_list, valu_list):
                    lo, hi = len(lst) * k // n, len(lst) * (k + 1) // n
                    for x in lst[lo:hi]:
                        I(x)
        L = f'{name}_loop{typ}'
        I(rdX(0, 0))
        for u in range(5):
            for x in rdW(0, u, 0, 0): I(x)
        a.I('.p2align 3')
        a.label(L)
        for j in range(4):
            par = j & 1
            I('s_waitcnt lgkmcnt(0)')
            lds = [rdX(1, 2 * j + 1)]
            for u in range(5):
                lds += rdW(1, u, j, 1)
            cb = vCB[j >> 1]
            o = (j & 1) * BSLOT
            for u in range(4):
                lds.append(f'ds_read_b64_tr_b16 {vr(vCT+2*u,2)}, v{cb[u]} offset:{o}')
            lds.append(f'ds_read_b64_tr_b16 {vr(vC4[par],2)}, v{cb[4]} offset:{o}')
            lds.append(f'ds_read_b128 {vr(vST[par])}, v{vXS[par]} offset:{(j >> 1) * XSLOT}')
            assert len(lds) <= 17
            valu = cs_ops(vC4[1 - par], 4) + st_ops(vST[1 - par])
            lds2 = lds[:11] + ['s_waitcnt lgkmcnt(8)'] + lds[11:]
            emit_phase([mf(0, u) for u in range(5)], lds2, valu)
            I(f's_waitcnt vmcnt({6 if par else 8}) lgkmcnt(0)')
            I('s_barrier')
            dm = (dmaX(j >> 1) if par else []) + dmaB(j)
            jn = (j + 1) & 3
            lds = [rdX(0, (2 * j + 2) & 7)]
            for u in range(5):
                lds += rdW(0, u, jn, 0)
            valu = []
            for u in range(4):
                valu += cs_ops(vCT + 2 * u, u)
            if j == 3:
                dm = dm + [f's_sub_u32 s{sCnt}, s{sCnt}, 1\ns_cmp_lg_u32 s{sCnt}, 0']
            emit_phase([mf(1, u) for u in range(5)], lds, valu, pre=dm)
        I(f's_cbranch_scc1 {L}')
        for x in cs_ops(vC4[1], 4) + st_ops(vST[1]):
            I(x)
    I(f's_cmp_ge_u32 s{sType}, 2')
    I(f's_cbranch_scc1 {name}_mainQ')
    loop('A')
    I(f's_branch {name}_post')
    a.label(f'{name}_mainQ')
    loop('Q')
    a.label(f'{name}_post')
    st.mark()
    I(f'v_add_f32 v{vSA}, v{vSA}, v{vSA+1}')
    I(f'v_add_f32 v{vSA+1}, v{vSA+2}, v{vSA+3}')
    for u in range(5):
        I(f'v_add_f32 v{vCA+2*u}, v{vCA+2*u}, v{vCA+2*u+1}')
    I(f'v_mov_b32 v{vSA+2}, v{vSA}')
    I(f'v_mov_b32 v{vSA+3}, v{vSA+1}')
    for u in range(5):
        I(f'v_mov_b32 v{vCA+2*u+1}, v{vCA+2*u}')
    I(f'v_permlane32_swap_b32 v{vSA+2}, v{vSA}')
    I(f'v_permlane32_swap_b32 v{vSA+3}, v{vSA+1}')
    for u in range(5):
        I(f'v_permlane32_swap_b32 v{vCA+2*u+1}, v{vCA+2*u}')
    I(f'v_add_f32 v{vSA}, v{vSA}, v{vSA+2}')
    I(f'v_add_f32 v{vSA+1}, v{vSA+1}, v{vSA+3}')
    for u in range(5):
        I(f'v_add_f32 v{vCA+2*u}, v{vCA+2*u}, v{vCA+2*u+1}')
    I(f's_lshl_b32 s{sT}, s{sRT}, 8')
    I(f's_add_u32 s{sT}, s{sT}, {RS_LDS}')
    I(f'v_lshlrev_b32 v{vT0}, 3, v{vTok}')
    I(f'v_add_u32 v{vT0}, s{sT}, v{vT0}')
    I(f's_lshl_b32 s{sT}, s{sG}, 10')
    I(f'v_add_u32 v{vT1}, s{sT}, v{vT0}')
    I(f'ds_write_b64 v{vT1}, {vr(vSA,2)}')
    I(f's_and_b32 s{sT}, s{sWave}, 3')
    I(f's_mul_i32 s{sT}, s{sT}, 1280')
    I(f's_add_u32 s{sT}, s{sT}, {CSP_LDS}')
    I(f's_lshl_b32 s{sT2}, s{sG}, 9')
    I(f's_add_u32 s{sT2}, s{sT2}, s{sT}')
    I(f'v_lshlrev_b32 v{vT1}, 2, v{vTok}')
    I(f'v_add_u32 v{vT2}, s{sT2}, v{vT1}')
    for i in range(4):
        I(f'ds_write_b32 v{vT2}, v{vCA+2*i} offset:{128*i}')
    I(f's_lshl_b32 s{sT2}, s{sG}, 7')
    I(f's_add_u32 s{sT2}, s{sT2}, s{sT}')
    I(f'v_add_u32 v{vT2}, s{sT2}, v{vT1}')
    I(f'ds_write_b32 v{vT2}, v{vCA+8} offset:1024')
    I('s_waitcnt lgkmcnt(0)')
    I('s_barrier')
    I(f'ds_read_b64 {vr(vSA,2)}, v{vT0}')
    I(f'ds_read_b64 {vr(vSA+2,2)}, v{vT0} offset:1024')
    I(f'v_lshlrev_b32 v{vT3}, 2, v{vT3}')
    I(f'v_min_u32 v{vT3}, {319*4}, v{vT3}')
    for q in range(4):
        I(f'ds_read_b32 v{vCA+q}, v{vT3} offset:{CSP_LDS+1280*q}')
    I('s_waitcnt lgkmcnt(4)')
    vNM, vR = vCT, vCT + 2
    I(f'v_add_f32 v{vSA}, v{vSA}, v{vSA+2}')
    I(f'v_add_f32 v{vSA+1}, v{vSA+1}, v{vSA+3}')
    I(f'v_mul_f32 v{vSA}, 0x{f2u(1.0/640):08x}, v{vSA}')
    I(f'v_mul_f32 v{vSA+1}, 0x{f2u(1.0/640):08x}, v{vSA+1}')
    I(f'v_fma_f32 v{vSA+1}, -v{vSA}, v{vSA}, v{vSA+1}')
    I(f'v_max_f32 v{vSA+1}, 0, v{vSA+1}')
    I(f'v_cvt_pk_bf16_f32 v{vSA+2}, v{vSA+1}, -v{vSA}')
    I(f'v_and_b32 v{vNM}, 0xffff0000, v{vSA+2}')
    I(f'v_lshlrev_b32 v{vSA+2}, 16, v{vSA+2}')
    I(f'v_add_f32 v{vSA+2}, 0x{f2u(1e-5):08x}, v{vSA+2}')
    I(f'v_cvt_pk_bf16_f32 v{vSA+2}, v{vSA+2}, v{vSA+2}')
    I(f'v_lshlrev_b32 v{vSA+2}, 16, v{vSA+2}')
    I(f'v_sqrt_f32 v{vSA+2}, v{vSA+2}')
    I(f'v_cvt_pk_bf16_f32 v{vSA+2}, v{vSA+2}, v{vSA+2}')
    I(f'v_lshlrev_b32 v{vSA+2}, 16, v{vSA+2}')
    I(f'v_rcp_f32 v{vR}, v{vSA+2}')
    I('s_waitcnt lgkmcnt(0)')
    I(f'v_add_f32 v{vCA}, v{vCA}, v{vCA+1}')
    I(f'v_add_f32 v{vCA+2}, v{vCA+2}, v{vCA+3}')
    I(f'v_add_f32 v{vCA}, v{vCA}, v{vCA+2}')
    I(f'ds_write_b32 v{vT3}, v{vCA} offset:{CS_LDS}')
    I(f's_lshl_b32 s{sT}, s{sRT}, 7')
    I(f'v_add_u32 v{vT1}, s{sT}, v{vT1}')
    I(f'ds_write_b32 v{vT1}, v{vNM} offset:{NM_LDS}')
    I(f'ds_write_b32 v{vT1}, v{vR} offset:{RR_LDS}')
    I(f's_lshl_b32 s{sT}, s{sG}, 9')
    I(f'v_lshlrev_b32 v{vT0}, 4, v{vHk}')
    I(f'v_add_u32 v{vT2}, s{sT}, v{vT0}')
    I(f's_lshl_b32 s{sT}, s{sG}, 7')
    I(f'v_add_u32 v{vT0}, s{sT}, v{vT0}')
    I('s_waitcnt lgkmcnt(0)')
    I('s_barrier')
    CSR = [FR[0], FR[0] + 16, FR[0] + 32]
    PK = vWB[0][0]
    def rd_cs(i, dst):
        for rq in range(4):
            if i < 4:
                I(f'ds_read_b128 {vr(dst+4*rq)}, v{vT2} offset:{CS_LDS+128*i+32*rq}')
            else:
                I(f'ds_read_b128 {vr(dst+4*rq)}, v{vT0} offset:{CS_LDS+1024+32*rq}')
    def fix(i, cs):
        for r in range(0, 16, 2):
            A = vr(ACC + 16 * i + r, 2)
            I(f'v_pk_fma_f32 {A}, {vr(cs+r,2)}, {vr(vNM,2)}, {A} op_sel_hi:[1,0,1]')
    I(f's_cmp_ge_u32 s{sType}, 2')
    I(f's_cbranch_scc1 {name}_epQK')
    rd_cs(0, CSR[0]); rd_cs(1, CSR[1])
    I(f's_mul_i32 s{sT}, s{sTile}, {AREC}')
    I(f's_lshl_b32 s{sT2}, s{sCG}, 13')
    I(f's_add_u32 s{sT}, s{sT}, s{sT2}')
    I(f's_lshl_b32 s{sT2}, s{sG}, 12')
    I(f's_add_u32 s{sT}, s{sT}, s{sT2}')
    I(f's_add_u32 s{sT}, s{sT}, {AF_OFF + 40*1024}')
    vR2 = vCT + 4
    I(f'v_mul_f32 v{vR2}, v{vR}, v{vR}')
    for i in range(4):
        I(f's_waitcnt lgkmcnt({4 if i < 3 else 0})' if i != 2 else 's_waitcnt lgkmcnt(4)')
        fix(i, CSR[i & 1])
        if i + 2 < 4:
            rd_cs(i + 2, CSR[i & 1])
        A = ACC + 16 * i
        for r in range(8):
            I(f'v_max_f32 v{A+r}, 0, v{A+r}')
        for r in range(0, 8, 2):
            I(f'v_pk_mul_f32 {vr(A+8+r,2)}, {vr(A+8+r,2)}, {vr(vR2,2)} op_sel_hi:[1,0]')
        for r in range(0, 8, 2):
            I(f'v_pk_mul_f32 {vr(A+r,2)}, {vr(A+r,2)}, {vr(A+8+r,2)}')
        P = PK + 4 * (i & 1)
        for r in range(4):
            I(f'v_cvt_pk_bf16_f32 v{P+r}, v{A+2*r}, v{A+2*r+1}')
        I(f'buffer_store_dwordx4 {vr(P)}, v{vLane16}, {srd(sWS)}, s{sT} offen offset:{1024*i}')
    I(f's_cmp_eq_u32 s{sType}, 1')
    I(f's_cbranch_scc1 {name}_fin')
    I(f's_lshl_b32 s{sT}, s{sRT}, 7')
    I(f'v_lshlrev_b32 v{vT1}, 4, v{vHk}')
    I(f'v_add_u32 v{vT1}, s{sT}, v{vT1}')
    for rq in range(4):
        I(f'ds_read_b128 {vr(CSR[0]+4*rq)}, v{vT1} offset:{NM_LDS+32*rq}')
    for rq in range(4):
        I(f'ds_read_b128 {vr(CSR[1]+4*rq)}, v{vT1} offset:{RR_LDS+32*rq}')
    I(f's_lshl_b32 s{sT}, s{sG}, 7')
    I(f'v_lshlrev_b32 v{vT1}, 2, v{vTok}')
    I(f'v_add_u32 v{vT1}, s{sT}, v{vT1}')
    I(f'ds_read_b32 v{vCA}, v{vT1} offset:{CS_LDS+1024}')
    I(f's_lshl_b32 s{sT}, s{sCG}, 6')
    I(f's_lshl_b32 s{sT2}, s{sG}, 5')
    I(f's_add_u32 s{sT}, s{sT}, s{sT2}')
    I(f'v_add_u32 v{vT0}, s{sT}, v{vTok}')
    I(f'v_mul_u32_u24 v{vT1}, 3277, v{vT0}')
    I(f'v_lshrrev_b32 v{vT1}, 16, v{vT1}')
    I(f'v_mul_u32_u24 v{vT2}, 20, v{vT1}')
    I(f'v_sub_u32 v{vT0}, v{vT0}, v{vT2}')
    I(f's_mov_b32 s{sT}, {NT*KVREC}')
    I(f'v_mul_lo_u32 v{vT1}, v{vT1}, s{sT}')
    I(f'v_mul_u32_u24 v{vT2}, 320, v{vHk}')
    I(f'v_lshl_add_u32 v{vT2}, v{vT0}, 4, v{vT2}')
    I(f'v_cmp_eq_u32 vcc, 0, v{vT2}')
    I(f'v_add_u32 v{vT2}, v{vT2}, v{vT1}')
    I(f's_mul_i32 s{sT}, s{sTile}, {KVREC}')
    I(f's_add_u32 s{sT}, s{sT}, {KV_OFF}')
    A = ACC + 64
    I('s_waitcnt lgkmcnt(0)')
    for r in range(0, 16, 2):
        I(f'v_pk_fma_f32 {vr(A+r,2)}, {vr(CSR[0]+r,2)}, {vr(vCA,2)}, {vr(A+r,2)} op_sel_hi:[1,0,1]')
    for r in range(0, 16, 2):
        I(f'v_pk_mul_f32 {vr(A+r,2)}, {vr(A+r,2)}, {vr(CSR[1]+r,2)}')
    P = PK + 8
    for r in range(8):
        I(f'v_cvt_pk_bf16_f32 v{P+r}, v{A+2*r}, v{A+2*r+1}')
    I(f'buffer_store_dwordx4 {vr(P)}, v{vT2}, {srd(sWS)}, s{sT} offen offset:1280')
    I(f'buffer_store_dwordx4 {vr(P+4)}, v{vT2}, {srd(sWS)}, s{sT} offen offset:1920')
    for r in range(4):
        I(f'v_mov_b32 v{CSR[2]+r}, 0x3f803f80')
        I(f'v_mov_b32 v{CSR[2]+4+r}, 0')
    I(f's_and_saveexec_b64 s[{sT2+20}:{sT2+21}], vcc')
    I(f's_cbranch_execz {name}_noones')
    I(f'buffer_store_dwordx4 {vr(CSR[2])}, v{vT2}, {srd(sWS)}, s{sT} offen offset:2560')
    I(f'buffer_store_dwordx4 {vr(CSR[2]+4)}, v{vT2}, {srd(sWS)}, s{sT} offen offset:2576')
    a.label(f'{name}_noones')
    I('s_mov_b64 exec, -1')
    I(f's_branch {name}_fin')
    a.label(f'{name}_epQK')
    rd_cs(0, CSR[0]); rd_cs(1, CSR[1])
    sREC, sBase, sHS = 56, 57, 58
    I(f's_cmp_eq_u32 s{sType}, 3')
    I(f's_movk_i32 s{sREC}, {QREC}')
    I(f's_cselect_b32 s{sREC}, {KVREC}, s{sREC}')
    I(f's_cselect_b32 s{sBase}, {KV_OFF}, {QF_OFF}')
    I(f's_cselect_b32 s{sT}, 1.0, 0x{f2u(QSCALE):08x}')
    I(f'v_mul_f32 v{vR}, s{sT}, v{vR}')
    I(f's_lshl_b32 s{sHS}, s{sREC}, 6')
    I(f's_mul_i32 s{sT}, s{sTile}, s{sREC}')
    I(f's_add_u32 s{sBase}, s{sBase}, s{sT}')
    I(f's_and_b32 s{sT}, s{sCG}, 1')
    I(f's_lshl_b32 s{sT}, s{sT}, 4')
    I(f's_mul_i32 s{sT}, s{sT}, s{sHS}')
    I(f's_add_u32 s{sBase}, s{sBase}, s{sT}')
    vPat = [vEP + p for p in range(5)]
    t16, t8 = vEP + 5, vEP + 6
    I(f'v_lshlrev_b32 v{t16}, 4, v{vTok}')
    I(f'v_lshlrev_b32 v{t8}, 3, v{vTok}')
    I(f'v_add_u32 v{t8}, 1024, v{t8}')
    I(f'v_lshl_add_u32 v{vPat[0]}, v{vHk}, 3, v{t16}')
    I(f'v_add_u32 v{vPat[1]}, 512, v{vPat[0]}')
    I(f'v_add_u32 v{vT1}, s{sHS}, v{t16}')
    I(f'v_cndmask_b32 v{vPat[2]}, v{vT1}, v{t8}, s[{sLo}:{sLo+1}]')
    I(f'v_mul_u32_u24 v{vT1}, 504, v{vHk}')
    I(f'v_add3_u32 v{vPat[3]}, v{t16}, v{vT1}, 8')
    I(f'v_add_u32 v{vT1}, 520, v{t16}')
    I(f'v_cndmask_b32 v{vPat[4]}, v{t8}, v{vT1}, s[{sLo}:{sLo+1}]')
    KNV = vEP + 8
    I(f's_cmp_eq_u32 s{sG}, 1')
    I(f's_cbranch_scc1 {name}_epQK1')
    for g in range(2):
        if g == 1:
            a.label(f'{name}_epQK1')
        for i in range(5):
            b = 4 * g + i if i < 4 else 8 + g
            I(f's_waitcnt lgkmcnt({4 if i < 4 else 0})')
            fix(i, CSR[i & 1])
            if i + 2 < 5:
                rd_cs(i + 2, CSR[i & 1])
            A = ACC + 16 * i
            for r in range(0, 16, 2):
                I(f'v_pk_mul_f32 {vr(A+r,2)}, {vr(A+r,2)}, {vr(vR,2)} op_sel_hi:[1,0]')
            P = A
            for r in range(8):
                I(f'v_cvt_pk_bf16_f32 v{A+r}, v{A+2*r}, v{A+2*r+1}')
            for rq in range(4):
                G0 = 8 * b + 2 * rq
                I(f's_mul_i32 s{sT}, s{sHS}, {G0 // 5}')
                I(f's_add_u32 s{sT}, s{sT}, s{sBase}')
                I(f'buffer_store_dwordx2 {vr(A+2*rq,2)}, v{vPat[(G0 // 2) % 5]}, {srd(sWS)}, s{sT} offen')
        if g == 0:
            I(f's_branch {name}_epQKn')
    a.label(f'{name}_epQKn')
    I(f's_cmp_eq_u32 s{sType}, 2')
    I(f's_cbranch_scc1 {name}_fin')
    for i in range(5):
        for rq in range(4):
            n = KNV + 4 * i + rq
            A = ACC + 16 * i + 2 * rq
            I(f'v_mov_b32 v{n}, 0')
    for h in range(2):
        for i in range(5):
            for rq in range(4):
                n = KNV + 4 * i + rq
                A = ACC + 16 * i + 2 * rq + h
                I(f'v_dot2c_f32_bf16 v{n}, v{A}, v{A}')
    for d in ('quad_perm:[1,0,3,2]', 'quad_perm:[2,3,0,1]', 'row_half_mirror', 'row_mirror'):
        for k in range(20):
            I(f'v_max_f32_dpp v{KNV+k}, v{KNV+k}, v{KNV+k} {d} row_mask:0xf bank_mask:0xf')
    T2 = FR[0]
    for k in range(20):
        I(f'v_mov_b32 v{T2+k}, v{KNV+k}')
    for k in range(20):
        I(f'v_permlane16_swap_b32 v{T2+k}, v{KNV+k}')
    for k in range(20):
        I(f'v_max_f32 v{KNV+k}, v{KNV+k}, v{T2+k}')
    for k in range(1, 20):
        I(f'v_cmp_eq_u32 vcc, {k}, v{vTok}')
        I(f'v_cndmask_b32 v{KNV}, v{KNV}, v{KNV+k}, vcc')
    I(f'v_lshrrev_b32 v{vT0}, 2, v{vTok}')
    I(f's_lshl_b32 s{sT}, s{sG}, 2')
    I(f'v_add_u32 v{vT0}, s{sT}, v{vT0}')
    I(f's_add_u32 s{sT}, s{sG}, 8')
    I(f'v_mov_b32 v{vT1}, s{sT}')
    I(f'v_cmp_gt_u32 vcc, 16, v{vTok}')
    I(f'v_cndmask_b32 v{vT0}, v{vT1}, v{vT0}, vcc')
    I(f'v_and_b32 v{vT1}, 3, v{vTok}')
    I(f'v_lshlrev_b32 v{vT1}, 1, v{vT1}')
    I(f'v_lshl_add_u32 v{vT0}, v{vT0}, 3, v{vT1}')
    I(f'v_add_u32 v{vT0}, v{vT0}, v{vHk}')
    I(f'v_lshlrev_b32 v{vT0}, 8, v{vT0}')
    I(f's_and_b32 s{sT}, s{sCG}, 1')
    I(f's_mul_i32 s{sT}, s{sT}, {80*256}')
    I(f's_lshl_b32 s{sT2}, s{sTile}, 2')
    I(f's_add_u32 s{sT}, s{sT}, s{sT2}')
    I(f's_add_u32 s{sT}, s{sT}, {KN_OFF}')
    I(f's_mov_b32 exec_lo, 0xfffff')
    I(f's_mov_b32 exec_hi, 0xfffff')
    I(f'buffer_store_dword v{KNV}, v{vT0}, {srd(sWS)}, s{sT} offen')
    I('s_mov_b64 exec, -1')
    a.label(f'{name}_fin')
    st.end(sWave, 4, 5)
    a.label(f'{name}_end')
    I('s_endpgm')
    return a
```

```python
from asmlib import Asm
from layout import *
from stamp import Stamps

def gen_gemm2(name, mode='full', NSL=6, stamps=False, kidx=2, a=None, entry=True, wave_base=0, lds_base=0, flagsync=False):
    if a is None:
        a = Asm()
    I = a.I
    st = Stamps(a, stamps, kidx)
    SLOT = 6144
    RING = NSL * SLOT
    if mode == 'full': i0, n_it, sw = 0, 34, 10
    elif mode == 'down': i0, n_it, sw = 10, 24, None
    else: i0, n_it, sw = 0, 10, None
    assert n_it % 2 == 0
    vLane16, vTr, vTrC, vAr, vArC, vT0, vT1, vT2 = 1, 2, 3, 4, 5, 6, 7, 8
    vSrc = [9, 10, 11, 12, 13]
    vX = 14
    vB2 = 24
    FR = [36, 60]
    ACC = 84
    def Wf(s, u): return FR[s] + 4 * u
    def Af(s): return FR[s] + 20
    def vr(b, n=4): return f'v[{b}:{b+n-1}]'
    sWS, sW, sW2 = 8, 12, 16
    sX, sO = 20, 24
    sWave, sRT, sCG, sAoff, sWoff, sSlot, sIt, sM0, sRd, sLds, sT = 3, 28, 29, 30, 31, 32, 33, 34, 35, 36, 37
    srdWS, srdW = f's[{sWS}:{sWS+3}]', f's[{sW}:{sW+3}]'
    if entry:
        a.label(name)
        I('s_cmp_ge_u32 s2, 256')
        I(f's_cbranch_scc1 {name}_end')
    st.start()
    I(f's_load_dwordx2 s[{sWS}:{sWS+1}], s[0:1], {KA_WS}')
    I(f's_load_dwordx2 s[{sW}:{sW+1}], s[0:1], {KA_WD if mode == "down" else KA_WO}')
    I(f's_load_dwordx2 s[{sW2}:{sW2+1}], s[0:1], {KA_WD}')
    I(f's_load_dwordx2 s[{sX}:{sX+1}], s[0:1], {KA_X}')
    I(f's_load_dwordx2 s[{sO}:{sO+1}], s[0:1], {KA_OUT}')
    I(f'v_lshrrev_b32 v{vT0}, 6, v0')
    I(f'v_and_b32 v{vT2}, 255, v0')
    I('v_and_b32 v0, 63, v0')
    I(f'v_readfirstlane_b32 s{sWave}, v{vT0}')
    I('s_and_b32 s6, s2, 7')
    I('s_lshr_b32 s7, s2, 3')
    I(f's_and_b32 s{sRT}, s7, 15')
    I(f's_lshr_b32 s{sT}, s6, 1')
    I(f's_lshl_b32 s{sT}, s{sT}, 4')
    I(f's_add_u32 s{sRT}, s{sRT}, s{sT}')
    I(f's_lshr_b32 s{sCG}, s7, 4')
    I('s_and_b32 s6, s6, 1')
    I('s_lshl_b32 s6, s6, 1')
    I(f's_add_u32 s{sCG}, s{sCG}, s6')
    if wave_base:
        I(f's_sub_u32 s{sWave}, s{sWave}, {wave_base}')
    I(f'v_lshlrev_b32 v{vLane16}, 4, v0')
    imm = [1024, 2048, 3072, 0, 1024]
    for j in range(5):
        c = vSrc[j]
        I(f'v_add_u32 v{vT0}, {64*j}, v0')
        I(f'v_mul_u32_u24 v{vT1}, 3277, v{vT0}')
        I(f'v_lshrrev_b32 v{vT1}, 16, v{vT1}')
        I(f'v_mul_u32_u24 v{c}, {1280 - 320}, v{vT1}')
        I(f'v_lshl_add_u32 v{c}, v{vT0}, 4, v{c}')
        if imm[j] and j > 0:
            I(f'v_subrev_u32 v{c}, {imm[j]}, v{c}')
    I(f's_mul_i32 s{sLds}, s{sWave}, {RING}')
    if lds_base:
        I(f's_add_u32 s{sLds}, s{sLds}, {lds_base}')
    I(f's_mul_i32 s{sAoff}, s{sRT}, {AREC}')
    I(f's_lshl_b32 s{sT}, s{sWave}, 10')
    I(f's_add_u32 s{sAoff}, s{sAoff}, s{sT}')
    I(f's_add_u32 s{sAoff}, s{sAoff}, {AF_OFF + 4096 * i0}')
    I(f's_mul_i32 s{sWoff}, s{sWave}, {16*1280}')
    I(f's_mul_i32 s{sT}, s{sCG}, 320')
    I(f's_add_u32 s{sWoff}, s{sWoff}, s{sT}')
    I(f's_mov_b32 s38, s{sWoff}')
    I(f's_mov_b32 s{sWS+2}, {WS_SIZE}')
    I(f's_mov_b32 s{sWS+3}, 0x20000')
    I(f's_mov_b32 s{sW+2}, {F*D*2 if mode == "down" else D*D*2}')
    I(f's_mov_b32 s{sW+3}, 0x20000')
    I(f's_mov_b32 s{sX+2}, {S*D*2}')
    I(f's_mov_b32 s{sX+3}, 0x20000')
    I(f's_mov_b32 s{sO+2}, {S*D*2}')
    I(f's_mov_b32 s{sO+3}, 0x20000')
    I(f's_mov_b32 s39, {WS_SIZE}')
    I(f'v_lshrrev_b32 v{vT0}, 5, v0')
    I(f'v_bfe_u32 v{vT1}, v0, 2, 2')
    I(f'v_lshl_add_u32 v{vT0}, v{vT0}, 2, v{vT1}')
    I(f'v_mul_u32_u24 v{vTrC}, 320, v{vT0}')
    I(f'v_bfe_u32 v{vT0}, v0, 4, 1')
    I(f'v_lshl_add_u32 v{vTrC}, v{vT0}, 5, v{vTrC}')
    I(f'v_and_b32 v{vT0}, 3, v0')
    I(f'v_lshl_add_u32 v{vTrC}, v{vT0}, 3, v{vTrC}')
    I(f'v_add_u32 v{vTrC}, 1024, v{vTrC}')
    I(f's_mov_b32 s{sIt}, 0')
    I(f's_mov_b32 s{sSlot}, s{sLds}')
    I(f's_mov_b32 s{sRd}, s{sLds}')
    I(f's_add_u32 s40, s{sLds}, {RING}')
    I('s_waitcnt lgkmcnt(0)')

    def dma():
        if sw is not None:
            I(f's_cmp_eq_u32 s{sIt}, {sw}')
            I(f's_cselect_b32 s{sW}, s{sW2}, s{sW}')
            I(f's_cselect_b32 s{sW+1}, s{sW2+1}, s{sW+1}')
            I(f's_cselect_b32 s{sW+2}, {F*D*2}, s{sW+2}')
            I(f's_cselect_b32 s{sWoff}, s38, s{sWoff}')
        I(f's_cmp_ge_u32 s{sIt}, {n_it}')
        I(f's_cselect_b32 s{sW+2}, 0, s{sW+2}')
        I(f's_cselect_b32 s{sWS+2}, 0, s{sWS+2}')
        I(f's_mov_b32 m0, s{sSlot}')
        I(f's_add_u32 s{sM0}, s{sSlot}, 1024')
        I(f'buffer_load_dwordx4 v{vLane16}, {srdWS}, s{sAoff} offen lds')
        I(f's_mov_b32 m0, s{sM0}')
        I(f's_add_u32 s{sM0}, s{sSlot}, 4096')
        I(f'buffer_load_dwordx4 v{vSrc[0]}, {srdW}, s{sWoff} offen lds')
        I(f's_mov_b32 m0, s{sSlot}')
        I(f's_add_u32 s{sAoff}, s{sAoff}, 4096')
        I(f'buffer_load_dwordx4 v{vSrc[1]}, {srdW}, s{sWoff} offen offset:2048 lds')
        I(f'buffer_load_dwordx4 v{vSrc[2]}, {srdW}, s{sWoff} offen offset:3072 lds')
        I(f's_mov_b32 m0, s{sM0}')
        I(f's_add_u32 s{sSlot}, s{sSlot}, {SLOT}')
        I(f'buffer_load_dwordx4 v{vSrc[3]}, {srdW}, s{sWoff} offen lds')
        I(f'buffer_load_dwordx4 v{vSrc[4]}, {srdW}, s{sWoff} offen offset:1024 lds')
        I(f's_add_u32 s{sWoff}, s{sWoff}, {64*1280}')
        I(f's_cmp_eq_u32 s{sSlot}, s40')
        I(f's_cselect_b32 s{sSlot}, s{sLds}, s{sSlot}')
        I(f's_add_u32 s{sIt}, s{sIt}, 1')
    def setrd():
        I(f'v_add_u32 v{vTr}, s{sRd}, v{vTrC}')
        I(f'v_add_u32 v{vAr}, s{sRd}, v{vLane16}')
        I(f's_add_u32 s{sRd}, s{sRd}, {SLOT}')
        I(f's_cmp_eq_u32 s{sRd}, s40')
        I(f's_cselect_b32 s{sRd}, s{sLds}, s{sRd}')
    def rdW(s, u):
        return [f'ds_read_b64_tr_b16 {vr(Wf(s,u),2)}, v{vTr} offset:{64*u}',
                f'ds_read_b64_tr_b16 {vr(Wf(s,u)+2,2)}, v{vTr} offset:{64*u+2560}']
    def rdA(s): return f'ds_read_b128 {vr(Af(s))}, v{vAr}'

    for i in range(NSL):
        dma()
    I(f'v_lshrrev_b32 v{vT0}, 3, v{vT2}')
    I(f'v_and_b32 v{vT1}, 7, v{vT2}')
    I(f'v_mul_u32_u24 v{vT0}, 1280, v{vT0}')
    I(f'v_mul_u32_u24 v{vT1}, 40, v{vT1}')
    I(f'v_add_u32 v{vArC}, v{vT0}, v{vT1}')
    I(f's_mul_i32 s41, s{sRT}, {32*1280}')
    I(f's_mul_i32 s{sT}, s{sCG}, 320')
    I(f's_add_u32 s41, s41, s{sT}')
    nx = 0
    if mode != 'down':
        I(f'buffer_load_dwordx4 {vr(vX)}, v{vArC}, s[{sX}:{sX+3}], s41 offen')
        I(f'buffer_load_dwordx4 {vr(vX+4)}, v{vArC}, s[{sX}:{sX+3}], s41 offen offset:16')
        I(f'buffer_load_dwordx2 {vr(vX+8,2)}, v{vArC}, s[{sX}:{sX+3}], s41 offen offset:32')
        nx += 3
    I(f's_add_u32 s42, s41, {BD_OFF}')
    if mode == 'wo':
        I(f's_mov_b32 s44, s{sWS}'); I(f's_mov_b32 s45, s{sWS+1}'); I(f's_mov_b32 s46, {WS_SIZE}'); I('s_mov_b32 s47, 0x20000')
        I(f'buffer_load_dwordx4 {vr(vB2)}, v{vArC}, s[44:47], s42 offen')
        I(f'buffer_load_dwordx4 {vr(vB2+4)}, v{vArC}, s[44:47], s42 offen offset:16')
        I(f'buffer_load_dwordx2 {vr(vB2+8,2)}, v{vArC}, s[44:47], s42 offen offset:32')
        nx += 3
    for r in range(80):
        I(f'v_mov_b32 v{ACC+r}, 0')
    setrd()
    I(f's_waitcnt vmcnt({6*(NSL-1)+nx})')
    st.mark()
    I(rdA(0))
    for u in range(5):
        for x in rdW(0, u): I(x)
    I(f's_mov_b32 s43, {n_it // 2}')
    a.I('.p2align 3')
    a.label(f'{name}_loop')
    for s in range(2):
        setrd()
        I('s_waitcnt lgkmcnt(0)')
        dma()
        I(f's_waitcnt vmcnt({6*(NSL-1)})')
        I(rdA(1 - s))
        for u in range(5):
            I(f'v_mfma_f32_32x32x16_bf16 {vr(ACC+16*u,16)}, {vr(Wf(s,u))}, {vr(Af(s))}, {vr(ACC+16*u,16)}')
            for x in rdW(1 - s, u): I(x)
    I('s_sub_u32 s43, s43, 1')
    I('s_cmp_lg_u32 s43, 0')
    I(f's_cbranch_scc1 {name}_loop')
    st.mark()
    I('s_waitcnt vmcnt(0) lgkmcnt(0)')
    I(f'v_and_b32 v{vT0}, 31, v0')
    I(f'v_mul_u32_u24 v{vT0}, 656, v{vT0}')
    I(f'v_lshrrev_b32 v{vT1}, 5, v0')
    I(f'v_lshl_add_u32 v{vT0}, v{vT1}, 4, v{vT0}')
    I(f'v_add_u32 v{vT0}, s{sLds}, v{vT0}')
    for u in range(5):
        for rq in range(4):
            I(f'ds_write_b128 v{vT0}, {vr(ACC+16*u+4*rq)} offset:{128*u+32*rq}')
    I(f'v_lshrrev_b32 v{vT0}, 3, v{vT2}')
    I(f'v_and_b32 v{vT1}, 7, v{vT2}')
    I(f'v_mul_u32_u24 v{vT0}, 656, v{vT0}')
    I(f'v_mul_u32_u24 v{vT1}, 80, v{vT1}')
    I(f'v_add_u32 v{vT0}, v{vT0}, v{vT1}')
    if lds_base:
        I(f'v_add_u32 v{vT0}, {lds_base}, v{vT0}')
    I(f'v_add_u32 v{vT1}, {2*RING}, v{vT0}')
    I('s_waitcnt lgkmcnt(0)')
    I('s_barrier')
    for w in range(4):
        for j in range(5):
            I(f'ds_read_b128 {vr(ACC+20*w+4*j)}, v{vT0 if w < 2 else vT1} offset:{(w&1)*RING+16*j}')
    R = ACC
    I('s_waitcnt lgkmcnt(10)')
    for r in range(0, 20, 2):
        I(f'v_pk_add_f32 {vr(R+r,2)}, {vr(R+r,2)}, {vr(R+20+r,2)}')
    I('s_waitcnt lgkmcnt(0)')
    for r in range(0, 20, 2):
        I(f'v_pk_add_f32 {vr(R+40+r,2)}, {vr(R+40+r,2)}, {vr(R+60+r,2)}')
    for r in range(0, 20, 2):
        I(f'v_pk_add_f32 {vr(R+r,2)}, {vr(R+r,2)}, {vr(R+40+r,2)}')
    U = R + 20
    def unpack(src, dst):
        for k in range(10):
            I(f'v_lshlrev_b32 v{dst+2*k}, 16, v{src+k}')
            I(f'v_and_b32 v{dst+2*k+1}, 0xffff0000, v{src+k}')
    def pack(src, dst):
        for k in range(10):
            I(f'v_cvt_pk_bf16_f32 v{dst+k}, v{src+2*k}, v{src+2*k+1}')
    def add(dst, src):
        for r in range(0, 20, 2):
            I(f'v_pk_add_f32 {vr(dst+r,2)}, {vr(dst+r,2)}, {vr(src+r,2)}')
    P = R + 60
    if mode == 'full':
        unpack(vX, U); add(R, U)
    elif mode == 'wo':
        pack(R, P); unpack(P, R); unpack(vX, U); add(R, U); pack(R, P); unpack(P, R); unpack(vB2, U); add(R, U)
    pack(R, P)
    if mode == 'down':
        I(f's_mov_b32 s{sWS+2}, s39')
        d, so = srdWS, 's42'
    else:
        d, so = f's[{sO}:{sO+3}]', 's41'
    I(f'buffer_store_dwordx4 {vr(P)}, v{vArC}, {d}, {so} offen')
    I(f'buffer_store_dwordx4 {vr(P+4)}, v{vArC}, {d}, {so} offen offset:16')
    I(f'buffer_store_dwordx2 {vr(P+8,2)}, v{vArC}, {d}, {so} offen offset:32')
    st.end(sWave, 4, 5)
    if entry:
        a.label(f'{name}_end')
        I('s_endpgm')
    return a
```

```python
S, D, H, DH, F = 2048, 640, 32, 20, 1536
NT = S // 32
QREC, KVREC = 1280, 2688
QF_OFF = 0
KV_OFF = QF_OFF + H * NT * QREC
KN_OFF = KV_OFF + H * NT * KVREC
AF_OFF = KN_OFF + 0x10000
AKS = 136
AREC = AKS * 1024
BD_OFF = AF_OFF + NT * AREC
WF_OFF = BD_OFF
WS_END = WF_OFF + 20 * AREC
WS_SIZE = WS_END
KA_X, KA_WQKV, KA_WO, KA_BX, KA_WG, KA_WU, KA_WD, KA_OUT, KA_DBG, KA_WS = [8 * i for i in range(10)]
QSCALE = (DH ** -0.5) * 1.4426950408889634
STAMP_OFF = 0x1400000
STAMP_KSTRIDE = 0x40000
```

```python
from layout import *
class Stamps:
    def __init__(self, a, on, kidx):
        self.a, self.on, self.k, self.n = a, on, kidx, 0
    def start(self):
        if not self.on: return
        self.a.I('s_memrealtime s[80:81]')
        self.a.I('s_memtime s[82:83]')
        self.n = 0
    def mark(self):
        if not self.on: return
        r = 84 + 2 * self.n
        self.a.I(f's_memtime s[{r}:{r+1}]')
        self.a.I('s_waitcnt lgkmcnt(0)')
        self.n += 1
        assert self.n <= 6
    def end(self, wave_sgpr, v0, v1):
        if not self.on: return
        I = self.a.I
        I('s_waitcnt vmcnt(0) lgkmcnt(0)')
        I('s_memtime s[96:97]')
        I('s_memrealtime s[98:99]')
        I(f's_load_dwordx2 s[76:77], s[0:1], {KA_WS}')
        I('s_waitcnt lgkmcnt(0)')
        I('s_mov_b32 s78, 0x10000000')
        I('s_mov_b32 s79, 0x20000')
        I(f's_lshl_b32 s75, s2, 3')
        I(f's_add_u32 s75, s75, s{wave_sgpr}')
        I(f's_lshl_b32 s75, s75, 6')
        I(f's_add_u32 s75, s75, {STAMP_OFF + self.k * STAMP_KSTRIDE}')
        I(f'v_mov_b32 v{v1}, 0')
        vals = [80, 98, 82] + [84 + 2 * i for i in range(self.n)] + [96]
        I('s_mov_b64 exec, 1')
        for i, s in enumerate(vals):
            I(f'v_mov_b32 v{v0}, s{s}')
            I(f'buffer_store_dword v{v0}, v{v1}, s[76:79], s75 offen offset:{4*i}')
            I('s_nop 1')
        I(f'v_mov_b32 v{v0}, {len(vals)}')
        I(f'buffer_store_dword v{v0}, v{v1}, s[76:79], s75 offen offset:60')
```

```python
from build import assemble
from k_gemm1 import gen_gemm1, K1_LDS
from k_attn import gen_attn
from k_gemm2 import gen_gemm2
import sys
st = len(sys.argv) > 1
out = 'full_st.s' if st else 'parallel_sum__softmax_full_mha__glu_gated_reglu__prompt.s'
assemble([('k1_kernel', gen_gemm1('k1_kernel', stamps=st), 256, 512, K1_LDS),
          ('attn_kernel', gen_attn('attn_kernel', stamps=st), 256, 256, 0),
          ('k3_kernel', gen_gemm2('k3_kernel', 'full', stamps=st), 256, 256, 6 * 6144 * 4)], out)
```

```python
def code_prefetch(a, l0, l1, wave_sgpr, nw, vlane16, vdst, squad, stmp, maxkb):
    I = a.I
    I(f's_getpc_b64 s[{squad}:{squad+1}]')
    lab = f'.Lpc_{l0}_{len(a.ins)}'
    a.I(lab + ':')
    I(f's_add_u32 s{squad}, s{squad}, {l0}-{lab}')
    I(f's_addc_u32 s{squad+1}, s{squad+1}, ({l0}-{lab})>>32')
    I(f's_mov_b32 s{squad+2}, {l1}-{l0}')
    I(f's_mov_b32 s{squad+3}, 0x20000')
    I(f's_lshl_b32 s{stmp}, s{wave_sgpr}, 10')
    n = (maxkb + nw - 1) // nw
    for i in range(n):
        if i:
            I(f's_add_u32 s{stmp}, s{stmp}, {nw*1024}')
        I(f'buffer_load_dwordx4 v[{vdst}:{vdst+3}], v{vlane16}, s[{squad}:{squad+3}], s{stmp} offen', tag='pf')
    return n
```

```python
from asmlib import Asm
from layout import *
from stamp import Stamps
import struct

def f2u(f): return struct.unpack('<I', struct.pack('<f', f))[0]

def gen_attn(name, NS=4, stamps=False, kidx=1, a=None, entry=True, bar=False):
    if a is None:
        a = Asm()
    I = a.I
    st = Stamps(a, stamps, kidx)
    vLane16, vTok8, vV0, vV1, vTmp, vTmp2, vTok16 = 1, 2, 3, 4, 5, 6, 7
    vKb = 22
    QA = [8, 16]; QB = [12, 20]
    S_ = [24, 40]
    P_ = [56, 64]
    O_ = [72, 88]
    KV0 = 104
    def KA(s): return KV0 + 14 * s
    def V0(s): return KV0 + 14 * s + 4
    def V1(s): return KV0 + 14 * s + 8
    def KB(s): return KV0 + 14 * s + 12
    vEND = KV0 + 14 * NS
    vM = [vEND, vEND + 1]
    sWS = 8
    sHead, sQT, sKV, sCnt, sKV0, sKmax, sFlag, sT = 12, 13, 14, 16, 17, 18, 19, 20
    sLo = 24
    sQ = 26
    def vr(b, n=4): return f'v[{b}:{b+n-1}]'
    def mfma(d, x, y, c=None):
        cc = vr(d, 16) if c is None else c
        return f'v_mfma_f32_32x32x16_bf16 {vr(d,16)}, {vr(x)}, {vr(y)}, {cc}'
    def mfma8(d, x, y):
        return f'v_mfma_f32_32x32x8bf16_1k {vr(d,16)}, {vr(x,2)}, {vr(y,2)}, {vr(d,16)}'
    srd = f's[{sWS}:{sWS+3}]'
    sP = 28

    if entry:
        a.label(name)
        I('s_cmp_ge_u32 s2, 256')
        I(f's_cbranch_scc1 {name}_end')
    st.start()
    I(f's_load_dwordx2 s[{sWS}:{sWS+1}], s[0:1], {KA_WS}')
    I(f'v_lshrrev_b32 v{vTmp}, 6, v0')
    I('v_and_b32 v0, 63, v0')
    I(f'v_readfirstlane_b32 s3, v{vTmp}')
    I(f's_and_b32 s6, s2, 7')
    I(f's_lshr_b32 s7, s2, 3')
    I(f's_lshr_b32 s{sHead}, s7, 3')
    I(f's_lshl_b32 s6, s6, 2')
    I(f's_add_u32 s{sHead}, s{sHead}, s6')
    I(f's_and_b32 s7, s7, 7')
    I(f's_lshl_b32 s{sQT}, s7, 3')
    I(f's_lshl_b32 s6, s3, 1')
    I(f's_add_u32 s{sQT}, s{sQT}, s6')
    I(f'v_lshlrev_b32 v{vLane16}, 4, v0')
    I(f'v_and_b32 v{vTmp}, 31, v0')
    I(f'v_lshlrev_b32 v{vTok8}, 3, v{vTmp}')
    I(f's_mul_i32 s{sKV0}, s{sHead}, {NT*KVREC}')
    I(f's_add_u32 s{sKV0}, s{sKV0}, {KV_OFF}')
    I(f's_lshl_b32 s{sQ}, s{sHead}, 6')
    I(f's_add_u32 s{sQ}, s{sQ}, s{sQT}')
    I(f's_mul_i32 s{sQ}, s{sQ}, {QREC}')
    I(f's_mul_i32 s{sT}, s{sHead}, {5*256}')
    I(f's_add_u32 s{sT}, s{sT}, {KN_OFF}')
    I(f'v_lshlrev_b32 v{vTmp2}, 2, v0')
    I(f's_mov_b32 s{sWS+2}, {WS_SIZE}')
    I(f's_mov_b32 s{sWS+3}, 0x20000')
    I(f'v_lshlrev_b32 v{vTok16}, 4, v{vTmp}')
    I('s_waitcnt lgkmcnt(0)')
    for q in range(2):
        I(f'buffer_load_dwordx4 {vr(QA[q])}, v{vLane16}, {srd}, s{sQ} offen offset:{q*QREC}')
        I(f'buffer_load_dwordx2 {vr(QB[q],2)}, v{vTok8}, {srd}, s{sQ} offen offset:{q*QREC+1024}')
    for g in range(5):
        I(f'buffer_load_dword v{S_[1]+g}, v{vTmp2}, {srd}, s{sT} offen offset:{g*256}')
    I(f'v_lshrrev_b32 v{vTmp2}, 5, v0')
    I(f'v_mul_u32_u24 v{vTmp2}, 320, v{vTmp2}')
    I(f'v_add_u32 v{vV0}, v{vTok16}, v{vTmp2}')
    I(f'v_and_b32 v{vTmp2}, 27, v0')
    I(f'v_cmp_eq_u32 vcc, 24, v{vTmp2}')
    I(f'v_mov_b32 v{vTmp2}, {1280+16}')
    I(f'v_mov_b32 v{vV1}, 1280')
    I(f'v_cndmask_b32 v{vTmp2}, v{vTmp2}, v{vV1}, vcc')
    I(f'v_cmp_gt_u32 vcc, 20, v{vTmp}')
    I(f'v_subrev_u32 v{vV1}, 640, v{vTmp2}')
    I(f'v_cndmask_b32 v{vV1}, v{vV1}, v{vV0}, vcc')
    I(f'v_cndmask_b32 v{vV0}, v{vTmp2}, v{vV0}, vcc')
    I(f's_mov_b32 s{sLo}, -1')
    I(f's_mov_b32 s{sLo+1}, 0')
    I(f's_mov_b32 s{sFlag}, 0')
    if bar:
        I('s_barrier')

    I(f'v_add_u32 v{vKb}, 1024, v{vTok8}')
    I(f'v_mov_b32 v{vTmp2}, 2560')
    I(f'v_cndmask_b32 v{vKb}, v{vTmp2}, v{vKb}, s[{sLo}:{sLo+1}]')
    sp = f's[{sP}:{sP+1}]'
    def ldKa(s, off): return f'global_load_dwordx4 {vr(KA(s))}, v{vLane16}, {sp} offset:{off}'
    def ldKb(s, off): return f'global_load_dwordx2 {vr(KB(s),2)}, v{vKb}, {sp if off == 0 else sp2}'
    def ldV0(s): return f'global_load_dwordx4 {vr(V0(s))}, v{vV0}, {sp} offset:1280'
    def ldV1(s): return f'global_load_dwordx4 {vr(V1(s))}, v{vV1}, {sp} offset:1920'
    sp2 = sp + f' offset:{KVREC - 1024}'
    I(f'v_subrev_u32 v{vKb}, 0, v{vKb}')
    def ldKb(s, off):
        return f'global_load_dwordx2 {vr(KB(s),2)}, v{vKb}, {sp} offset:{off}'
    adv = f's_add_u32 s{sP}, s{sP}, {KVREC}\ns_addc_u32 s{sP+1}, s{sP+1}, 0'
    setp = f's_add_u32 s{sP}, s{sWS}, s{sKV0}\ns_addc_u32 s{sP+1}, s{sWS+1}, 0'

    a.label(f'{name}_restart')
    I(setp)
    I(ldKa(0, 0)); I(ldKb(0, 0))
    for s in range(NS - 1):
        I(ldV0(s)); I(ldV1(s)); I(ldKa(s + 1, KVREC)); I(ldKb(s + 1, KVREC)); I(adv)
    nkv = 2 + 4 * (NS - 1)
    for q in range(2):
        for r in range(16):
            I(f'v_mov_b32 v{O_[q]+r}, 0')
    I(f's_mov_b32 s{sCnt}, {NT // NS}')
    I(f's_cmp_lg_u32 s{sFlag}, 0')
    I(f's_cbranch_scc1 {name}_haveq')
    I(f's_waitcnt vmcnt({nkv})')
    kn = S_[1]
    I(f'v_add_f32 v{kn}, v{kn}, v{kn+1}')
    I(f'v_add_f32 v{kn+2}, v{kn+2}, v{kn+3}')
    I(f'v_add_f32 v{kn}, v{kn}, v{kn+4}')
    I(f'v_add_f32 v{kn}, v{kn}, v{kn+2}')
    T = [S_[0], S_[0] + 2]; U = [S_[0] + 1, S_[0] + 3]; W = [S_[0] + 4, S_[0] + 5]
    for q in range(2):
        I(f'v_mov_b32 v{T[q]}, 0')
        I(f'v_mov_b32 v{W[q]}, 0')
    dpps = ['quad_perm:[1,0,3,2]', 'quad_perm:[2,3,0,1]', 'row_half_mirror', 'row_mirror']
    for r in range(4):
        I(f'v_max_f32_dpp v{kn}, v{kn}, v{kn} {dpps[r]} row_mask:0xf bank_mask:0xf')
        for q in range(2):
            I(f'v_dot2c_f32_bf16 v{T[q]}, v{QA[q]+r}, v{QA[q]+r}')
    for r in range(2):
        for q in range(2):
            I(f'v_dot2c_f32_bf16 v{W[q]}, v{QB[q]+r}, v{QB[q]+r}')
    I(f'v_readlane_b32 s{sKmax}, v{kn}, 0')
    I(f'v_readlane_b32 s6, v{kn}, 16')
    I(f'v_readlane_b32 s7, v{kn}, 32')
    I(f'v_readlane_b32 s{sT}, v{kn}, 48')
    for q in range(2):
        I(f'v_mov_b32 v{U[q]}, v{T[q]}')
    I(f's_max_u32 s{sKmax}, s{sKmax}, s6')
    I(f's_max_u32 s7, s7, s{sT}')
    I(f's_max_u32 s{sKmax}, s{sKmax}, s7')
    for q in range(2):
        I(f'v_permlane32_swap_b32 v{U[q]}, v{T[q]}')
    for q in range(2):
        I(f'v_add_f32 v{T[q]}, v{T[q]}, v{U[q]}')
    for q in range(2):
        I(f'v_add_f32 v{T[q]}, v{T[q]}, v{W[q]}')
    for q in range(2):
        I(f'v_mul_f32 v{T[q]}, s{sKmax}, v{T[q]}')
    for q in range(2):
        I(f'v_sqrt_f32 v{T[q]}, v{T[q]}')
    for q in range(2):
        I(f'v_cndmask_b32 v{QB[q]+1}, 0, v{QB[q]+1}, s[{sLo}:{sLo+1}]')
    for q in range(2):
        I(f'v_mul_f32 v{T[q]}, 0x{f2u(-(1.0 + 2.0**-7)):08x}, v{T[q]}')
    for q in range(2):
        I(f'v_cvt_pk_bf16_f32 v{T[q]}, v{T[q]}, 0')
    for q in range(2):
        I(f'v_cndmask_b32 v{QB[q]}, v{T[q]}, v{QB[q]}, s[{sLo}:{sLo+1}]')
    a.label(f'{name}_haveq')
    I(f's_waitcnt vmcnt({nkv - 2})')
    I(mfma(S_[0], KA(0), QA[0], '0'))
    I(mfma8(S_[0], KB(0), QB[0]))
    st.mark()
    I('s_nop 9')
    I(f'v_exp_f32 v{S_[0]}, v{S_[0]}')
    I(f'v_exp_f32 v{S_[0]+1}, v{S_[0]+1}')
    a.I('.p2align 3')
    a.label(f'{name}_loop')
    W1 = 4 * NS - 6
    for s in range(NS):
        for q in range(2):
            Sb, Pb = S_[q], P_[q]
            e = [f'v_exp_f32 v{Sb+r}, v{Sb+r}' for r in range(16)]
            c = [f'v_cvt_pk_bf16_f32 v{Pb+r}, v{Sb+2*r}, v{Sb+2*r+1}' for r in range(8)]
            nq = 1 - q
            ns = s if q == 0 else (s + 1) % NS
            M2 = mfma(S_[nq], KA(ns), QA[nq], '0')
            M3 = mfma8(S_[nq], KB(ns), QB[nq])
            M4 = mfma(O_[q], V0(s), Pb)
            M1n = mfma(O_[q], V1(s), Pb + 4)
            ps = (s - 1) % NS
            if q == 0:
                f1, f2, f3, f4 = ldV0(ps), ldV1(ps), f's_waitcnt vmcnt({W1})', None
            else:
                f1, f2, f3, f4 = ldKa(s, KVREC), ldKb(s, KVREC), None, adv
            if s == NS - 1 and q == 0:
                f4 = f's_sub_u32 s{sCnt}, s{sCnt}, 1'
            if s == NS - 1 and q == 1:
                f4 = adv + f'\ns_cmp_lg_u32 s{sCnt}, 0'
            if not (s == 0 and q == 0) or True:
                I(f1)
            for r in range(2, 6): I(e[r])
            I(M2); I(f2)
            I(e[6]); I(e[7])
            for r in range(4): I(c[r])
            I(M3)
            if f3: I(f3)
            for r in range(8, 12): I(e[r])
            I(M4)
            if f4: I(f4)
            for r in range(12, 16): I(e[r])
            for r in range(4, 8): I(c[r])
            I(f'v_exp_f32 v{S_[nq]}, v{S_[nq]}')
            I(f'v_exp_f32 v{S_[nq]+1}, v{S_[nq]+1}')
            I(M1n)
    I(f's_cbranch_scc1 {name}_loop')
    st.mark()
    I(f's_cmp_lg_u32 s{sFlag}, 0')
    I(f's_cbranch_scc1 {name}_store')
    I(f'v_mov_b32 v{vTmp}, 0x{f2u(2.0**-60):08x}')
    I(f'v_cmp_ge_f32 vcc, v{O_[0]+12}, v{vTmp}')
    I(f'v_cmp_ge_f32 s[6:7], v{O_[1]+12}, v{vTmp}')
    I('s_and_b64 s[6:7], s[6:7], vcc')
    I('s_cmp_eq_u64 s[6:7], -1')
    I(f's_cbranch_scc1 {name}_store')
    I('s_waitcnt vmcnt(0)')
    for q in range(2):
        I(f'v_cndmask_b32 v{QB[q]}, 0, v{QB[q]}, s[{sLo}:{sLo+1}]')
        I(f'v_cndmask_b32 v{QB[q]+1}, 0, v{QB[q]+1}, s[{sLo}:{sLo+1}]')
        I(f'v_mov_b32 v{vM[q]}, 0xff800000')
    I(setp)
    I(f's_mov_b32 s{sCnt}, {NT}')
    a.label(f'{name}_maxloop')
    I(ldKa(0, 0)); I(ldKb(0, 0)); I(adv)
    I('s_waitcnt vmcnt(0)')
    for q in range(2):
        I(mfma(S_[q], KA(0), QA[q], '0'))
        I(mfma8(S_[q], KB(0), QB[q]))
    for q in range(2):
        for r in range(0, 16, 2):
            I(f'v_max3_f32 v{vM[q]}, v{S_[q]+r}, v{S_[q]+r+1}, v{vM[q]}')
    I(f's_sub_u32 s{sCnt}, s{sCnt}, 1')
    I(f's_cmp_lg_u32 s{sCnt}, 0')
    I(f's_cbranch_scc1 {name}_maxloop')
    for q in range(2):
        m, t, u, w = vM[q], S_[0], S_[0] + 1, S_[0] + 2
        I(f'v_mov_b32 v{t}, v{m}')
        I(f'v_permlane32_swap_b32 v{t}, v{m}')
        I(f'v_max_f32 v{m}, v{m}, v{t}')
        I(f'v_sub_f32 v{m}, 0, v{m}')
        I(f'v_and_b32 v{t}, 0xffff0000, v{m}')
        I(f'v_sub_f32 v{m}, v{m}, v{t}')
        I(f'v_and_b32 v{u}, 0xffff0000, v{m}')
        I(f'v_sub_f32 v{m}, v{m}, v{u}')
        I(f'v_lshrrev_b32 v{t}, 16, v{t}')
        I(f'v_or_b32 v{t}, v{t}, v{u}')
        I(f'v_lshrrev_b32 v{w}, 16, v{m}')
        I(f'v_cndmask_b32 v{QB[q]}, v{t}, v{QB[q]}, s[{sLo}:{sLo+1}]')
        I(f'v_cndmask_b32 v{QB[q]+1}, v{w}, v{QB[q]+1}, s[{sLo}:{sLo+1}]')
    I(f's_mov_b32 s{sFlag}, 1')
    I(f's_branch {name}_restart')
    a.label(f'{name}_store')
    I(f'v_lshrrev_b32 v{vTmp}, 5, v0')
    I(f's_mul_i32 s6, s{sHead}, 5')
    I(f'v_add_u32 v{vTmp}, s6, v{vTmp}')
    offs = [S_[0], S_[0] + 1, S_[0] + 2]
    for q in range(2):
        I(f'v_rcp_f32 v{S_[1]+q}, v{O_[q]+12}')
    for rq in range(3):
        g, o, t = S_[0] + 4, offs[rq], S_[0] + 5
        I(f'v_add_u32 v{g}, {2*rq}, v{vTmp}')
        I(f'v_lshrrev_b32 v{o}, 2, v{g}')
        I(f'v_lshlrev_b32 v{o}, 10, v{o}')
        I(f'v_and_b32 v{t}, 1, v{g}')
        I(f'v_lshl_add_u32 v{o}, v{t}, 9, v{o}')
        I(f'v_bfe_u32 v{t}, v{g}, 1, 1')
        I(f'v_lshlrev_b32 v{t}, 3, v{t}')
        I(f'v_add3_u32 v{o}, v{o}, v{t}, v{vTok16}')
    I(f's_mul_i32 s6, s{sQT}, {AREC}')
    I(f's_add_u32 s6, s6, {AF_OFF}')
    I(f's_add_u32 s7, s6, {AREC}')
    for q in range(2):
        rl = S_[1] + q
        for rq in range(3):
            for r in range(4 * rq, 4 * rq + 4):
                I(f'v_mul_f32 v{O_[q]+r}, v{O_[q]+r}, v{rl}')
            for r in range(2 * rq, 2 * rq + 2):
                I(f'v_cvt_pk_bf16_f32 v{P_[q]+r}, v{O_[q]+2*r}, v{O_[q]+2*r+1}')
            if rq < 2:
                I(f'buffer_store_dwordx2 {vr(P_[q]+2*rq,2)}, v{offs[rq]}, {srd}, s{6+q} offen')
    I(f's_mov_b64 exec, s[{sLo}:{sLo+1}]')
    for q in range(2):
        I(f'buffer_store_dwordx2 {vr(P_[q]+4,2)}, v{offs[2]}, {srd}, s{6+q} offen')
    I('s_mov_b64 exec, -1')
    st.end(3, 4, 5)
    if entry:
        a.label(f'{name}_end')
        I('s_endpgm')
    return a
```

```python
from asmlib import Asm
from layout import *
from k_attn import gen_attn
from common import code_prefetch

def gen_k2(name, stamps=False, kidx=1, next_kernel=None, NS=4, helper=True):
    a = Asm()
    I = a.I
    a.label(name)
    I('s_cmp_ge_u32 s2, 256')
    I(f's_cbranch_scc1 {name}_end')
    if helper:
        I('v_readfirstlane_b32 s3, v0')
        I('s_cmp_ge_u32 s3, 256')
        I(f's_cbranch_scc1 {name}_g')
    gen_attn(name + '_a', NS=NS, stamps=stamps, kidx=kidx, a=a, entry=False)
    if helper:
        I('s_endpgm')
        a.label(f'{name}_g')
        I(f's_load_dwordx2 s[8:9], s[0:1], {KA_WS}')
        I('v_and_b32 v0, 63, v0')
        I('v_lshlrev_b32 v1, 7, v0')
        I('v_lshlrev_b32 v2, 4, v0')
        I('s_and_b32 s4, s2, 1')
        I(f's_mul_i32 s4, s4, {12*AREC}')
        I('s_lshr_b32 s5, s2, 3')
        I(f's_mul_i32 s5, s5, {12*AREC//32}')
        I('s_add_u32 s4, s4, s5')
        I(f's_add_u32 s4, s4, {WF_OFF}')
        I(f's_mov_b32 s10, {WS_END}')
        I('s_mov_b32 s11, 0x20000')
        I('s_waitcnt lgkmcnt(0)')
        for i in range(7):
            I(f'buffer_load_dword v4, v1, s[8:11], s4 offen', tag='pf')
            I('s_add_u32 s4, s4, 8192')
        if next_kernel:
            I('s_and_b32 s3, s5, 0')
            code_prefetch(a, next_kernel, next_kernel + '_end', 3, 1, 2, 4, 12, 5, 4)
    a.label(f'{name}_end')
    I('s_endpgm')
    return a
```

```python
from asmlib import Asm
from layout import *
from stamp import Stamps
from common import code_prefetch
import struct
def f2u(f): return struct.unpack('<I', struct.pack('<f', f))[0]

BSLOT, XSLOT = 20480, 16384
NM_LDS = 0
RR_LDS = NM_LDS + 512
CS_LDS = RR_LDS + 512
B_LDS = 4096
X_LDS = B_LDS + 4 * BSLOT
R_LDS = X_LDS + 2 * XSLOT
K1_LDS = R_LDS + 16384

def gen_gemm1(name, stamps=False, kidx=0, codepf=True, stmod='', prio=True, dbg='', warm=0, wj=0, lin=1, lin2=0):
    a = Asm()
    I = a.I
    st = Stamps(a, stamps, kidx)
    def vr(b, n=4): return f'v[{b}:{b+n-1}]'
    vLane16, vT0, vT1, vT2, vT3, vTok, vHk = 1, 2, 3, 4, 5, 6, 7
    vU = 8
    vXB = [12, 13, 14, 15]
    vWB = [[16 + 5 * ss + i for i in range(5)] for ss in range(2)]
    WFR = [26, 46]
    XFR = [[66, 70], [74, 78 - 0]]
    XFR = [[66, 70], [74, 60 + 18]]
    ACC = 82
    vEP = 242
    def Acc(t, u): return ACC + 80 * t + 16 * u
    def Wf(s, u): return WFR[s] + 4 * u
    vD = [26, 27, 28, 29, 30]
    vDX = [31, 32, 33, 34]
    vSA = 36
    vSel = 40
    LW = 44
    LX = [64, 68]
    LCS = 72
    vPF = 248
    sWave, sRB, sCG, sG, sRP, sT, sT2, sL = 3, 28, 29, 30, 31, 33, 34, 32
    sX, sD0, sD1, sD2, sWS = 8, 12, 16, 20, 60
    sO0, sO2, sOX, sSt0, sCnt, sXi = 35, 37, 38, 39, 41, 42
    sLo = 44
    sMX = 47
    sType = 48
    sM = [49, 50, 51]
    def srd(s): return f's[{s}:{s+3}]'

    a.label(name)
    I('s_cmp_ge_u32 s2, 256')
    I(f's_cbranch_scc1 {name}_end')
    st.start()
    I(f's_load_dwordx4 s[4:7], s[0:1], {KA_X}')
    I(f's_load_dwordx4 s[52:55], s[0:1], {KA_WG}')
    I(f's_load_dwordx2 s[{sWS}:{sWS+1}], s[0:1], {KA_WS}')
    I(f'v_lshrrev_b32 v{vT0}, 6, v0')
    I(f'v_and_b32 v{vT3}, 255, v0')
    I('v_and_b32 v0, 63, v0')
    I(f'v_readfirstlane_b32 s{sWave}, v{vT0}')
    I(f'v_lshlrev_b32 v{vLane16}, 4, v0')
    I(f's_and_b32 s{sT}, s2, 7')
    I(f's_lshr_b32 s{sT2}, s2, 3')
    I(f's_and_b32 s{sRB}, s{sT}, 1')
    I(f's_lshl_b32 s{sRB}, s{sRB}, 3')
    I(f's_and_b32 s{sCG}, s{sT2}, 7')
    I(f's_add_u32 s{sRB}, s{sRB}, s{sCG}')
    I(f's_lshr_b32 s{sCG}, s{sT}, 1')
    I(f's_lshl_b32 s{sCG}, s{sCG}, 2')
    I(f's_lshr_b32 s{sT2}, s{sT2}, 3')
    I(f's_add_u32 s{sCG}, s{sCG}, s{sT2}')
    I(f's_and_b32 s{sL}, s{sWave}, 3')
    I(f's_lshr_b32 s{sG}, s{sL}, 1')
    I(f's_and_b32 s{sRP}, s{sL}, 1')
    I(f's_cmp_lt_u32 s{sWave}, 4')
    I(f's_cbranch_scc1 {name}_rd')
    I(f'v_lshrrev_b32 v{vT0}, 3, v0')
    I(f'v_lshrrev_b32 v{vT1}, 4, v0')
    I(f'v_xor_b32 v{vT1}, v{vT1}, v0')
    I(f'v_and_b32 v{vT1}, 7, v{vT1}')
    I(f'v_mul_u32_u24 v{vT0}, 1280, v{vT0}')
    I(f'v_lshl_add_u32 v{vDX[0]}, v{vT1}, 4, v{vT0}')
    I(f'v_xor_b32 v{vT1}, 4, v{vT1}')
    I(f'v_lshl_add_u32 v{vDX[1]}, v{vT1}, 4, v{vT0}')
    I(f'v_add_u32 v{vDX[2]}, {16*1280-2048}, v{vDX[0]}')
    I(f'v_add_u32 v{vDX[3]}, {24*1280-3072}, v{vDX[1]}')
    I(f'v_add_u32 v{vDX[1]}, {8*1280-1024}, v{vDX[1]}')
    I(f's_lshl_b32 s{sOX}, s{sRB}, 7')
    I(f's_lshl_b32 s{sT}, s{sL}, 5')
    I(f's_add_u32 s{sOX}, s{sOX}, s{sT}')
    I(f's_mul_i32 s{sOX}, s{sOX}, 1280')
    I(f's_lshl_b32 s{sMX}, s{sL}, 12')
    I(f's_add_u32 s{sMX}, s{sMX}, {X_LDS}')
    I(f's_mov_b32 s{sX+2}, {S*D*2}')
    for s in (sX, sD0, sD1, sD2):
        I(f's_mov_b32 s{s+3}, 0x20000')
    I(f's_mov_b32 s{sD2+2}, {D*3*D*2}')
    I(f's_mov_b32 s{sXi}, 0')
    I(f's_cmp_ge_u32 s{sCG}, 12')
    I(f's_cbranch_scc1 {name}_setup_qk')
    I(f'v_lshrrev_b32 v{vT0}, 4, v0')
    I(f'v_bfe_u32 v{vT1}, v0, 1, 3')
    I(f'v_lshlrev_b32 v{vT2}, 1, v{vT0}')
    I(f'v_xor_b32 v{vT1}, v{vT1}, v{vT2}')
    I(f'v_mul_u32_u24 v{vT0}, 3072, v{vT0}')
    I(f'v_and_b32 v{vT2}, 1, v0')
    I(f'v_lshl_add_u32 v{vT0}, v{vT2}, 4, v{vT0}')
    I(f'v_lshl_add_u32 v{vD[0]}, v{vT1}, 5, v{vT0}')
    I(f'v_xor_b32 v{vT1}, 1, v{vT1}')
    I(f'v_lshl_add_u32 v{vD[2]}, v{vT1}, 5, v{vT0}')
    I(f'v_add_u32 v{vD[1]}, {4*3072-1024}, v{vD[0]}')
    I(f'v_add_u32 v{vD[3]}, {4*3072-1024}, v{vD[2]}')
    I(f'v_lshrrev_b32 v{vT0}, 3, v0')
    I(f'v_lshrrev_b32 v{vT1}, 2, v0')
    I(f'v_lshrrev_b32 v{vT2}, 4, v0')
    I(f'v_xor_b32 v{vT1}, v{vT1}, v{vT2}')
    I(f'v_and_b32 v{vT1}, 1, v{vT1}')
    I(f'v_mul_u32_u24 v{vT0}, 3840, v{vT0}')
    I(f'v_lshl_add_u32 v{vT0}, v{vT1}, 6, v{vT0}')
    I(f'v_and_b32 v{vT1}, 3, v0')
    I(f'v_lshl_add_u32 v{vD[4]}, v{vT1}, 4, v{vT0}')
    I(f's_mul_i32 s{sO0}, s{sL}, {8*3072}')
    I(f's_lshl_b32 s{sT}, s{sCG}, 8')
    I(f's_add_u32 s{sO0}, s{sO0}, s{sT}')
    I(f's_mul_i32 s{sO2}, s{sL}, {8*3840}')
    I(f's_min_u32 s{sT}, s{sCG}, 9')
    I(f's_lshl_b32 s{sT}, s{sT}, 7')
    I(f's_add_u32 s{sO2}, s{sO2}, s{sT}')
    I(f's_add_u32 s{sO2}, s{sO2}, 2560')
    I(f's_mov_b32 s{sSt0}, {32*3072}')
    I(f's_mov_b32 s{sD0+2}, {D*F*2}')
    I(f's_mov_b32 s{sD1+2}, {D*F*2}')
    I(f's_lshl_b32 s{sM[0]}, s{sL}, 11')
    I(f's_add_u32 s{sM[1]}, s{sM[0]}, 8192')
    I(f's_lshl_b32 s{sM[2]}, s{sL}, 10')
    I(f's_add_u32 s{sM[2]}, s{sM[2]}, 16384')
    I(f's_cmp_ge_u32 s{sCG}, 10')
    I(f's_cselect_b32 s{sD2+2}, 0, s{sD2+2}')
    I('s_waitcnt lgkmcnt(0)')
    I(f's_mov_b32 s{sD0}, s52'); I(f's_mov_b32 s{sD0+1}, s53')
    I(f's_mov_b32 s{sD1}, s54'); I(f's_mov_b32 s{sD1+1}, s55')
    I(f's_branch {name}_setup_done')
    a.label(f'{name}_setup_qk')
    for j in range(5):
        I(f'v_add_u32 v{vT0}, {64*j}, v0')
        I(f'v_mul_u32_u24 v{vT1}, 1639, v{vT0}')
        I(f'v_lshrrev_b32 v{vT1}, 16, v{vT1}')
        I(f'v_lshlrev_b32 v{vT2}, 1, v{vT1}')
        I(f'v_and_b32 v{vT2}, 4, v{vT2}')
        I(f'v_xor_b32 v{vT0}, v{vT0}, v{vT2}')
        I(f'v_mul_u32_u24 v{vT1}, {3840-640}, v{vT1}')
        I(f'v_lshl_add_u32 v{vD[j]}, v{vT0}, 4, v{vT1}')
        if j & 1:
            I(f'v_subrev_u32 v{vD[j]}, 1024, v{vD[j]}')
    I(f's_mul_i32 s{sO0}, s{sL}, {8*3840}')
    I(f's_sub_u32 s{sT}, s{sCG}, 12')
    I(f's_mul_i32 s{sT}, s{sT}, 640')
    I(f's_add_u32 s{sO0}, s{sO0}, s{sT}')
    I(f's_mov_b32 s{sO2}, s{sO0}')
    I(f's_mov_b32 s{sSt0}, {32*3840}')
    I(f's_mov_b32 s{sD0+2}, {D*3*D*2}')
    I(f's_mov_b32 s{sD1+2}, {D*3*D*2}')
    I(f's_mul_i32 s{sM[0]}, s{sL}, 5120')
    I(f's_add_u32 s{sM[1]}, s{sM[0]}, 2048')
    I(f's_add_u32 s{sM[2]}, s{sM[0]}, 4096')
    I('s_waitcnt lgkmcnt(0)')
    I(f's_mov_b32 s{sD0}, s6'); I(f's_mov_b32 s{sD0+1}, s7')
    I(f's_mov_b32 s{sD1}, s6'); I(f's_mov_b32 s{sD1+1}, s7')
    a.label(f'{name}_setup_done')
    if 'fine' in dbg: st.mark()
    I(f's_mov_b32 s{sD2}, s6'); I(f's_mov_b32 s{sD2+1}, s7')
    I(f's_mov_b32 s{sX}, s4'); I(f's_mov_b32 s{sX+1}, s5')

    def dmaB(slot):
        for x in [
            f's_add_u32 m0, s{sM[0]}, {B_LDS+slot*BSLOT}',
            f's_nop 0',
            f'buffer_load_dwordx4 v{vD[0]}, {srd(sD0)}, s{sO0} offen lds',
            f'buffer_load_dwordx4 v{vD[1]}, {srd(sD0)}, s{sO0} offen offset:1024 lds',
            f's_add_u32 m0, s{sM[1]}, {B_LDS+slot*BSLOT}',
            f's_nop 0',
            f'buffer_load_dwordx4 v{vD[2]}, {srd(sD1)}, s{sO0} offen lds',
            f'buffer_load_dwordx4 v{vD[3]}, {srd(sD1)}, s{sO0} offen offset:1024 lds',
            f's_add_u32 m0, s{sM[2]}, {B_LDS+slot*BSLOT}',
            f's_add_u32 s{sO0}, s{sO0}, s{sSt0}',
            f'buffer_load_dwordx4 v{vD[4]}, {srd(sD2)}, s{sO2} offen lds',
            f's_add_u32 s{sO2}, s{sO2}, {32*3840}']: I(x)
    def dmaX(slot):
        for x in [
            f's_cmp_ge_u32 s{sXi}, 10',
            f's_cselect_b32 s{sX+2}, 0, s{sX+2}',
            f's_add_u32 m0, s{sMX}, {slot*XSLOT}',
            f's_add_u32 s{sXi}, s{sXi}, 1',
            f'buffer_load_dwordx4 v{vDX[0]}, {srd(sX)}, s{sOX} offen lds',
            f'buffer_load_dwordx4 v{vDX[1]}, {srd(sX)}, s{sOX} offen offset:1024 lds',
            f'buffer_load_dwordx4 v{vDX[2]}, {srd(sX)}, s{sOX} offen offset:2048 lds',
            f'buffer_load_dwordx4 v{vDX[3]}, {srd(sX)}, s{sOX} offen offset:3072 lds',
            f's_add_u32 s{sOX}, s{sOX}, 128']: I(x)
    sRU, sRK, sRC = 64, 65, 66
    I(f's_load_dwordx2 s[68:69], s[0:1], {KA_WO}')
    I(f's_load_dwordx2 s[72:73], s[0:1], {KA_WD}')
    I(f's_lshl_b32 s{sRU}, s2, 2')
    I(f's_add_u32 s{sRU}, s{sRU}, s{sL}')
    I(f's_mul_i32 s{sRK}, s{sRU}, 13108')
    I(f's_lshr_b32 s{sRK}, s{sRK}, 16')
    I(f's_mul_i32 s{sT}, s{sRK}, 5')
    I(f's_sub_u32 s{sRC}, s{sRU}, s{sT}')
    dmaX(0); dmaB(0)
    if 'fine' in dbg: st.mark()
    dmaB(1)
    if 'fine' in dbg: st.mark()
    a.label(f'{name}_rd')
    npf = 0
    I(f's_cmp_ge_u32 s{sCG}, 10')
    I(f's_cselect_b32 s{sType}, 1, 0')
    I(f's_cmp_ge_u32 s{sCG}, 12')
    I(f's_cselect_b32 s{sType}, 2, s{sType}')
    I(f's_cmp_ge_u32 s{sCG}, 14')
    I(f's_cselect_b32 s{sType}, 3, s{sType}')
    I(f's_cmp_ge_u32 s{sWave}, 4')
    I(f's_cbranch_scc1 {name}_nopf')
    vWA, vWI = 244, 246
    def touch(mask='s[64:65]'):
        for x in [f's_mov_b64 exec, {mask}',
                  f'global_load_dword v{vPF}, v[{vWA}:{vWA+1}], off',
                  's_mov_b64 exec, -1',
                  f'v_add_co_u32 v{vWA}, vcc, v{vWA}, v{vWI}',
                  f'v_addc_co_u32 v{vWA+1}, vcc, 0, v{vWA+1}, vcc']:
            I(x, tag='pf')
    if lin:
        I(f's_lshl_b32 s{sT}, s2, 2')
        I(f's_add_u32 s{sT}, s{sT}, s{sL}')
        I(f'v_lshrrev_b32 v{vT0}, 3, v0')
        I(f'v_and_b32 v{vT1}, 7, v0')
        I(f'v_cmp_gt_u32 vcc, 4, v{vT0}')
        I(f'v_cndmask_b32 v{vT1}, v{vT1}, v0, vcc')
        I(f'v_mov_b32 v{vT2}, 20')
        I(f'v_mov_b32 v{vWI}, {S*D*2}')
        I('s_waitcnt lgkmcnt(0)')
        I(f'v_mov_b32 v{vWA}, s4'); I(f'v_mov_b32 v{vWA+1}, s5')
        for grp, n, q, p in ((4, 5, 160*3840, 6), (5, 4, 160*3072, 52), (6, 4, 160*3072, 54)):
            I(f'v_cmp_eq_u32 vcc, {grp}, v{vT0}')
            I(f'v_mov_b32 v{vU}, s{p}'); I(f'v_mov_b32 v{vU+1}, s{p+1}'); I(f'v_mov_b32 v{vU+2}, {q}')
            I(f'v_cndmask_b32 v{vWA}, v{vWA}, v{vU}, vcc')
            I(f'v_cndmask_b32 v{vWA+1}, v{vWA+1}, v{vU+1}, vcc')
            I(f'v_cndmask_b32 v{vWI}, v{vWI}, v{vU+2}, vcc')
            I(f'v_mov_b32 v{vU}, {n}')
            I(f'v_cndmask_b32 v{vT2}, v{vT2}, v{vU}, vcc')
        I(f'v_mul_lo_u32 v{vT2}, v{vT2}, s{sT}')
        I(f'v_add_u32 v{vT2}, v{vT2}, v{vT1}')
        I(f'v_lshlrev_b32 v{vT2}, 7, v{vT2}')
        I(f'v_subrev_u32 v{vT1}, 128, v{vWI}')
        I(f'v_min_u32 v{vT2}, v{vT2}, v{vT1}')
        I(f'v_add_co_u32 v{vWA}, vcc, v{vWA}, v{vT2}')
        I(f'v_addc_co_u32 v{vWA+1}, vcc, 0, v{vWA+1}, vcc')
        I(f's_mov_b32 s64, 0')
        I(f's_mov_b32 s65, 0x000f0f1f')
        I(f's_mov_b32 s66, 0x000fffff')
        I(f's_mov_b32 s67, 0x000f0f1f')
        touch('s[66:67]')
        for i in range(lin - 1):
            touch()
    if codepf:
        code_prefetch(a, f'{name}_nopf', f'{name}_end', sL, 4, vLane16, vPF, 56, sT, CODEKB)
    a.label(f'{name}_nopf')
    I(f'v_and_b32 v{vTok}, 31, v0')
    I(f'v_lshrrev_b32 v{vHk}, 5, v0')
    I(f's_lshl_b32 s{sT}, s{sRP}, 1')
    I(f's_cmp_ge_u32 s{sWave}, 4')
    I(f's_cselect_b32 s{sT}, s{sL}, s{sT}')
    I(f's_cselect_b32 s{sT2}, s{sRP}, 0')
    I(f's_lshl_b32 s{sT}, s{sT}, 12')
    I(f's_add_u32 s{sT}, s{sT}, {X_LDS}')
    I(f'v_bfe_u32 v{vT1}, v0, 1, 3')
    I(f'v_xor_b32 v{vT1}, v{vT1}, v{vHk}')
    I(f'v_lshlrev_b32 v{vT0}, 7, v{vTok}')
    I(f'v_add_u32 v{vT0}, s{sT}, v{vT0}')
    for ks in range(4):
        I(f'v_xor_b32 v{vU}, {2*ks}, v{vT1}')
        I(f'v_lshl_add_u32 v{vXB[ks]}, v{vU}, 4, v{vT0}')
    I(f'v_bfe_u32 v{vT0}, v0, 2, 2')
    I(f'v_lshl_add_u32 v{vT1}, v{vHk}, 3, v{vT0}')
    I(f's_lshl_b32 s{sT2}, s{sT2}, 4')
    I(f'v_add_u32 v{vT1}, s{sT2}, v{vT1}')
    I(f'v_and_b32 v{vT2}, 3, v0')
    I(f'v_lshlrev_b32 v{vT2}, 3, v{vT2}')
    I(f'v_add_u32 v{vT2}, {B_LDS}, v{vT2}')
    vG16 = vU
    I(f'v_bfe_u32 v{vG16}, v0, 4, 1')
    W0 = vWB[0]
    I(f's_lshl_b32 s{sT}, s{sG}, 2')
    I(f's_cmp_ge_u32 s{sType}, 2')
    I(f's_cbranch_scc1 {name}_rd_qk')
    I(f'v_lshlrev_b32 v{vU+1}, 8, v{vT1}')
    I(f'v_lshl_add_u32 v{vU+1}, v{vG16}, 13, v{vU+1}')
    I(f'v_add_u32 v{vU+1}, v{vU+1}, v{vT2}')
    I(f'v_lshlrev_b32 v{vU+2}, 1, v{vT0}')
    I(f'v_xor_b32 v{vU+2}, v{vU+2}, v{vG16}')
    I(f'v_xor_b32 v{vU+2}, s{sT}, v{vU+2}')
    for i in range(4):
        I(f'v_xor_b32 v{vU+3}, {i}, v{vU+2}')
        I(f'v_lshl_add_u32 v{W0[i]}, v{vU+3}, 5, v{vU+1}')
    I(f'v_lshrrev_b32 v{vU+3}, 1, v{vT0}')
    I(f'v_xor_b32 v{vU+3}, s{sG}, v{vU+3}')
    I(f'v_lshlrev_b32 v{vU+3}, 6, v{vU+3}')
    I(f'v_lshl_add_u32 v{vU+3}, v{vT1}, 7, v{vU+3}')
    I(f'v_lshl_add_u32 v{vU+3}, v{vG16}, 5, v{vU+3}')
    I(f'v_add_u32 v{vU+3}, v{vU+3}, v{vT2}')
    I(f'v_add_u32 v{W0[4]}, 16384, v{vU+3}')
    I(f's_branch {name}_rd_done')
    a.label(f'{name}_rd_qk')
    I(f'v_mul_u32_u24 v{vU+1}, 640, v{vT1}')
    I(f'v_lshl_add_u32 v{vU+1}, v{vG16}, 5, v{vU+1}')
    I(f'v_add_u32 v{vU+1}, v{vU+1}, v{vT2}')
    I(f'v_lshrrev_b32 v{vU+2}, 1, v{vT0}')
    I(f'v_xor_b32 v{vU+3}, s{sT}, v{vU+2}')
    for i in range(4):
        I(f'v_xor_b32 v{vT0}, {i}, v{vU+3}')
        I(f'v_lshl_add_u32 v{W0[i]}, v{vT0}, 6, v{vU+1}')
    I(f'v_xor_b32 v{vU+3}, s{sG}, v{vU+2}')
    I(f'v_add_u32 v{vU+3}, 8, v{vU+3}')
    I(f'v_lshl_add_u32 v{W0[4]}, v{vU+3}, 6, v{vU+1}')
    a.label(f'{name}_rd_done')
    for i in range(5):
        I(f'v_add_u32 v{vWB[1][i]}, {2*BSLOT}, v{W0[i]}')
    I(f's_mov_b32 s{sCnt}, 5')
    I(f's_cmp_lt_u32 s{sWave}, 4')
    I(f's_cbranch_scc1 {name}_comp')
    I(f'v_lshlrev_b32 v{vT3}, 2, v{vT3}')
    I(f'v_mov_b32 v{vT0}, 0')
    I(f'ds_write_b32 v{vT3}, v{vT0} offset:{CS_LDS}')
    I(f'ds_write_b32 v{vT3}, v{vT0} offset:{CS_LDS+1024}')
    I(f'v_and_b32 v{vT0}, 15, v0')
    I(f'v_cmp_eq_u32 vcc, v{vT0}, v{vG16}')
    I(f'v_mov_b32 v{vT1}, 0x3f803f80')
    for r in range(4):
        I(f'v_cndmask_b32 v{vSel+r}, 0, v{vT1}, vcc')
    for r in range(4):
        I(f'v_mov_b32 v{vSA+r}, 0')
    for r in range(20):
        I(f'v_mov_b32 v{LCS+r}, 0')
    vW2 = [[96 + 5 * ss + i for i in range(5)] for ss in range(2)]
    I(f's_cmp_ge_u32 s{sType}, 2')
    I(f's_cselect_b32 s{sT}, {4*640}, {4*256}'.replace(f'{4*640}, {4*256}', f'{4*640}, s{sT}')) if False else None
    I(f's_movk_i32 s{sT}, {4*256}')
    I(f's_movk_i32 s{sT2}, {4*128}')
    I(f's_cselect_b32 s{sT}, {4*640}, s{sT}')
    I(f's_cselect_b32 s{sT2}, {4*640}, s{sT2}')
    for ss in range(2):
        for i in range(5):
            I(f'v_add_u32 v{vW2[ss][i]}, s{sT if i < 4 else sT2}, v{vWB[ss][i]}')
    I('s_waitcnt vmcnt(5) lgkmcnt(0)')
    if 'fine' in dbg: st.mark()
    I('s_barrier')
    st.mark()
    dmaB(2); dmaX(1); dmaB(3)
    def st_ops(src):
        for d in range(4):
            t = vU + 2 * (d & 1)
            for x in [f'v_lshlrev_b32 v{t}, 16, v{src+d}', f'v_and_b32 v{t+1}, 0xffff0000, v{src+d}',
                      f'v_add_f32 v{vSA}, v{vSA}, v{t}', f'v_add_f32 v{vSA+1}, v{vSA+1}, v{t+1}',
                      f'v_fmac_f32 v{vSA+2}, v{t}, v{t}', f'v_fmac_f32 v{vSA+3}, v{t+1}, v{t+1}']: I(x)
    def lwork(j):
        o = (j & 1) * BSLOT
        for s2 in range(2):
            I(f'ds_read_b128 {vr(LX[s2])}, v{vXB[2*(j&1)+s2]} offset:{((j >> 1) & 1) * XSLOT}')
        for u in range(5):
            I(f'ds_read_b64_tr_b16 {vr(LW+4*u,2)}, v{vWB[j>>1][u]} offset:{o}')
            I(f'ds_read_b64_tr_b16 {vr(LW+4*u+2,2)}, v{vW2[j>>1][u]} offset:{o}')
        I('s_waitcnt lgkmcnt(11)')
        st_ops(LX[0])
        I('s_waitcnt lgkmcnt(0)')
        for u in range(5):
            I(f'v_mfma_f32_16x16x32_bf16 {vr(LCS+4*u)}, {vr(vSel)}, {vr(LW+4*u)}, {vr(LCS+4*u)}')
        st_ops(LX[1])
    a.I('.p2align 3')
    a.label(f'{name}_lloop')
    for j in range(4):
        if 'nolw' not in dbg:
            lwork(j)
        I(f's_waitcnt vmcnt({10 if j & 1 else 14})')
        I('s_barrier')
        if 'nodma' not in dbg:
            if j & 1:
                dmaX(j >> 1)
            dmaB(j)
    I(f's_sub_u32 s{sCnt}, s{sCnt}, 1')
    I(f's_cmp_lg_u32 s{sCnt}, 0')
    I(f's_cbranch_scc1 {name}_lloop')
    st.mark()
    I(f'v_lshrrev_b32 v{vT0}, 4, v0')
    I(f'v_mul_u32_u24 v{vT0}, {1280-256}, v{vT0}')
    I(f'v_add_u32 v{vT0}, v{vT0}, v{vLane16}')
    I(f's_sub_u32 s{sT}, s{sRK}, 40')
    I(f's_mov_b32 s70, {D*D*2}')
    I(f's_mov_b32 s71, 0x20000')
    I(f's_cmp_ge_u32 s{sRK}, 40')
    I(f's_cselect_b32 s68, s72, s68')
    I(f's_cselect_b32 s69, s73, s69')
    I(f's_cselect_b32 s70, {F*D*2}, s70')
    I(f's_cselect_b32 s{sT}, s{sT}, s{sRK}')
    I(f's_cmp_ge_u32 s{sRU}, 680')
    I(f's_cselect_b32 s70, 0, s70')
    I(f's_mul_i32 s{sT}, s{sT}, {16*1280}')
    I(f's_lshl_b32 s{sT2}, s{sRC}, 8')
    I(f's_add_u32 s{sT}, s{sT}, s{sT2}')
    I(f's_lshl_b32 s67, s{sL}, 12')
    I(f's_add_u32 s67, s67, {R_LDS}')
    for j in range(4):
        I(f's_add_u32 m0, s67, {1024*j}')
        I(f's_nop 0')
        I(f'buffer_load_dwordx4 v{vT0}, s[68:71], s{sT} offen lds')
        I(f's_add_u32 s{sT}, s{sT}, {4*1280}')
    I(f'v_add_f32 v{vSA}, v{vSA}, v{vSA+1}')
    I(f'v_add_f32 v{vSA+1}, v{vSA+2}, v{vSA+3}')
    I(f'v_mov_b32 v{vSA+2}, v{vSA}')
    I(f'v_mov_b32 v{vSA+3}, v{vSA+1}')
    I(f's_lshl_b32 s{sT}, s{sG}, 9')
    I(f'v_lshlrev_b32 v{vT1}, 2, v{vTok}')
    I(f'v_permlane32_swap_b32 v{vSA+2}, v{vSA}')
    I(f'v_permlane32_swap_b32 v{vSA+3}, v{vSA+1}')
    I(f'v_add_u32 v{vT2}, s{sT}, v{vT1}')
    I(f's_lshl_b32 s{sT}, s{sG}, 7')
    I(f'v_add_u32 v{vT0}, s{sT}, v{vT1}')
    I('s_mov_b64 exec, 0xffff')
    for i in range(5):
        for h in range(2):
            if i < 4:
                I(f'ds_add_f32 v{vT2}, v{LCS+4*i+h} offset:{CS_LDS+128*i+64*h}')
            else:
                I(f'ds_add_f32 v{vT0}, v{LCS+4*i+h} offset:{CS_LDS+1024+64*h}')
    I('s_mov_b64 exec, -1')
    I(f'v_add_f32 v{vSA}, v{vSA}, v{vSA+2}')
    I(f'v_add_f32 v{vSA+1}, v{vSA+1}, v{vSA+3}')
    I(f'v_mul_f32 v{vSA}, 0x{f2u(1.0/640):08x}, v{vSA}')
    I(f'v_mul_f32 v{vSA+1}, 0x{f2u(1.0/640):08x}, v{vSA+1}')
    I(f'v_fma_f32 v{vSA+1}, -v{vSA}, v{vSA}, v{vSA+1}')
    I(f'v_max_f32 v{vSA+1}, 0, v{vSA+1}')
    I(f'v_cvt_pk_bf16_f32 v{vSA+2}, v{vSA+1}, -v{vSA}')
    I(f'v_and_b32 v{vSA}, 0xffff0000, v{vSA+2}')
    I(f'v_lshlrev_b32 v{vSA+2}, 16, v{vSA+2}')
    I(f'v_add_f32 v{vSA+2}, 0x{f2u(1e-5):08x}, v{vSA+2}')
    I(f'v_cvt_pk_bf16_f32 v{vSA+2}, v{vSA+2}, v{vSA+2}')
    I(f'v_lshlrev_b32 v{vSA+2}, 16, v{vSA+2}')
    I(f'v_sqrt_f32 v{vSA+2}, v{vSA+2}')
    I(f'v_cvt_pk_bf16_f32 v{vSA+2}, v{vSA+2}, v{vSA+2}')
    I(f'v_lshlrev_b32 v{vSA+2}, 16, v{vSA+2}')
    I(f'v_rcp_f32 v{vSA+1}, v{vSA+2}')
    I(f's_lshl_b32 s{sT}, s{sL}, 7')
    I(f'v_add_u32 v{vT3}, s{sT}, v{vT1}')
    I(f'ds_write_b32 v{vT3}, v{vSA} offset:{NM_LDS}')
    I(f'ds_write_b32 v{vT3}, v{vSA+1} offset:{RR_LDS}')
    I('s_waitcnt lgkmcnt(0)')
    I('s_barrier')
    I(f's_cmp_ge_u32 s{sRU}, 680')
    I(f's_cbranch_scc1 {name}_fin')
    I('s_waitcnt vmcnt(0)')
    I(f'v_bfe_u32 v{vT0}, v0, 2, 2')
    I(f'v_lshl_add_u32 v{vT0}, v{vHk}, 2, v{vT0}')
    I(f'v_lshlrev_b32 v{vT0}, 8, v{vT0}')
    I(f'v_bfe_u32 v{vT1}, v0, 4, 1')
    I(f'v_lshl_add_u32 v{vT0}, v{vT1}, 5, v{vT0}')
    I(f'v_and_b32 v{vT1}, 3, v0')
    I(f'v_lshl_add_u32 v{vT0}, v{vT1}, 3, v{vT0}')
    I(f'v_add_u32 v{vT0}, s67, v{vT0}')
    for j in range(4):
        I(f'ds_read_b64_tr_b16 {vr(LW+4*j,2)}, v{vT0} offset:{64*j}')
        I(f'ds_read_b64_tr_b16 {vr(LW+4*j+2,2)}, v{vT0} offset:{64*j+2048}')
    I(f's_mov_b32 s{sWS+2}, {WS_SIZE}')
    I(f's_mov_b32 s{sWS+3}, 0x20000')
    I(f's_mul_i32 s{sT}, s{sRC}, {4*AREC}')
    I(f's_lshl_b32 s{sT2}, s{sRK}, 10')
    I(f's_add_u32 s{sT}, s{sT}, s{sT2}')
    I(f's_add_u32 s{sT}, s{sT}, {WF_OFF}')
    for j in range(4):
        I(f's_waitcnt lgkmcnt({6-2*j})')
        I(f'buffer_store_dwordx4 {vr(LW+4*j)}, v{vLane16}, {srd(sWS)}, s{sT} offen{stmod}')
        I(f's_add_u32 s{sT}, s{sT}, {AREC}')
    I(f's_branch {name}_fin')
    a.label(f'{name}_comp')
    st.n = 0
    if 'fine' in dbg:
        for i in range(3): st.mark()
    if prio:
        I('s_setprio 1')
    I(f's_mov_b32 s{sWS+2}, {WS_SIZE}')
    I(f's_mov_b32 s{sWS+3}, 0x20000')
    I(f's_mov_b32 s{sLo}, -1')
    I(f's_mov_b32 s{sLo+1}, 0')
    for r in range(160):
        I(f'v_mov_b32 v{ACC+r}, 0')
    I('s_waitcnt lgkmcnt(0)')
    if warm:
        I(f'v_mul_u32_u24 v{vT0}, 13108, v0')
        I(f'v_lshrrev_b32 v{vT0}, 16, v{vT0}')
        I(f'v_mul_u32_u24 v{vT1}, 5, v{vT0}')
        I(f'v_sub_u32 v{vT1}, v0, v{vT1}')
        I(f's_and_b32 s{sT}, s{sRB}, 7')
        I(f's_lshl_b32 s{sT}, s{sT}, 2')
        I(f's_lshl_b32 s{sT2}, s{sL}, 5')
        I(f's_add_u32 s{sT}, s{sT}, s{sT2}')
        I(f's_add_u32 s{sT}, s{sT}, 128')
        I(f'v_add_u32 v{vT0}, s{sT}, v{vT0}')
        I(f'v_mov_b32 v{vWA}, s6')
        I(f'v_mov_b32 v{vWA+1}, s7')
        I(f'v_mov_b32 v{vT2}, 3840')
        I(f's_cmp_ge_u32 s{sType}, 2')
        I(f's_cbranch_scc1 {name}_warm_qk')
        I(f's_min_u32 s{sT}, s{sCG}, 9')
        I(f's_lshl_b32 s{sT}, s{sT}, 7')
        I(f's_add_u32 s{sT}, s{sT}, 2560')
        I(f'v_mov_b32 v{vT3}, s{sT}')
        I(f's_lshl_b32 s{sT}, s{sCG}, 8')
        I(f'v_and_b32 v{26}, 1, v{vT1}')
        I(f'v_lshlrev_b32 v{26}, 7, v{26}')
        I(f'v_add_u32 v{26}, s{sT}, v{26}')
        I(f'v_cmp_gt_u32 vcc, 4, v{vT1}')
        I(f'v_mov_b32 v{27}, 3072')
        I(f'v_cndmask_b32 v{vT2}, v{vT2}, v{27}, vcc')
        I(f'v_cndmask_b32 v{vT3}, v{vT3}, v{26}, vcc')
        I(f'v_mov_b32 v{26}, s54'); I(f'v_mov_b32 v{27}, s55')
        I(f'v_cndmask_b32 v{vWA}, v{vWA}, v{26}, vcc')
        I(f'v_cndmask_b32 v{vWA+1}, v{vWA+1}, v{27}, vcc')
        I(f'v_cmp_gt_u32 vcc, 2, v{vT1}')
        I(f'v_mov_b32 v{26}, s52'); I(f'v_mov_b32 v{27}, s53')
        I(f'v_cndmask_b32 v{vWA}, v{vWA}, v{26}, vcc')
        I(f'v_cndmask_b32 v{vWA+1}, v{vWA+1}, v{27}, vcc')
        I(f's_branch {name}_warm_done')
        a.label(f'{name}_warm_qk')
        I(f's_sub_u32 s{sT}, s{sCG}, 12')
        I(f's_mul_i32 s{sT}, s{sT}, 640')
        I(f'v_lshlrev_b32 v{vT3}, 7, v{vT1}')
        I(f'v_add_u32 v{vT3}, s{sT}, v{vT3}')
        a.label(f'{name}_warm_done')
        I(f'v_mul_u32_u24 v{vT0}, v{vT0}, v{vT2}')
        I(f'v_add_u32 v{vT3}, v{vT3}, v{vT0}')
        I(f'v_lshlrev_b32 v{vWI}, 7, v{vT2}')
        I(f's_lshl_b32 s{sT}, s{sRB}, 7')
        I(f's_and_b32 s{sT2}, s{sCG}, 3')
        I(f's_lshl_b32 s{sT2}, s{sT2}, 5')
        I(f's_add_u32 s{sT}, s{sT}, s{sT2}')
        I(f's_lshl_b32 s{sT2}, s{sRP}, 4')
        I(f's_add_u32 s{sT}, s{sT}, s{sT2}')
        I(f's_mul_i32 s{sT}, s{sT}, 1280')
        I(f's_lshl_b32 s{sT2}, s{sG}, 7')
        I(f's_add_u32 s{sT}, s{sT}, s{sT2}')
        I(f's_add_u32 s{sT}, s{sT}, 256')
        I(f'v_and_b32 v{vT0}, 15, v0')
        I(f'v_mul_u32_u24 v{vT0}, 1280, v{vT0}')
        I(f'v_add_u32 v{vT0}, s{sT}, v{vT0}')
        I(f'v_mov_b32 v{26}, s4'); I(f'v_mov_b32 v{27}, s5'); I(f'v_mov_b32 v{28}, 256')
        I(f'v_cndmask_b32 v{vT3}, v{vT0}, v{vT3}, s[{sLo}:{sLo+1}]')
        I(f'v_cndmask_b32 v{vWA}, v{26}, v{vWA}, s[{sLo}:{sLo+1}]')
        I(f'v_cndmask_b32 v{vWA+1}, v{27}, v{vWA+1}, s[{sLo}:{sLo+1}]')
        I(f'v_cndmask_b32 v{vWI}, v{28}, v{vWI}, s[{sLo}:{sLo+1}]')
        I(f'v_add_co_u32 v{vWA}, vcc, v{vWA}, v{vT3}')
        I(f'v_addc_co_u32 v{vWA+1}, vcc, 0, v{vWA+1}, vcc')
        I(f's_mov_b32 s64, 0x000fffff')
        I(f's_mov_b32 s65, 0x0000ffff')
    for i in range(lin2):
        touch()
    if warm:
        for i in range(warm):
            touch()
    if 'fine' in dbg: st.mark()
    I('s_barrier')
    st.mark()

    def loop(typ):
        rs = [256] * 4 + [128] if typ == 'A' else [640] * 5
        def rdW(fset, u, slot, sp):
            b = vWB[slot >> 1][u]
            o = (slot & 1) * BSLOT + 16 * sp * rs[u]
            return [f'ds_read_b64_tr_b16 {vr(Wf(fset,u),2)}, v{b} offset:{o}',
                    f'ds_read_b64_tr_b16 {vr(Wf(fset,u)+2,2)}, v{b} offset:{o+4*rs[u]}']
        def rdX(fset, j, sp):
            return [f'ds_read_b128 {vr(XFR[fset][t])}, v{vXB[2*(j&1)+sp]} offset:{((j >> 1) & 1) * XSLOT + 4096 * t}' for t in range(2)]
        def mf(fset, u, t):
            acc = vr(Acc(t, u), 16)
            if typ == 'A' and u == 4:
                return f'v_mfma_f32_32x32x16_bf16 {acc}, {vr(XFR[fset][t])}, {vr(Wf(fset,u))}, {acc}'
            return f'v_mfma_f32_32x32x16_bf16 {acc}, {vr(Wf(fset,u))}, {vr(XFR[fset][t])}, {acc}'
        def emit_phase(mf_list, lst, f1, tail=()):
            for k in range(len(mf_list)):
                I(mf_list[k])
                if k < f1:
                    lo, hi = len(lst) * k // f1, len(lst) * (k + 1) // f1
                    for x in lst[lo:hi]:
                        if 'nord' not in dbg: I(x)
                if k == len(mf_list) - 2:
                    for x in tail: I(x)
        L = f'{name}_loop{typ}'
        for x in rdX(0, 0, 0): I(x)
        for u in range(5):
            for x in rdW(0, u, 0, 0): I(x)
        I('s_waitcnt lgkmcnt(0)')
        a.I('.p2align 3')
        a.label(L)
        order = [(u, t) for u in range(5) for t in range(2)]
        for j in range(4):
            if (warm or lin) and j == wj and (warm or lin + lin2 < 4):
                I(f's_cmp_le_u32 s{sCnt}, {1 + (warm if warm else lin + lin2)}')
                I(f's_cbranch_scc1 {L}_nt')
                touch()
                a.label(f'{L}_nt')
            lds = rdX(1, j, 1)
            for u in range(5):
                lds += rdW(1, u, j, 1)
            emit_phase([mf(0, u, t) for u, t in order], lds, 6, ['s_waitcnt lgkmcnt(0)'])
            I('s_barrier')
            jn = (j + 1) & 3
            lds = rdX(0, jn, 0)
            for u in range(5):
                lds += rdW(0, u, jn, 0)
            tail = ['s_waitcnt lgkmcnt(0)']
            if j == 3:
                tail += [f's_sub_u32 s{sCnt}, s{sCnt}, 1', f's_cmp_lg_u32 s{sCnt}, 0']
            emit_phase([mf(1, u, t) for u, t in order], lds, 6, tail)
        I(f's_cbranch_scc1 {L}')
    I(f's_cmp_ge_u32 s{sType}, 2')
    I(f's_cbranch_scc1 {name}_mainQ')
    loop('A')
    I(f's_branch {name}_post')
    a.label(f'{name}_mainQ')
    loop('Q')
    a.label(f'{name}_post')
    st.mark()
    vNM, vR, vR2 = [8, 10], [12, 14], [16, 18]
    I(f'v_lshlrev_b32 v{vT1}, 2, v{vTok}')
    I(f's_lshl_b32 s{sT}, s{sRP}, 8')
    I(f'v_add_u32 v{vT3}, s{sT}, v{vT1}')
    I(f's_lshl_b32 s{sT}, s{sG}, 9')
    I(f'v_lshlrev_b32 v{vT0}, 4, v{vHk}')
    I(f'v_add_u32 v{vT2}, s{sT}, v{vT0}')
    I(f's_lshl_b32 s{sT}, s{sG}, 7')
    I(f'v_add_u32 v{vT0}, s{sT}, v{vT0}')
    I(f's_lshl_b32 s{sT}, s{sRB}, 2')
    I(f's_lshl_b32 s56, s{sRP}, 1')
    I(f's_add_u32 s56, s56, s{sT}')
    I(f's_add_u32 s57, s56, 1')
    sGT = [56, 57]
    I('s_barrier')
    for t in range(2):
        I(f'ds_read_b32 v{vNM[t]}, v{vT3} offset:{NM_LDS+128*t}')
        I(f'ds_read_b32 v{vR[t]}, v{vT3} offset:{RR_LDS+128*t}')
    CSR = [26, 42]
    def rd_cs(i, dst):
        for rq in range(4):
            if i < 4:
                I(f'ds_read_b128 {vr(dst+4*rq)}, v{vT2} offset:{CS_LDS+128*i+32*rq}')
            else:
                I(f'ds_read_b128 {vr(dst+4*rq)}, v{vT0} offset:{CS_LDS+1024+32*rq}')
    def fix(t, i, cs):
        for r in range(0, 16, 2):
            A = vr(Acc(t, i) + r, 2)
            I(f'v_pk_fma_f32 {A}, {vr(cs+r,2)}, {vr(vNM[t],2)}, {A} op_sel_hi:[1,0,1]')
    rd_cs(0, CSR[0]); rd_cs(1, CSR[1])
    I(f's_cmp_ge_u32 s{sType}, 2')
    I(f's_cbranch_scc1 {name}_epQK')
    for t in range(2):
        I(f's_mul_i32 s{58+t}, s{sGT[t]}, {AREC}')
    I(f's_lshl_b32 s{sT}, s{sCG}, 13')
    I(f's_lshl_b32 s{sT2}, s{sG}, 12')
    I(f's_add_u32 s{sT}, s{sT}, s{sT2}')
    I(f's_add_u32 s{sT}, s{sT}, {AF_OFF + 40*1024}')
    for t in range(2):
        I(f's_add_u32 s{58+t}, s{58+t}, s{sT}')
    I('s_waitcnt lgkmcnt(8)')
    for t in range(2):
        I(f'v_mul_f32 v{vR2[t]}, v{vR[t]}, v{vR[t]}')
    for i in range(4):
        I(f's_waitcnt lgkmcnt({4 if i < 3 else 0})')
        fix(0, i, CSR[i & 1]); fix(1, i, CSR[i & 1])
        if i + 2 < 4:
            rd_cs(i + 2, CSR[i & 1])
        for t in range(2):
            A = Acc(t, i)
            for r in range(8):
                I(f'v_max_f32 v{A+r}, 0, v{A+r}')
            for r in range(0, 8, 2):
                I(f'v_pk_mul_f32 {vr(A+8+r,2)}, {vr(A+8+r,2)}, {vr(vR2[t],2)} op_sel_hi:[1,0]')
            for r in range(0, 8, 2):
                I(f'v_pk_mul_f32 {vr(A+r,2)}, {vr(A+r,2)}, {vr(A+8+r,2)}')
            P = A + 8
            for r in range(4):
                I(f'v_cvt_pk_bf16_f32 v{P+r}, v{A+2*r}, v{A+2*r+1}')
            I(f'buffer_store_dwordx4 {vr(P)}, v{vLane16}, {srd(sWS)}, s{58+t} offen offset:{1024*i}{stmod}')
    I(f's_cmp_eq_u32 s{sType}, 1')
    I(f's_cbranch_scc1 {name}_fin')
    I(f's_lshl_b32 s{sT}, s{sG}, 7')
    I(f'v_add_u32 v{vT1}, s{sT}, v{vT1}')
    vCSV = 20
    I(f'ds_read_b32 v{vCSV}, v{vT1} offset:{CS_LDS+1024}')
    I(f'v_lshlrev_b32 v{vT1}, 4, v{vHk}')
    I(f's_lshl_b32 s{sT}, s{sRP}, 8')
    I(f'v_add_u32 v{vT2}, s{sT}, v{vT1}')
    NMR = [26, 42]; RRR = [58, Acc(0, 0)]
    for t in range(2):
        for rq in range(4):
            I(f'ds_read_b128 {vr(NMR[t]+4*rq)}, v{vT2} offset:{NM_LDS+128*t+32*rq}')
        if t == 1:
            I('s_waitcnt lgkmcnt(8)')
        for rq in range(4):
            if t == 1 and rq in (2,):
                pass
            I(f'ds_read_b128 {vr(RRR[t]+4*rq if t == 0 or rq < 2 else Acc(0,1)+4*(rq-2))}, v{vT2} offset:{RR_LDS+128*t+32*rq}')
    def RR(t, r): return RRR[t] + r if t == 0 or r < 8 else Acc(0, 1) + (r - 8)
    I(f's_lshl_b32 s{sT}, s{sCG}, 6')
    I(f's_lshl_b32 s{sT2}, s{sG}, 5')
    I(f's_add_u32 s{sT}, s{sT}, s{sT2}')
    I(f'v_add_u32 v{vT0}, s{sT}, v{vTok}')
    I(f'v_mul_u32_u24 v{vT1}, 3277, v{vT0}')
    I(f'v_lshrrev_b32 v{vT1}, 16, v{vT1}')
    I(f'v_mul_u32_u24 v{vT3}, 20, v{vT1}')
    I(f'v_sub_u32 v{vT0}, v{vT0}, v{vT3}')
    I(f's_mov_b32 s{sT}, {NT*KVREC}')
    I(f'v_mul_lo_u32 v{vT1}, v{vT1}, s{sT}')
    I(f'v_mul_u32_u24 v{vT3}, 320, v{vHk}')
    I(f'v_lshl_add_u32 v{vT3}, v{vT0}, 4, v{vT3}')
    I(f'v_cmp_eq_u32 vcc, 0, v{vT3}')
    I(f'v_add_u32 v{vT3}, v{vT3}, v{vT1}')
    for t in range(2):
        I(f's_mul_i32 s{58+t}, s{sGT[t]}, {KVREC}')
        I(f's_add_u32 s{58+t}, s{58+t}, {KV_OFF}')
    for t in range(2):
        A = Acc(t, 4)
        I(f's_waitcnt lgkmcnt({8 if t == 0 else 0})')
        for r in range(0, 16, 2):
            I(f'v_pk_fma_f32 {vr(A+r,2)}, {vr(NMR[t]+r,2)}, {vr(vCSV,2)}, {vr(A+r,2)} op_sel_hi:[1,0,1]')
        for r in range(0, 16, 2):
            I(f'v_pk_mul_f32 {vr(A+r,2)}, {vr(A+r,2)}, {vr(RR(t,r),2)}')
        for r in range(8):
            I(f'v_cvt_pk_bf16_f32 v{A+r}, v{A+2*r}, v{A+2*r+1}')
        I(f'buffer_store_dwordx4 {vr(A)}, v{vT3}, {srd(sWS)}, s{58+t} offen offset:1280{stmod}')
        I(f'buffer_store_dwordx4 {vr(A+4)}, v{vT3}, {srd(sWS)}, s{58+t} offen offset:1920{stmod}')
    for r in range(4):
        I(f'v_mov_b32 v{8+r}, 0x3f803f80')
        I(f'v_mov_b32 v{12+r}, 0')
    I(f's_and_saveexec_b64 s[54:55], vcc')
    I(f's_cbranch_execz {name}_noones')
    for t in range(2):
        I(f'buffer_store_dwordx4 {vr(8)}, v{vT3}, {srd(sWS)}, s{58+t} offen offset:2560{stmod}')
        I(f'buffer_store_dwordx4 {vr(12)}, v{vT3}, {srd(sWS)}, s{58+t} offen offset:2576{stmod}')
    a.label(f'{name}_noones')
    I('s_mov_b64 exec, -1')
    I(f's_branch {name}_fin')
    a.label(f'{name}_epQK')
    sREC, sHS = 52, 53
    sBase = [58, 59]
    I(f's_cmp_eq_u32 s{sType}, 3')
    I(f's_movk_i32 s{sREC}, {QREC}')
    I(f's_cselect_b32 s{sREC}, {KVREC}, s{sREC}')
    I(f's_cselect_b32 s{sT2}, {KV_OFF}, {QF_OFF}')
    I(f's_cselect_b32 s54, 1.0, 0x{f2u(QSCALE):08x}')
    I(f's_lshl_b32 s{sHS}, s{sREC}, 6')
    I(f's_and_b32 s{sT}, s{sCG}, 1')
    I(f's_lshl_b32 s{sT}, s{sT}, 4')
    I(f's_mul_i32 s{sT}, s{sT}, s{sHS}')
    I(f's_add_u32 s{sT2}, s{sT2}, s{sT}')
    for t in range(2):
        I(f's_mul_i32 s{sBase[t]}, s{sGT[t]}, s{sREC}')
        I(f's_add_u32 s{sBase[t]}, s{sBase[t]}, s{sT2}')
    vFull, vSplit = vEP, vEP + 1
    I(f'v_mul_lo_u32 v{vT1}, v{vHk}, s{sREC}')
    I(f'v_lshl_add_u32 v{vFull}, v{vTok}, 4, v{vT1}')
    I(f'v_mul_lo_u32 v{vT1}, v{vHk}, s{sHS}')
    I(f'v_lshl_add_u32 v{vSplit}, v{vTok}, 3, v{vT1}')
    I('s_waitcnt lgkmcnt(8)')
    for t in range(2):
        I(f'v_mul_f32 v{vR[t]}, s54, v{vR[t]}')
    I(f's_cmp_eq_u32 s{sG}, 1')
    I(f's_cbranch_scc1 {name}_epQK1')
    for g in range(2):
        if g == 1:
            a.label(f'{name}_epQK1')
        for i in range(5):
            b = 4 * g + i if i < 4 else 8 + g
            I(f's_waitcnt lgkmcnt({4 if i < 4 else 0})')
            fix(0, i, CSR[i & 1]); fix(1, i, CSR[i & 1])
            if i + 2 < 5:
                rd_cs(i + 2, CSR[i & 1])
            for t in range(2):
                A = Acc(t, i)
                for r in range(0, 16, 2):
                    I(f'v_pk_mul_f32 {vr(A+r,2)}, {vr(A+r,2)}, {vr(vR[t],2)} op_sel_hi:[1,0]')
            A0, A1 = Acc(0, i), Acc(1, i)
            for rq in range(4):
                I(f'v_cvt_pk_bf16_f32 v{A0+4*rq}, v{A0+4*rq}, v{A0+4*rq+1}')
                I(f'v_cvt_pk_bf16_f32 v{A0+4*rq+1}, v{A0+4*rq+2}, v{A0+4*rq+3}')
                I(f'v_cvt_pk_bf16_f32 v{A0+4*rq+2}, v{A1+4*rq}, v{A1+4*rq+1}')
                I(f'v_cvt_pk_bf16_f32 v{A0+4*rq+3}, v{A1+4*rq+2}, v{A1+4*rq+3}')
            for rq in range(4):
                for t in range(2):
                    I(f'v_dot2_f32_bf16 v{A1+2*rq+t}, v{A0+4*rq+2*t}, v{A0+4*rq+2*t}, 0')
            for rq in range(4):
                for t in range(2):
                    I(f'v_dot2c_f32_bf16 v{A1+2*rq+t}, v{A0+4*rq+2*t+1}, v{A0+4*rq+2*t+1}')
            for rq in range(4):
                G0 = 8 * b + 2 * rq
                c, hp = (G0 // 2) % 5, G0 // 10
                Q = A0 + 4 * rq
                if c == 2:
                    for t in range(2):
                        I(f's_mul_i32 s{sT}, s{sHS}, {2*hp}')
                        I(f's_add_u32 s{sT}, s{sT}, s{sBase[t]}')
                        I(f'buffer_store_dwordx2 {vr(Q+2*t,2)}, v{vSplit}, {srd(sWS)}, s{sT} offen offset:1024{stmod}')
                else:
                    I(f'v_permlane32_swap_b32 v{Q}, v{Q+2}')
                    I(f'v_permlane32_swap_b32 v{Q+1}, v{Q+3}')
                    head = 2 * hp + (1 if c >= 3 else 0)
                    hk = c if c < 2 else c - 3
                    I(f's_mul_i32 s{sT}, s{sHS}, {head}')
                    I(f's_add_u32 s{sT}, s{sT}, s{sBase[0]}')
                    I(f'buffer_store_dwordx4 {vr(Q)}, v{vFull}, {srd(sWS)}, s{sT} offen offset:{512*hk}{stmod}')
        if g == 0:
            I(f's_branch {name}_epQKn')
    a.label(f'{name}_epQKn')
    I(f's_cmp_eq_u32 s{sType}, 2')
    I(f's_cbranch_scc1 {name}_fin')
    def KN(t, k): return Acc(1, k >> 2) + 2 * (k & 3) + t
    def K2(t, k): return Acc(1, k >> 2) + 8 + 2 * (k & 3) + t
    I(f'v_and_b32 v{vT0}, 1, v0')
    I(f'v_cmp_eq_u32 s[52:53], 0, v{vT0}')
    I(f'v_and_b32 v{vT0}, 2, v0')
    I(f'v_cmp_eq_u32 s[54:55], 0, v{vT0}')
    for n, msk, dp in ((10, 's[52:53]', 'quad_perm:[1,0,3,2]'), (5, 's[54:55]', 'quad_perm:[2,3,0,1]')):
        for t in range(2):
            for k in range(n):
                I(f'v_cndmask_b32 v{K2(t,k)}, v{KN(t,k)}, v{KN(t,k+n)}, {msk}')
                I(f'v_cndmask_b32 v{KN(t,k)}, v{KN(t,k+n)}, v{KN(t,k)}, {msk}')
        for t in range(2):
            for k in range(n):
                I(f'v_max_f32_dpp v{KN(t,k)}, v{K2(t,k)}, v{KN(t,k)} {dp} row_mask:0xf bank_mask:0xf')
    for dp in ('row_ror:4', 'row_ror:8'):
        for t in range(2):
            for k in range(5):
                I(f'v_max_f32_dpp v{KN(t,k)}, v{KN(t,k)}, v{KN(t,k)} {dp} row_mask:0xf bank_mask:0xf')
    for t in range(2):
        for k in range(5):
            I(f'v_mov_b32 v{K2(t,k)}, v{KN(t,k)}')
    for t in range(2):
        for k in range(5):
            I(f'v_permlane16_swap_b32 v{K2(t,k)}, v{KN(t,k)}')
    for t in range(2):
        for k in range(5):
            I(f'v_max_f32 v{KN(t,k)}, v{KN(t,k)}, v{K2(t,k)}')
    I(f'v_lshrrev_b32 v{vT0}, 2, v{vTok}')
    for k in range(1, 5):
        I(f'v_cmp_eq_u32 vcc, {k}, v{vT0}')
        for t in range(2):
            I(f'v_cndmask_b32 v{KN(t,0)}, v{KN(t,0)}, v{KN(t,k)}, vcc')
    I(f'v_bfe_u32 v{vT1}, v{vTok}, 1, 1')
    I(f'v_mul_u32_u24 v{vT1}, 5, v{vT1}')
    I(f'v_add_u32 v{vT0}, v{vT0}, v{vT1}')
    I(f'v_and_b32 v{vT1}, 1, v{vTok}')
    I(f'v_mul_u32_u24 v{vT1}, 10, v{vT1}')
    I(f'v_add_u32 v{vT0}, v{vT0}, v{vT1}')
    I(f'v_lshrrev_b32 v{vT2}, 2, v{vT0}')
    I(f's_lshl_b32 s{sT}, s{sG}, 2')
    I(f'v_add_u32 v{vT2}, s{sT}, v{vT2}')
    I(f's_add_u32 s{sT}, s{sG}, 8')
    I(f'v_mov_b32 v{vT1}, s{sT}')
    I(f'v_cmp_gt_u32 vcc, 16, v{vT0}')
    I(f'v_cndmask_b32 v{vT2}, v{vT1}, v{vT2}, vcc')
    I(f'v_and_b32 v{vT1}, 3, v{vT0}')
    I(f'v_lshlrev_b32 v{vT1}, 1, v{vT1}')
    I(f'v_lshl_add_u32 v{vT2}, v{vT2}, 3, v{vT1}')
    I(f'v_add_u32 v{vT2}, v{vT2}, v{vHk}')
    I(f'v_lshlrev_b32 v{vT2}, 8, v{vT2}')
    I(f's_and_b32 s{sT}, s{sCG}, 1')
    I(f's_mul_i32 s{sT}, s{sT}, {80*256}')
    I(f's_add_u32 s{sT}, s{sT}, {KN_OFF}')
    for t in range(2):
        I(f's_lshl_b32 s{58+t}, s{sGT[t]}, 2')
        I(f's_add_u32 s{58+t}, s{58+t}, s{sT}')
    I(f's_mov_b32 exec_lo, 0xfffff')
    I(f's_mov_b32 exec_hi, 0xfffff')
    for t in range(2):
        I(f'buffer_store_dword v{KN(t,0)}, v{vT2}, {srd(sWS)}, s{58+t} offen{stmod}')
    I('s_mov_b64 exec, -1')
    a.label(f'{name}_fin')
    I('s_waitcnt vmcnt(0)') if stamps else None
    st.end(sWave, 4, 5)
    a.label(f'{name}_end')
    I('s_endpgm')
    return a
CODEKB = 20
```

```python
from asmlib import Asm
from layout import *
from stamp import Stamps

RSTR = 400
K3_LDS = 4 * 64 * RSTR

def gen_gemm3(name, stamps=False, kidx=2, NR=6):
    a = Asm()
    I = a.I
    st = Stamps(a, stamps, kidx)
    def vr(b, n=4): return f'v[{b}:{b+n-1}]'
    vO = [1, 2, 3]
    vT0, vT1, vT2, vTid = 4, 5, 6, 7
    vG = [8, 9, 10]
    vX = 12
    RING = 24
    ACC = RING + 20 * NR
    def Af(s, t): return RING + 20 * s + 4 * t
    def Wf(s, j): return RING + 20 * s + 8 + 4 * j
    def Acc(t, j): return ACC + 48 * t + 16 * j
    sA, sW, sX, sO = 8, 12, 16, 20
    sWave, sRB, sCB, sAo, sWo, sIt, sT, sCnt = 3, 24, 25, 26, 27, 28, 29, 30
    a.label(name)
    I('s_cmp_ge_u32 s2, 256')
    I(f's_cbranch_scc1 {name}_end')
    st.start()
    I(f's_load_dwordx2 s[{sA}:{sA+1}], s[0:1], {KA_WS}')
    I(f's_load_dwordx2 s[{sX}:{sX+1}], s[0:1], {KA_X}')
    I(f's_load_dwordx2 s[{sO}:{sO+1}], s[0:1], {KA_OUT}')
    I('s_and_b32 s6, s2, 7')
    I('s_lshr_b32 s7, s2, 3')
    I(f's_lshr_b32 s{sCB}, s7, 3')
    I('s_and_b32 s4, s6, 1')
    I('s_lshl_b32 s4, s4, 2')
    I(f's_add_u32 s{sCB}, s{sCB}, s4')
    I(f's_cmp_ge_u32 s{sCB}, 7')
    I(f's_cbranch_scc1 {name}_end')
    I(f'v_lshrrev_b32 v{vT0}, 6, v0')
    I(f'v_mov_b32 v{vTid}, v0')
    I('v_and_b32 v0, 63, v0')
    I(f'v_readfirstlane_b32 s{sWave}, v{vT0}')
    I(f'v_lshlrev_b32 v{vO[0]}, 4, v0')
    I(f'v_add_u32 v{vO[1]}, {AREC}, v{vO[0]}')
    I(f'v_add_u32 v{vO[2]}, {2*AREC}, v{vO[0]}')
    I(f's_lshr_b32 s{sRB}, s6, 1')
    I(f's_lshl_b32 s{sRB}, s{sRB}, 3')
    I('s_and_b32 s7, s7, 7')
    I(f's_add_u32 s{sRB}, s{sRB}, s7')
    I(f's_lshl_b32 s{sT}, s{sWave}, 10')
    I(f's_mul_i32 s{sAo}, s{sRB}, {2*AREC}')
    I(f's_add_u32 s{sAo}, s{sAo}, s{sT}')
    I(f's_add_u32 s{sAo}, s{sAo}, {AF_OFF}')
    I(f's_mul_i32 s{sWo}, s{sCB}, {3*AREC}')
    I(f's_add_u32 s{sWo}, s{sWo}, s{sT}')
    I(f's_add_u32 s{sWo}, s{sWo}, {WF_OFF}')
    I(f's_mov_b32 s{sA+2}, {WS_END}')
    I(f's_mov_b32 s{sA+3}, 0x20000')
    I(f's_mov_b32 s{sIt}, 0')
    I('s_waitcnt lgkmcnt(0)')
    srdA = f's[{sA}:{sA+3}]'
    def loads(s, first=False):
        if not first:
            I(f's_cmp_ge_u32 s{sIt}, {34-NR}')
            I(f's_cselect_b32 s{sA+2}, 0, s{sA+2}')
            I(f's_add_u32 s{sIt}, s{sIt}, 1')
        for t in range(2):
            I(f'buffer_load_dwordx4 {vr(Af(s,t))}, v{vO[t]}, {srdA}, s{sAo} offen')
        for j in range(3):
            I(f'buffer_load_dwordx4 {vr(Wf(s,j))}, v{vO[j]}, {srdA}, s{sWo} offen')
        I(f's_add_u32 s{sAo}, s{sAo}, 4096')
        I(f's_add_u32 s{sWo}, s{sWo}, 4096')
    for s in range(NR):
        loads(s, True)
    I(f'v_lshrrev_b32 v{vT0}, 2, v{vTid}')
    I(f'v_and_b32 v{vT1}, 3, v{vTid}')
    I(f'v_mul_u32_u24 v{vT2}, 1280, v{vT0}')
    I(f'v_mul_u32_u24 v{vG[0]}, 48, v{vT1}')
    I(f's_mul_i32 s{sT}, s{sCB}, 192')
    I(f'v_add_u32 v{vG[0]}, s{sT}, v{vG[0]}')
    I(f'v_mov_b32 v{vX}, 0x40000000')
    for j in (2, 1, 0):
        I(f'v_add_u32 v{vG[j]}, {16*j}, v{vG[0]}')
        I(f'v_cmp_gt_u32 vcc, 1280, v{vG[j]}')
        I(f'v_add_u32 v{vG[j]}, v{vG[j]}, v{vT2}')
        I(f'v_cndmask_b32 v{vG[j]}, v{vX}, v{vG[j]}, vcc')
    I(f's_mul_i32 s4, s{sRB}, {64*1280}')
    I(f's_mov_b32 s{sX+2}, {S*D*2}')
    I(f's_mov_b32 s{sX+3}, 0x20000')
    I(f's_mov_b32 s{sO+2}, {S*D*2}')
    I(f's_mov_b32 s{sO+3}, 0x20000')
    for j in range(3):
        I(f'buffer_load_dwordx4 {vr(vX+4*j)}, v{vG[j]}, s[{sX}:{sX+3}], s4 offen')
    I(f'v_mul_u32_u24 v{vT0}, {RSTR}, v{vT0}')
    I(f'v_mul_u32_u24 v{vT1}, 96, v{vT1}')
    I(f'v_add_u32 v{vTid}, v{vT0}, v{vT1}')
    I(f'v_and_b32 v{vT0}, 31, v0')
    I(f'v_mul_u32_u24 v{vT0}, {RSTR}, v{vT0}')
    I(f'v_lshrrev_b32 v{vT1}, 5, v0')
    I(f'v_lshl_add_u32 v{vT0}, v{vT1}, 4, v{vT0}')
    I(f's_mul_i32 s{sT}, s{sWave}, {64*RSTR}')
    I(f'v_add_u32 v{vT0}, s{sT}, v{vT0}')
    for r in range(96):
        I(f'v_mov_b32 v{ACC+r}, 0')
    I(f's_mov_b32 s{sCnt}, {36 // NR}')
    st.mark()
    a.I('.p2align 3')
    a.label(f'{name}_loop')
    for s in range(NR):
        I(f's_waitcnt vmcnt({5*(NR-1)})')
        for j in range(3):
            for t in range(2):
                acc = vr(Acc(t, j), 16)
                I(f'v_mfma_f32_32x32x16_bf16 {acc}, {vr(Wf(s,j))}, {vr(Af(s,t))}, {acc}')
        loads(s)
    I(f's_sub_u32 s{sCnt}, s{sCnt}, 1')
    I(f's_cmp_lg_u32 s{sCnt}, 0')
    I(f's_cbranch_scc1 {name}_loop')
    st.mark()
    for t in range(2):
        for j in range(3):
            for rq in range(4):
                I(f'ds_write_b128 v{vT0}, {vr(Acc(t,j)+4*rq)} offset:{32*RSTR*t+128*j+32*rq}')
    I(f'v_add_u32 v{vT1}, {2*64*RSTR}, v{vTid}')
    I('s_waitcnt vmcnt(0) lgkmcnt(0)')
    I('s_barrier')
    R = RING
    for w in range(4):
        for j in range(6):
            I(f'ds_read_b128 {vr(R+24*w+4*j)}, v{vTid if w < 2 else vT1} offset:{(w&1)*64*RSTR+16*j}')
        if w == 1:
            I('s_waitcnt lgkmcnt(6)')
    U = ACC
    for k in range(12):
        I(f'v_lshlrev_b32 v{U+2*k}, 16, v{vX+k}')
        I(f'v_and_b32 v{U+2*k+1}, 0xffff0000, v{vX+k}')
    I('s_waitcnt lgkmcnt(12)')
    for r in range(0, 24, 2):
        I(f'v_pk_add_f32 {vr(R+r,2)}, {vr(R+r,2)}, {vr(R+24+r,2)}')
    I('s_waitcnt lgkmcnt(0)')
    for r in range(0, 24, 2):
        I(f'v_pk_add_f32 {vr(R+48+r,2)}, {vr(R+48+r,2)}, {vr(R+72+r,2)}')
    for r in range(0, 24, 2):
        I(f'v_pk_add_f32 {vr(R+r,2)}, {vr(R+r,2)}, {vr(R+48+r,2)}')
    for r in range(0, 24, 2):
        I(f'v_pk_add_f32 {vr(R+r,2)}, {vr(R+r,2)}, {vr(U+r,2)}')
    for k in range(12):
        I(f'v_cvt_pk_bf16_f32 v{U+k}, v{R+2*k}, v{R+2*k+1}')
    for j in range(3):
        I(f'buffer_store_dwordx4 {vr(U+4*j)}, v{vG[j]}, s[{sO}:{sO+3}], s4 offen')
    st.end(sWave, 4, 5)
    a.label(f'{name}_end')
    I('s_endpgm')
    return a
```

```python
from build import assemble
from k_gemm1 import gen_gemm1, K1_LDS
from k_fused2 import gen_k2
from k_gemm3 import gen_gemm3, K3_LDS
import sys
def build(out, st, helper=False, **kw):
    k2 = gen_k2('k2_kernel', stamps=st, next_kernel='k3_kernel', helper=helper)
    assemble([('k1_kernel', gen_gemm1('k1_kernel', stamps=st, **kw), 256, 512, K1_LDS),
              ('k2_kernel', k2, 256, 320 if helper else 256, 0),
              ('k3_kernel', gen_gemm3('k3_kernel', stamps=st), 256, 256, K3_LDS)], out)
if len(sys.argv) > 1:
    build('full_st.s', True)
    build('full_sc1.s', True, stmod=' sc1')
    build('full_nt.s', True, stmod=' nt')
    build('full_sc1nt.s', True, stmod=' sc1 nt')
else:
    build('parallel_sum__softmax_full_mha__glu_gated_reglu__prompt.s', False)
```

```python
from asmlib import Asm
from layout import *
from stamp import Stamps
import struct

def f2u(f): return struct.unpack('<I', struct.pack('<f', f))[0]

def gen_attn(name, NS=4, stamps=False, kidx=1, a=None, entry=True, bar=False, stmod='', endstamp=True):
    if a is None:
        a = Asm()
    I = a.I
    st = Stamps(a, stamps, kidx)
    vLane16, vTok8, vV0, vV1, vTmp, vTmp2, vTok16 = 1, 2, 3, 4, 5, 6, 7
    vKb = 22
    QA = [8, 16]; QB = [12, 20]
    S_ = [24, 40]
    P_ = [56, 64]
    O_ = [72, 88]
    KV0 = 104
    def KA(s): return KV0 + 14 * s
    def V0(s): return KV0 + 14 * s + 4
    def V1(s): return KV0 + 14 * s + 8
    def KB(s): return KV0 + 14 * s + 12
    vEND = KV0 + 14 * NS
    vM = [vEND, vEND + 1]
    sWS = 8
    sHead, sQT, sKV, sCnt, sKV0, sKmax, sFlag, sT = 12, 13, 14, 16, 17, 18, 19, 20
    sLo = 24
    sQ = 26
    def vr(b, n=4): return f'v[{b}:{b+n-1}]'
    def mfma(d, x, y, c=None):
        cc = vr(d, 16) if c is None else c
        return f'v_mfma_f32_32x32x16_bf16 {vr(d,16)}, {vr(x)}, {vr(y)}, {cc}'
    def mfma8(d, x, y):
        return f'v_mfma_f32_32x32x8bf16_1k {vr(d,16)}, {vr(x,2)}, {vr(y,2)}, {vr(d,16)}'
    srd = f's[{sWS}:{sWS+3}]'
    sP = 28

    if entry:
        a.label(name)
        I('s_cmp_ge_u32 s2, 256')
        I(f's_cbranch_scc1 {name}_end')
    st.start()
    I(f's_load_dwordx2 s[{sWS}:{sWS+1}], s[0:1], {KA_WS}')
    I(f'v_lshrrev_b32 v{vTmp}, 6, v0')
    I('v_and_b32 v0, 63, v0')
    I(f'v_readfirstlane_b32 s3, v{vTmp}')
    I(f's_and_b32 s6, s2, 7')
    I(f's_lshr_b32 s7, s2, 3')
    I(f's_lshr_b32 s{sHead}, s7, 3')
    I(f's_lshl_b32 s6, s6, 2')
    I(f's_add_u32 s{sHead}, s{sHead}, s6')
    I(f's_and_b32 s7, s7, 7')
    I(f's_lshl_b32 s{sQT}, s7, 3')
    I(f's_lshl_b32 s6, s3, 1')
    I(f's_add_u32 s{sQT}, s{sQT}, s6')
    I(f'v_lshlrev_b32 v{vLane16}, 4, v0')
    I(f'v_and_b32 v{vTmp}, 31, v0')
    I(f'v_lshlrev_b32 v{vTok8}, 3, v{vTmp}')
    I(f's_mul_i32 s{sKV0}, s{sHead}, {NT*KVREC}')
    I(f's_add_u32 s{sKV0}, s{sKV0}, {KV_OFF}')
    I(f's_lshl_b32 s{sQ}, s{sHead}, 6')
    I(f's_add_u32 s{sQ}, s{sQ}, s{sQT}')
    I(f's_mul_i32 s{sQ}, s{sQ}, {QREC}')
    I(f's_mul_i32 s{sT}, s{sHead}, {5*256}')
    I(f's_add_u32 s{sT}, s{sT}, {KN_OFF}')
    I(f'v_lshlrev_b32 v{vTmp2}, 2, v0')
    I(f's_mov_b32 s{sWS+2}, {WS_SIZE}')
    I(f's_mov_b32 s{sWS+3}, 0x20000')
    I(f'v_lshlrev_b32 v{vTok16}, 4, v{vTmp}')
    I('s_waitcnt lgkmcnt(0)')
    for q in range(2):
        I(f'buffer_load_dwordx4 {vr(QA[q])}, v{vLane16}, {srd}, s{sQ} offen offset:{q*QREC}')
        I(f'buffer_load_dwordx2 {vr(QB[q],2)}, v{vTok8}, {srd}, s{sQ} offen offset:{q*QREC+1024}')
    for g in range(5):
        I(f'buffer_load_dword v{S_[1]+g}, v{vTmp2}, {srd}, s{sT} offen offset:{g*256}')
    I(f'v_lshrrev_b32 v{vTmp2}, 5, v0')
    I(f'v_mul_u32_u24 v{vTmp2}, 320, v{vTmp2}')
    I(f'v_add_u32 v{vV0}, v{vTok16}, v{vTmp2}')
    I(f'v_and_b32 v{vTmp2}, 27, v0')
    I(f'v_cmp_eq_u32 vcc, 24, v{vTmp2}')
    I(f'v_mov_b32 v{vTmp2}, {1280+16}')
    I(f'v_mov_b32 v{vV1}, 1280')
    I(f'v_cndmask_b32 v{vTmp2}, v{vTmp2}, v{vV1}, vcc')
    I(f'v_cmp_gt_u32 vcc, 20, v{vTmp}')
    I(f'v_subrev_u32 v{vV1}, 640, v{vTmp2}')
    I(f'v_cndmask_b32 v{vV1}, v{vV1}, v{vV0}, vcc')
    I(f'v_cndmask_b32 v{vV0}, v{vTmp2}, v{vV0}, vcc')
    I(f's_mov_b32 s{sLo}, -1')
    I(f's_mov_b32 s{sLo+1}, 0')
    I(f's_mov_b32 s{sFlag}, 0')
    if bar:
        I('s_barrier')

    I(f'v_add_u32 v{vKb}, 1024, v{vTok8}')
    I(f'v_mov_b32 v{vTmp2}, 2560')
    I(f'v_cndmask_b32 v{vKb}, v{vTmp2}, v{vKb}, s[{sLo}:{sLo+1}]')
    sp = f's[{sP}:{sP+1}]'
    def ldKa(s, off): return f'global_load_dwordx4 {vr(KA(s))}, v{vLane16}, {sp} offset:{off}'
    def ldKb(s, off): return f'global_load_dwordx2 {vr(KB(s),2)}, v{vKb}, {sp if off == 0 else sp2}'
    def ldV0(s): return f'global_load_dwordx4 {vr(V0(s))}, v{vV0}, {sp} offset:1280'
    def ldV1(s): return f'global_load_dwordx4 {vr(V1(s))}, v{vV1}, {sp} offset:1920'
    sp2 = sp + f' offset:{KVREC - 1024}'
    I(f'v_subrev_u32 v{vKb}, 0, v{vKb}')
    def ldKb(s, off):
        return f'global_load_dwordx2 {vr(KB(s),2)}, v{vKb}, {sp} offset:{off}'
    adv = f's_add_u32 s{sP}, s{sP}, {KVREC}\ns_addc_u32 s{sP+1}, s{sP+1}, 0'
    setp = f's_add_u32 s{sP}, s{sWS}, s{sKV0}\ns_addc_u32 s{sP+1}, s{sWS+1}, 0'

    a.label(f'{name}_restart')
    I(setp)
    I(ldKa(0, 0)); I(ldKb(0, 0))
    for s in range(NS - 1):
        I(ldV0(s)); I(ldV1(s)); I(ldKa(s + 1, KVREC)); I(ldKb(s + 1, KVREC)); I(adv)
    nkv = 2 + 4 * (NS - 1)
    for q in range(2):
        for r in range(16):
            I(f'v_mov_b32 v{O_[q]+r}, 0')
    I(f's_mov_b32 s{sCnt}, {NT // NS}')
    I(f's_cmp_lg_u32 s{sFlag}, 0')
    I(f's_cbranch_scc1 {name}_haveq')
    I(f's_waitcnt vmcnt({nkv})')
    kn = S_[1]
    I(f'v_add_f32 v{kn}, v{kn}, v{kn+1}')
    I(f'v_add_f32 v{kn+2}, v{kn+2}, v{kn+3}')
    I(f'v_add_f32 v{kn}, v{kn}, v{kn+4}')
    I(f'v_add_f32 v{kn}, v{kn}, v{kn+2}')
    T = [S_[0], S_[0] + 2]; U = [S_[0] + 1, S_[0] + 3]; W = [S_[0] + 4, S_[0] + 5]
    for q in range(2):
        I(f'v_mov_b32 v{T[q]}, 0')
        I(f'v_mov_b32 v{W[q]}, 0')
    dpps = ['quad_perm:[1,0,3,2]', 'quad_perm:[2,3,0,1]', 'row_half_mirror', 'row_mirror']
    for r in range(4):
        I(f'v_max_f32_dpp v{kn}, v{kn}, v{kn} {dpps[r]} row_mask:0xf bank_mask:0xf')
        for q in range(2):
            I(f'v_dot2c_f32_bf16 v{T[q]}, v{QA[q]+r}, v{QA[q]+r}')
    for r in range(2):
        for q in range(2):
            I(f'v_dot2c_f32_bf16 v{W[q]}, v{QB[q]+r}, v{QB[q]+r}')
    I(f'v_readlane_b32 s{sKmax}, v{kn}, 0')
    I(f'v_readlane_b32 s6, v{kn}, 16')
    I(f'v_readlane_b32 s7, v{kn}, 32')
    I(f'v_readlane_b32 s{sT}, v{kn}, 48')
    for q in range(2):
        I(f'v_mov_b32 v{U[q]}, v{T[q]}')
    I(f's_max_u32 s{sKmax}, s{sKmax}, s6')
    I(f's_max_u32 s7, s7, s{sT}')
    I(f's_max_u32 s{sKmax}, s{sKmax}, s7')
    for q in range(2):
        I(f'v_permlane32_swap_b32 v{U[q]}, v{T[q]}')
    for q in range(2):
        I(f'v_add_f32 v{T[q]}, v{T[q]}, v{U[q]}')
    for q in range(2):
        I(f'v_add_f32 v{T[q]}, v{T[q]}, v{W[q]}')
    for q in range(2):
        I(f'v_mul_f32 v{T[q]}, s{sKmax}, v{T[q]}')
    for q in range(2):
        I(f'v_sqrt_f32 v{T[q]}, v{T[q]}')
    for q in range(2):
        I(f'v_cndmask_b32 v{QB[q]+1}, 0, v{QB[q]+1}, s[{sLo}:{sLo+1}]')
    for q in range(2):
        I(f'v_mul_f32 v{T[q]}, 0x{f2u(-(1.0 + 2.0**-7)):08x}, v{T[q]}')
    for q in range(2):
        I(f'v_cvt_pk_bf16_f32 v{T[q]}, v{T[q]}, 0')
    for q in range(2):
        I(f'v_cndmask_b32 v{QB[q]}, v{T[q]}, v{QB[q]}, s[{sLo}:{sLo+1}]')
    a.label(f'{name}_haveq')
    I(f's_waitcnt vmcnt({nkv - 2})')
    I(mfma(S_[0], KA(0), QA[0], '0'))
    I(mfma8(S_[0], KB(0), QB[0]))
    st.mark()
    I('s_nop 9')
    I(f'v_exp_f32 v{S_[0]}, v{S_[0]}')
    I(f'v_exp_f32 v{S_[0]+1}, v{S_[0]+1}')
    a.I('.p2align 3')
    a.label(f'{name}_loop')
    W1 = 4 * NS - 6
    for s in range(NS):
        for q in range(2):
            Sb, Pb = S_[q], P_[q]
            e = [f'v_exp_f32 v{Sb+r}, v{Sb+r}' for r in range(16)]
            c = [f'v_cvt_pk_bf16_f32 v{Pb+r}, v{Sb+2*r}, v{Sb+2*r+1}' for r in range(8)]
            nq = 1 - q
            ns = s if q == 0 else (s + 1) % NS
            M2 = mfma(S_[nq], KA(ns), QA[nq], '0')
            M3 = mfma8(S_[nq], KB(ns), QB[nq])
            M4 = mfma(O_[q], V0(s), Pb)
            M1n = mfma(O_[q], V1(s), Pb + 4)
            ps = (s - 1) % NS
            if q == 0:
                f1, f2, f3, f4 = ldV0(ps), ldV1(ps), f's_waitcnt vmcnt({W1})', None
            else:
                f1, f2, f3, f4 = ldKa(s, KVREC), ldKb(s, KVREC), None, adv
            if s == NS - 1 and q == 0:
                f4 = f's_sub_u32 s{sCnt}, s{sCnt}, 1'
            if s == NS - 1 and q == 1:
                f4 = adv + f'\ns_cmp_lg_u32 s{sCnt}, 0'
            if not (s == 0 and q == 0) or True:
                I(f1)
            for r in range(2, 6): I(e[r])
            I(M2); I(f2)
            I(e[6]); I(e[7])
            for r in range(4): I(c[r])
            I(M3)
            if f3: I(f3)
            for r in range(8, 12): I(e[r])
            I(M4)
            if f4: I(f4)
            for r in range(12, 16): I(e[r])
            for r in range(4, 8): I(c[r])
            I(f'v_exp_f32 v{S_[nq]}, v{S_[nq]}')
            I(f'v_exp_f32 v{S_[nq]+1}, v{S_[nq]+1}')
            I(M1n)
    I(f's_cbranch_scc1 {name}_loop')
    st.mark()
    I(f's_cmp_lg_u32 s{sFlag}, 0')
    I(f's_cbranch_scc1 {name}_store')
    I(f'v_mov_b32 v{vTmp}, 0x{f2u(2.0**-60):08x}')
    I(f'v_cmp_ge_f32 vcc, v{O_[0]+12}, v{vTmp}')
    I(f'v_cmp_ge_f32 s[6:7], v{O_[1]+12}, v{vTmp}')
    I('s_and_b64 s[6:7], s[6:7], vcc')
    I('s_cmp_eq_u64 s[6:7], -1')
    I(f's_cbranch_scc1 {name}_store')
    I('s_waitcnt vmcnt(0)')
    for q in range(2):
        I(f'v_cndmask_b32 v{QB[q]}, 0, v{QB[q]}, s[{sLo}:{sLo+1}]')
        I(f'v_cndmask_b32 v{QB[q]+1}, 0, v{QB[q]+1}, s[{sLo}:{sLo+1}]')
        I(f'v_mov_b32 v{vM[q]}, 0xff800000')
    I(setp)
    I(f's_mov_b32 s{sCnt}, {NT}')
    a.label(f'{name}_maxloop')
    I(ldKa(0, 0)); I(ldKb(0, 0)); I(adv)
    I('s_waitcnt vmcnt(0)')
    for q in range(2):
        I(mfma(S_[q], KA(0), QA[q], '0'))
        I(mfma8(S_[q], KB(0), QB[q]))
    for q in range(2):
        for r in range(0, 16, 2):
            I(f'v_max3_f32 v{vM[q]}, v{S_[q]+r}, v{S_[q]+r+1}, v{vM[q]}')
    I(f's_sub_u32 s{sCnt}, s{sCnt}, 1')
    I(f's_cmp_lg_u32 s{sCnt}, 0')
    I(f's_cbranch_scc1 {name}_maxloop')
    for q in range(2):
        m, t, u, w = vM[q], S_[0], S_[0] + 1, S_[0] + 2
        I(f'v_mov_b32 v{t}, v{m}')
        I(f'v_permlane32_swap_b32 v{t}, v{m}')
        I(f'v_max_f32 v{m}, v{m}, v{t}')
        I(f'v_sub_f32 v{m}, 0, v{m}')
        I(f'v_and_b32 v{t}, 0xffff0000, v{m}')
        I(f'v_sub_f32 v{m}, v{m}, v{t}')
        I(f'v_and_b32 v{u}, 0xffff0000, v{m}')
        I(f'v_sub_f32 v{m}, v{m}, v{u}')
        I(f'v_lshrrev_b32 v{t}, 16, v{t}')
        I(f'v_or_b32 v{t}, v{t}, v{u}')
        I(f'v_lshrrev_b32 v{w}, 16, v{m}')
        I(f'v_cndmask_b32 v{QB[q]}, v{t}, v{QB[q]}, s[{sLo}:{sLo+1}]')
        I(f'v_cndmask_b32 v{QB[q]+1}, v{w}, v{QB[q]+1}, s[{sLo}:{sLo+1}]')
    I(f's_mov_b32 s{sFlag}, 1')
    I(f's_branch {name}_restart')
    a.label(f'{name}_store')
    I(f'v_lshrrev_b32 v{vTmp}, 5, v0')
    I(f's_mul_i32 s6, s{sHead}, 5')
    I(f'v_add_u32 v{vTmp}, s6, v{vTmp}')
    offs = [S_[0], S_[0] + 1, S_[0] + 2]
    for q in range(2):
        I(f'v_rcp_f32 v{S_[1]+q}, v{O_[q]+12}')
    for rq in range(3):
        g, o, t = S_[0] + 4, offs[rq], S_[0] + 5
        I(f'v_add_u32 v{g}, {2*rq}, v{vTmp}')
        I(f'v_lshrrev_b32 v{o}, 2, v{g}')
        I(f'v_lshlrev_b32 v{o}, 10, v{o}')
        I(f'v_and_b32 v{t}, 1, v{g}')
        I(f'v_lshl_add_u32 v{o}, v{t}, 9, v{o}')
        I(f'v_bfe_u32 v{t}, v{g}, 1, 1')
        I(f'v_lshlrev_b32 v{t}, 3, v{t}')
        I(f'v_add3_u32 v{o}, v{o}, v{t}, v{vTok16}')
    I(f's_mul_i32 s6, s{sQT}, {AREC}')
    I(f's_add_u32 s6, s6, {AF_OFF}')
    I(f's_add_u32 s7, s6, {AREC}')
    for q in range(2):
        rl = S_[1] + q
        for rq in range(3):
            for r in range(4 * rq, 4 * rq + 4):
                I(f'v_mul_f32 v{O_[q]+r}, v{O_[q]+r}, v{rl}')
            for r in range(2 * rq, 2 * rq + 2):
                I(f'v_cvt_pk_bf16_f32 v{P_[q]+r}, v{O_[q]+2*r}, v{O_[q]+2*r+1}')
            if rq < 2:
                I(f'buffer_store_dwordx2 {vr(P_[q]+2*rq,2)}, v{offs[rq]}, {srd}, s{6+q} offen{stmod}')
    I(f's_mov_b64 exec, s[{sLo}:{sLo+1}]')
    for q in range(2):
        I(f'buffer_store_dwordx2 {vr(P_[q]+4,2)}, v{offs[2]}, {srd}, s{6+q} offen{stmod}')
    I('s_mov_b64 exec, -1')
    if endstamp:
        st.end(3, 4, 5)
    a.st = st
    if entry:
        a.label(f'{name}_end')
        I('s_endpgm')
    return a
```

```python
from asmlib import Asm
from layout import *
from k_attn import gen_attn
from k_gemm3 import gen_gemm3
from common import code_prefetch

def gen_k23(name, stamps=False, kidx=1, NS=4, NR=6):
    a = Asm()
    I = a.I
    a.label(name)
    I('s_cmp_ge_u32 s2, 256')
    I(f's_cbranch_scc1 {name}_end')
    gen_attn(name + '_a', NS=NS, stamps=stamps, kidx=kidx, a=a, entry=False, stmod=' sc1', endstamp=False)
    gen_gemm3(name + '_o', NR=NR, a=a, fused=True, st=a.st)
    a.label(f'{name}_end')
    I('s_endpgm')
    return a
```

```python
from asmlib import Asm
from layout import *
from stamp import Stamps

RSTR = 400
K3_LDS = 4 * 64 * RSTR

def gen_gemm3(name, stamps=False, kidx=2, NR=6, a=None, fused=False, st=None):
    if a is None:
        a = Asm()
    I = a.I
    if st is None:
        st = Stamps(a, stamps, kidx)
    def vr(b, n=4): return f'v[{b}:{b+n-1}]'
    vO = [1, 2, 3]
    vT0, vT1, vT2, vTid = 4, 5, 6, 7
    vG = [8, 9, 10]
    vPoll = 11
    vX = 12
    RING = 24
    ACC = RING + 20 * NR
    def Af(s, t): return RING + 20 * s + 4 * t
    def Wf(s, j): return RING + 20 * s + 8 + 4 * j
    def Acc(t, j): return ACC + 48 * t + 16 * j
    sA, sX, sO, sDb = 8, 16, 20, 32
    sWave, sRB, sCB, sAo, sWo, sIt, sT, sCnt = 3, 24, 25, 26, 27, 28, 29, 30
    amod = ' sc1' if fused else ''
    if not fused:
        a.label(name)
        I('s_cmp_ge_u32 s2, 256')
        I(f's_cbranch_scc1 {name}_end')
        st.start()
        I(f's_load_dwordx2 s[{sA}:{sA+1}], s[0:1], {KA_WS}')
    else:
        I(f's_load_dwordx2 s[{sDb}:{sDb+1}], s[0:1], {KA_DBG}')
        I(f's_lshr_b32 s36, s13, 3')
    I(f's_load_dwordx2 s[{sX}:{sX+1}], s[0:1], {KA_X}')
    I(f's_load_dwordx2 s[{sO}:{sO+1}], s[0:1], {KA_OUT}')
    I('s_and_b32 s6, s2, 7')
    I('s_lshr_b32 s7, s2, 3')
    I(f's_lshr_b32 s{sCB}, s7, 3')
    I('s_and_b32 s4, s6, 1')
    I('s_lshl_b32 s4, s4, 2')
    I(f's_add_u32 s{sCB}, s{sCB}, s4')
    if not fused:
        I(f's_cmp_ge_u32 s{sCB}, 7')
        I(f's_cbranch_scc1 {name}_end')
        I(f'v_lshrrev_b32 v{vT0}, 6, v0')
        I(f'v_mov_b32 v{vTid}, v0')
        I('v_and_b32 v0, 63, v0')
        I(f'v_readfirstlane_b32 s{sWave}, v{vT0}')
    else:
        I(f's_lshl_b32 s4, s{sWave}, 6')
        I(f'v_add_u32 v{vTid}, s4, v0')
    I(f'v_lshlrev_b32 v{vO[0]}, 4, v0')
    I(f'v_add_u32 v{vO[1]}, {AREC}, v{vO[0]}')
    I(f'v_add_u32 v{vO[2]}, {2*AREC}, v{vO[0]}')
    I(f's_lshr_b32 s{sRB}, s6, 1')
    I(f's_lshl_b32 s{sRB}, s{sRB}, 3')
    I('s_and_b32 s7, s7, 7')
    I(f's_add_u32 s{sRB}, s{sRB}, s7')
    I(f's_lshl_b32 s{sT}, s{sWave}, 10')
    if fused:
        I(f's_add_u32 s{sT}, s{sT}, {40*1024}')
    I(f's_mul_i32 s{sAo}, s{sRB}, {2*AREC}')
    I(f's_add_u32 s{sAo}, s{sAo}, s{sT}')
    I(f's_add_u32 s{sAo}, s{sAo}, {AF_OFF}')
    I(f's_mul_i32 s{sWo}, s{sCB}, {3*AREC}')
    I(f's_add_u32 s{sWo}, s{sWo}, s{sT}')
    I(f's_add_u32 s{sWo}, s{sWo}, {WF_OFF}')
    I(f's_mov_b32 s{sA+2}, {WS_END}')
    I(f's_mov_b32 s{sA+3}, 0x20000')
    I(f's_mov_b32 s{sIt}, {NR}')
    if fused:
        I(f's_cmp_ge_u32 s{sCB}, 7')
        I(f's_cselect_b32 s{sA+2}, 0, s{sA+2}')
    else:
        I('s_waitcnt lgkmcnt(0)')
    srdA = f's[{sA}:{sA+3}]'
    def loads(s, first=False):
        if not first:
            if fused and s == 0:
                I(f's_cmp_eq_u32 s{sIt}, 24')
                I(f's_cselect_b32 s{sT}, {136*1024}, 0')
                I(f's_sub_u32 s{sAo}, s{sAo}, s{sT}')
                I(f's_sub_u32 s{sWo}, s{sWo}, s{sT}')
            I(f's_cmp_ge_u32 s{sIt}, 34')
            I(f's_cselect_b32 s{sA+2}, 0, s{sA+2}')
            I(f's_add_u32 s{sIt}, s{sIt}, 1')
        for t in range(2):
            I(f'buffer_load_dwordx4 {vr(Af(s,t))}, v{vO[t]}, {srdA}, s{sAo} offen{amod}')
        for j in range(3):
            I(f'buffer_load_dwordx4 {vr(Wf(s,j))}, v{vO[j]}, {srdA}, s{sWo} offen')
        I(f's_add_u32 s{sAo}, s{sAo}, 4096')
        I(f's_add_u32 s{sWo}, s{sWo}, 4096')
    assert 24 % NR == 0
    if fused:
        I('s_waitcnt vmcnt(6)')
    for s in range(NR):
        loads(s, True)
    if fused:
        I(f's_waitcnt vmcnt({5*NR}) lgkmcnt(0)')
        I('s_barrier')
        I(f's_mov_b32 s{sDb+2}, 256')
        I(f's_mov_b32 s{sDb+3}, 0x20000')
        I(f's_cmp_lg_u32 s{sWave}, 0')
        I(f's_cbranch_scc1 {name}_nosig')
        I('s_lshl_b32 s36, s36, 5')
        I(f'v_mov_b32 v{vT0}, s36')
        I(f'v_mov_b32 v{vT1}, 1')
        I('s_mov_b64 exec, 1')
        I(f'buffer_atomic_add v{vT1}, v{vT0}, s[{sDb}:{sDb+3}], 0 offen')
        I('s_mov_b64 exec, -1')
        a.label(f'{name}_nosig')
        I(f's_cmp_ge_u32 s{sCB}, 7')
        I(f's_cbranch_scc1 {name}_fin')
        I(f's_lshr_b32 s36, s{sRB}, 2')
        I('s_lshl_b32 s36, s36, 5')
    I(f'v_lshrrev_b32 v{vT0}, 2, v{vTid}')
    I(f'v_and_b32 v{vT1}, 3, v{vTid}')
    I(f'v_mul_u32_u24 v{vT2}, 1280, v{vT0}')
    I(f'v_mul_u32_u24 v{vG[0]}, 48, v{vT1}')
    I(f's_mul_i32 s{sT}, s{sCB}, 192')
    I(f'v_add_u32 v{vG[0]}, s{sT}, v{vG[0]}')
    I(f'v_mov_b32 v{vX}, 0x40000000')
    for j in (2, 1, 0):
        I(f'v_add_u32 v{vG[j]}, {16*j}, v{vG[0]}')
        I(f'v_cmp_gt_u32 vcc, 1280, v{vG[j]}')
        I(f'v_add_u32 v{vG[j]}, v{vG[j]}, v{vT2}')
        I(f'v_cndmask_b32 v{vG[j]}, v{vX}, v{vG[j]}, vcc')
    I(f's_mul_i32 s4, s{sRB}, {64*1280}')
    I(f's_mov_b32 s{sX+2}, {S*D*2}')
    I(f's_mov_b32 s{sX+3}, 0x20000')
    I(f's_mov_b32 s{sO+2}, {S*D*2}')
    I(f's_mov_b32 s{sO+3}, 0x20000')
    for j in range(3):
        I(f'buffer_load_dwordx4 {vr(vX+4*j)}, v{vG[j]}, s[{sX}:{sX+3}], s4 offen')
    I(f'v_mul_u32_u24 v{vT0}, {RSTR}, v{vT0}')
    I(f'v_mul_u32_u24 v{vT1}, 96, v{vT1}')
    I(f'v_add_u32 v{vTid}, v{vT0}, v{vT1}')
    I(f'v_and_b32 v{vT0}, 31, v0')
    I(f'v_mul_u32_u24 v{vT0}, {RSTR}, v{vT0}')
    I(f'v_lshrrev_b32 v{vT1}, 5, v0')
    I(f'v_lshl_add_u32 v{vT0}, v{vT1}, 4, v{vT0}')
    I(f's_mul_i32 s{sT}, s{sWave}, {64*RSTR}')
    I(f'v_add_u32 v{vT0}, s{sT}, v{vT0}')
    I(f'v_mov_b32 v{vT2}, 0')
    for r in range(96):
        I(f'v_mov_b32 v{ACC+r}, 0')
    I(f's_mov_b32 s{sCnt}, {36 // NR}')
    st.mark()
    a.I('.p2align 3')
    a.label(f'{name}_loop')
    if fused:
        I(f's_cmp_lg_u32 s{sIt}, 24')
        I(f's_cbranch_scc1 {name}_nopoll')
        I(f's_mov_b32 s37, 0')
        a.label(f'{name}_poll')
        I(f'buffer_load_dword v{vPoll}, v{vT2}, s[{sDb}:{sDb+3}], s36 offen sc1')
        I('s_waitcnt vmcnt(0)')
        I(f'v_readfirstlane_b32 s{sT}, v{vPoll}')
        I('s_add_u32 s37, s37, 1')
        I('s_cmp_ge_u32 s37, 0x400000')
        I(f's_cbranch_scc1 {name}_nopoll')
        I(f's_cmp_lt_u32 s{sT}, 32')
        I(f's_cbranch_scc1 {name}_poll')
        a.label(f'{name}_nopoll')
    for s in range(NR):
        I(f's_waitcnt vmcnt({5*(NR-1)})')
        for j in range(3):
            for t in range(2):
                acc = vr(Acc(t, j), 16)
                I(f'v_mfma_f32_32x32x16_bf16 {acc}, {vr(Wf(s,j))}, {vr(Af(s,t))}, {acc}')
        loads(s)
    I(f's_sub_u32 s{sCnt}, s{sCnt}, 1')
    I(f's_cmp_lg_u32 s{sCnt}, 0')
    I(f's_cbranch_scc1 {name}_loop')
    st.mark()
    for t in range(2):
        for j in range(3):
            for rq in range(4):
                I(f'ds_write_b128 v{vT0}, {vr(Acc(t,j)+4*rq)} offset:{32*RSTR*t+128*j+32*rq}')
    I(f'v_add_u32 v{vT1}, {2*64*RSTR}, v{vTid}')
    I('s_waitcnt vmcnt(0) lgkmcnt(0)')
    I('s_barrier')
    R = RING
    for w in range(4):
        for j in range(6):
            I(f'ds_read_b128 {vr(R+24*w+4*j)}, v{vTid if w < 2 else vT1} offset:{(w&1)*64*RSTR+16*j}')
        if w == 1:
            I('s_waitcnt lgkmcnt(6)')
    U = ACC
    for k in range(12):
        I(f'v_lshlrev_b32 v{U+2*k}, 16, v{vX+k}')
        I(f'v_and_b32 v{U+2*k+1}, 0xffff0000, v{vX+k}')
    I('s_waitcnt lgkmcnt(12)')
    for r in range(0, 24, 2):
        I(f'v_pk_add_f32 {vr(R+r,2)}, {vr(R+r,2)}, {vr(R+24+r,2)}')
    I('s_waitcnt lgkmcnt(0)')
    for r in range(0, 24, 2):
        I(f'v_pk_add_f32 {vr(R+48+r,2)}, {vr(R+48+r,2)}, {vr(R+72+r,2)}')
    for r in range(0, 24, 2):
        I(f'v_pk_add_f32 {vr(R+r,2)}, {vr(R+r,2)}, {vr(R+48+r,2)}')
    for r in range(0, 24, 2):
        I(f'v_pk_add_f32 {vr(R+r,2)}, {vr(R+r,2)}, {vr(U+r,2)}')
    for k in range(12):
        I(f'v_cvt_pk_bf16_f32 v{U+k}, v{R+2*k}, v{R+2*k+1}')
    for j in range(3):
        I(f'buffer_store_dwordx4 {vr(U+4*j)}, v{vG[j]}, s[{sO}:{sO+3}], s4 offen')
    a.label(f'{name}_fin')
    st.end(sWave, 4, 5)
    if not fused:
        a.label(f'{name}_end')
        I('s_endpgm')
    return a
```

```python
from build import assemble
from k_gemm1 import gen_gemm1, K1_LDS
from k_fused2 import gen_k23
from k_gemm3 import gen_gemm3, K3_LDS
import sys
def build(out, st, **kw):
    k2 = gen_k23('k23_kernel', stamps=st)
    assemble([('k1_kernel', gen_gemm1('k1_kernel', stamps=st, **kw), 256, 512, K1_LDS),
              ('k23_kernel', k2, 256, 256, K3_LDS)], out)
    n = 'k23_kernel_'
    for take in ([n+'a_store', n+'o_nosig', n+'o_nopoll'], [n+'a_store']):
        for e in k2.check_waits(take=take)[:10]: print('WAITERR2', e)
if len(sys.argv) > 1:
    build('full_st.s', True)
else:
    build('parallel_sum__softmax_full_mha__glu_gated_reglu__prompt.s', False)
```

```python
def code_prefetch(a, l0, l1, wave_sgpr, nw, vlane16, vdst, squad, stmp, maxkb):
    I = a.I
    I(f's_getpc_b64 s[{squad}:{squad+1}]')
    lab = f'.Lpc_{l0}_{len(a.ins)}'
    a.I(lab + ':')
    I(f's_add_u32 s{squad}, s{squad}, {l0}-{lab}')
    I(f's_addc_u32 s{squad+1}, s{squad+1}, ({l0}-{lab})>>32')
    I(f's_mov_b32 s{squad+2}, {l1}-{l0}')
    I(f's_mov_b32 s{squad+3}, 0x20000')
    I(f's_lshl_b32 s{stmp}, s{wave_sgpr}, 13')
    I(f'v_lshlrev_b32 v{vdst+1}, 3, v{vlane16}')
    n = (maxkb + 8 * nw - 1) // (8 * nw)
    for i in range(n):
        if i:
            I(f's_add_u32 s{stmp}, s{stmp}, {nw*8192}')
        I(f'buffer_load_dword v{vdst}, v{vdst+1}, s[{squad}:{squad+3}], s{stmp} offen', tag='pf')
    return n

from layout import *
SPIN_MAX = 0x200000

def tag_publish(a, sDbg, sTag, vA, vB):
    I = a.I
    I(f's_memrealtime s[{sTag}:{sTag+1}]')
    I('s_waitcnt lgkmcnt(0)')
    I(f's_or_b32 s{sTag}, s{sTag}, 1')
    I(f'v_mov_b32 v{vA}, s{sTag}')
    I(f'v_mov_b32 v{vA+1}, s{sTag+1}')
    I(f'v_mov_b32 v{vB}, 0')
    I('s_mov_b64 exec, 1')
    I(f'buffer_store_dwordx2 v[{vA}:{vA+1}], v{vB}, s[{sDbg}:{sDbg+3}], 0 offen sc1')
    I('s_mov_b64 exec, -1')

def tag_get(a, lab, sDbg, sTag, vA, vB, sCnt):
    I = a.I
    I(f'v_mov_b32 v{vB}, 0')
    I(f's_mov_b32 s{sCnt}, 0')
    a.label(lab)
    I(f'buffer_load_dwordx2 v[{vA}:{vA+1}], v{vB}, s[{sDbg}:{sDbg+3}], 0 offen sc1')
    I('s_waitcnt vmcnt(0)')
    I(f'v_readfirstlane_b32 s{sTag}, v{vA}')
    I(f'v_readfirstlane_b32 s{sTag+1}, v{vA+1}')
    I(f's_add_u32 s{sCnt}, s{sCnt}, 1')
    I(f's_cmp_ge_u32 s{sCnt}, {SPIN_MAX}')
    I(f's_cbranch_scc1 {lab}_x')
    I(f's_cmp_eq_u32 s{sTag}, 0')
    I(f's_cbranch_scc1 {lab}')
    a.label(lab + '_x')

def flag_set(a, sWS, sTag, kind, sIdx, vA, vB, sT):
    I = a.I
    I(f's_lshl_b32 s{sT}, s{sIdx}, 7')
    I(f's_add_u32 s{sT}, s{sT}, {FL_OFF + kind * 32768}')
    I(f'v_mov_b32 v{vA}, s{sTag}')
    I(f'v_mov_b32 v{vA+1}, s{sTag+1}')
    I(f'v_mov_b32 v{vB}, 0')
    I('s_mov_b64 exec, 1')
    I(f'buffer_store_dwordx2 v[{vA}:{vA+1}], v{vB}, s[{sWS}:{sWS+3}], s{sT} offen sc1')
    I('s_mov_b64 exec, -1')

def flag_wait(a, lab, sWS, sTag, kind, n, vOff, vD, sCnt, sT, soff=None):
    I = a.I
    I(f's_mov_b32 s{sCnt}, 0')
    if soff is None:
        I(f's_mov_b32 s{sT}, {FL_OFF + kind * 32768}')
    else:
        I(f's_add_u32 s{sT}, s{soff}, {FL_OFF + kind * 32768}')
    a.label(lab)
    for i in range(n):
        I(f'buffer_load_dwordx2 v[{vD+2*i}:{vD+2*i+1}], v{vOff}, s[{sWS}:{sWS+3}], s{sT} offen sc1')
        if i < n - 1:
            I(f's_add_u32 s{sT}, s{sT}, 8192')
    if n > 1:
        I(f's_sub_u32 s{sT}, s{sT}, {8192*(n-1)}')
    I('s_waitcnt vmcnt(0)')
    for i in range(n):
        I(f'v_xor_b32 v{vD+2*i}, s{sTag}, v{vD+2*i}')
        I(f'v_xor_b32 v{vD+2*i+1}, s{sTag+1}, v{vD+2*i+1}')
    for i in range(1, 2 * n):
        I(f'v_or_b32 v{vD}, v{vD}, v{vD+i}')
    I(f'v_cmp_ne_u32 vcc, 0, v{vD}')
    I(f's_add_u32 s{sCnt}, s{sCnt}, 1')
    I(f's_cmp_ge_u32 s{sCnt}, {SPIN_MAX}')
    I(f's_cbranch_scc1 {lab}_x')
    I(f's_cbranch_vccnz {lab}')
    a.label(lab + '_x')
```

```python
from asmlib import Asm
from layout import *
from stamp import Stamps
import struct

def f2u(f): return struct.unpack('<I', struct.pack('<f', f))[0]

def gen_attn(name, NS=4, stamps=False, kidx=1, a=None, entry=True, bar=False, stmod='', endstamp=True, pf=None, st=None, ldmod='', ids=True, trips=None):
    if a is None:
        a = Asm()
    I = a.I
    own = st is None
    if own:
        st = Stamps(a, stamps, kidx)
    vLane16, vTok8, vV0, vV1, vTmp, vTmp2, vTok16 = 1, 2, 3, 4, 5, 6, 7
    vKb = 22
    QA = [8, 16]; QB = [12, 20]
    S_ = [24, 40]
    P_ = [56, 64]
    O_ = [72, 88]
    KV0 = 104
    def KA(s): return KV0 + 14 * s
    def V0(s): return KV0 + 14 * s + 4
    def V1(s): return KV0 + 14 * s + 8
    def KB(s): return KV0 + 14 * s + 12
    vEND = KV0 + 14 * NS
    vM = [vEND, vEND + 1]
    sWS = 8
    sHead, sQT, sKV, sCnt, sKV0, sKmax, sFlag, sT = 12, 13, 14, 16, 17, 18, 19, 20
    sLo = 24
    sQ = 26
    def vr(b, n=4): return f'v[{b}:{b+n-1}]'
    def mfma(d, x, y, c=None):
        cc = vr(d, 16) if c is None else c
        return f'v_mfma_f32_32x32x16_bf16 {vr(d,16)}, {vr(x)}, {vr(y)}, {cc}'
    def mfma8(d, x, y):
        return f'v_mfma_f32_32x32x8bf16_1k {vr(d,16)}, {vr(x,2)}, {vr(y,2)}, {vr(d,16)}'
    srd = f's[{sWS}:{sWS+3}]'
    sP = 28

    if entry:
        a.label(name)
        I('s_cmp_ge_u32 s2, 256')
        I(f's_cbranch_scc1 {name}_end')
    if own:
        st.start()
    I(f's_load_dwordx2 s[{sWS}:{sWS+1}], s[0:1], {KA_WS}')
    if ids:
        I(f'v_lshrrev_b32 v{vTmp}, 6, v0')
        I('v_and_b32 v0, 63, v0')
        I(f'v_readfirstlane_b32 s3, v{vTmp}')
    I(f's_and_b32 s6, s2, 7')
    I(f's_lshr_b32 s7, s2, 3')
    I(f's_lshr_b32 s{sHead}, s7, 3')
    I(f's_lshl_b32 s6, s6, 2')
    I(f's_add_u32 s{sHead}, s{sHead}, s6')
    I(f's_and_b32 s7, s7, 7')
    I(f's_lshl_b32 s{sQT}, s7, 3')
    I(f's_lshl_b32 s6, s3, 1')
    I(f's_add_u32 s{sQT}, s{sQT}, s6')
    I(f'v_lshlrev_b32 v{vLane16}, 4, v0')
    I(f'v_and_b32 v{vTmp}, 31, v0')
    I(f'v_lshlrev_b32 v{vTok8}, 3, v{vTmp}')
    I(f's_mul_i32 s{sKV0}, s{sHead}, {NT*KVREC}')
    I(f's_add_u32 s{sKV0}, s{sKV0}, {KV_OFF}')
    I(f's_lshl_b32 s{sQ}, s{sHead}, 6')
    I(f's_add_u32 s{sQ}, s{sQ}, s{sQT}')
    I(f's_mul_i32 s{sQ}, s{sQ}, {QREC}')
    I(f's_mul_i32 s{sT}, s{sHead}, {5*256}')
    I(f's_add_u32 s{sT}, s{sT}, {KN_OFF}')
    I(f'v_lshlrev_b32 v{vTmp2}, 2, v0')
    I(f's_mov_b32 s{sWS+2}, {WS_SIZE}')
    I(f's_mov_b32 s{sWS+3}, 0x20000')
    I(f'v_lshlrev_b32 v{vTok16}, 4, v{vTmp}')
    I('s_waitcnt lgkmcnt(0)')
    for q in range(2):
        I(f'buffer_load_dwordx4 {vr(QA[q])}, v{vLane16}, {srd}, s{sQ} offen offset:{q*QREC}{ldmod}')
        I(f'buffer_load_dwordx2 {vr(QB[q],2)}, v{vTok8}, {srd}, s{sQ} offen offset:{q*QREC+1024}{ldmod}')
    for g in range(5):
        I(f'buffer_load_dword v{S_[1]+g}, v{vTmp2}, {srd}, s{sT} offen offset:{g*256}{ldmod}')
    I(f'v_lshrrev_b32 v{vTmp2}, 5, v0')
    I(f'v_mul_u32_u24 v{vTmp2}, 320, v{vTmp2}')
    I(f'v_add_u32 v{vV0}, v{vTok16}, v{vTmp2}')
    I(f'v_and_b32 v{vTmp2}, 27, v0')
    I(f'v_cmp_eq_u32 vcc, 24, v{vTmp2}')
    I(f'v_mov_b32 v{vTmp2}, {1280+16}')
    I(f'v_mov_b32 v{vV1}, 1280')
    I(f'v_cndmask_b32 v{vTmp2}, v{vTmp2}, v{vV1}, vcc')
    I(f'v_cmp_gt_u32 vcc, 20, v{vTmp}')
    I(f'v_subrev_u32 v{vV1}, 640, v{vTmp2}')
    I(f'v_cndmask_b32 v{vV1}, v{vV1}, v{vV0}, vcc')
    I(f'v_cndmask_b32 v{vV0}, v{vTmp2}, v{vV0}, vcc')
    I(f's_mov_b32 s{sLo}, -1')
    I(f's_mov_b32 s{sLo+1}, 0')
    I(f's_mov_b32 s{sFlag}, 0')

    I(f'v_add_u32 v{vKb}, 1024, v{vTok8}')
    I(f'v_mov_b32 v{vTmp2}, 2560')
    I(f'v_cndmask_b32 v{vKb}, v{vTmp2}, v{vKb}, s[{sLo}:{sLo+1}]')
    sp = f's[{sP}:{sP+1}]'
    def ldKa(s, off): return f'global_load_dwordx4 {vr(KA(s))}, v{vLane16}, {sp} offset:{off}{ldmod}'
    def ldKb(s, off): return f'global_load_dwordx2 {vr(KB(s),2)}, v{vKb}, {sp if off == 0 else sp2}'
    def ldV0(s): return f'global_load_dwordx4 {vr(V0(s))}, v{vV0}, {sp} offset:1280{ldmod}'
    def ldV1(s): return f'global_load_dwordx4 {vr(V1(s))}, v{vV1}, {sp} offset:1920{ldmod}'
    sp2 = sp + f' offset:{KVREC - 1024}'
    I(f'v_subrev_u32 v{vKb}, 0, v{vKb}')
    def ldKb(s, off):
        return f'global_load_dwordx2 {vr(KB(s),2)}, v{vKb}, {sp} offset:{off}{ldmod}'
    adv = f's_add_u32 s{sP}, s{sP}, {KVREC}\ns_addc_u32 s{sP+1}, s{sP+1}, 0'
    setp = f's_add_u32 s{sP}, s{sWS}, s{sKV0}\ns_addc_u32 s{sP+1}, s{sWS+1}, 0'

    a.label(f'{name}_restart')
    I(setp)
    I(ldKa(0, 0)); I(ldKb(0, 0))
    for s in range(NS - 1):
        I(ldV0(s)); I(ldV1(s)); I(ldKa(s + 1, KVREC)); I(ldKb(s + 1, KVREC)); I(adv)
    nkv = 2 + 4 * (NS - 1)
    if pf:
        I(f's_cmp_lg_u32 s{sFlag}, 0')
        I(f's_cbranch_scc1 {name}_nopf')
        pf(a)
        a.label(f'{name}_nopf')
    for q in range(2):
        for r in range(16):
            I(f'v_mov_b32 v{O_[q]+r}, 0')
    I(f's_mov_b32 s{sCnt}, {NT // NS}')
    I(f's_cmp_lg_u32 s{sFlag}, 0')
    I(f's_cbranch_scc1 {name}_haveq')
    I(f's_waitcnt vmcnt({nkv})')
    kn = S_[1]
    I(f'v_add_f32 v{kn}, v{kn}, v{kn+1}')
    I(f'v_add_f32 v{kn+2}, v{kn+2}, v{kn+3}')
    I(f'v_add_f32 v{kn}, v{kn}, v{kn+4}')
    I(f'v_add_f32 v{kn}, v{kn}, v{kn+2}')
    T = [S_[0], S_[0] + 2]; U = [S_[0] + 1, S_[0] + 3]; W = [S_[0] + 4, S_[0] + 5]
    for q in range(2):
        I(f'v_mov_b32 v{T[q]}, 0')
        I(f'v_mov_b32 v{W[q]}, 0')
    dpps = ['quad_perm:[1,0,3,2]', 'quad_perm:[2,3,0,1]', 'row_half_mirror', 'row_mirror']
    for r in range(4):
        I(f'v_max_f32_dpp v{kn}, v{kn}, v{kn} {dpps[r]} row_mask:0xf bank_mask:0xf')
        for q in range(2):
            I(f'v_dot2c_f32_bf16 v{T[q]}, v{QA[q]+r}, v{QA[q]+r}')
    for r in range(2):
        for q in range(2):
            I(f'v_dot2c_f32_bf16 v{W[q]}, v{QB[q]+r}, v{QB[q]+r}')
    I(f'v_readlane_b32 s{sKmax}, v{kn}, 0')
    I(f'v_readlane_b32 s6, v{kn}, 16')
    I(f'v_readlane_b32 s7, v{kn}, 32')
    I(f'v_readlane_b32 s{sT}, v{kn}, 48')
    for q in range(2):
        I(f'v_mov_b32 v{U[q]}, v{T[q]}')
    I(f's_max_u32 s{sKmax}, s{sKmax}, s6')
    I(f's_max_u32 s7, s7, s{sT}')
    I(f's_max_u32 s{sKmax}, s{sKmax}, s7')
    for q in range(2):
        I(f'v_permlane32_swap_b32 v{U[q]}, v{T[q]}')
    for q in range(2):
        I(f'v_add_f32 v{T[q]}, v{T[q]}, v{U[q]}')
    for q in range(2):
        I(f'v_add_f32 v{T[q]}, v{T[q]}, v{W[q]}')
    for q in range(2):
        I(f'v_mul_f32 v{T[q]}, s{sKmax}, v{T[q]}')
    for q in range(2):
        I(f'v_sqrt_f32 v{T[q]}, v{T[q]}')
    for q in range(2):
        I(f'v_cndmask_b32 v{QB[q]+1}, 0, v{QB[q]+1}, s[{sLo}:{sLo+1}]')
    for q in range(2):
        I(f'v_mul_f32 v{T[q]}, 0x{f2u(-(1.0 + 2.0**-7)):08x}, v{T[q]}')
    for q in range(2):
        I(f'v_cvt_pk_bf16_f32 v{T[q]}, v{T[q]}, 0')
    for q in range(2):
        I(f'v_cndmask_b32 v{QB[q]}, v{T[q]}, v{QB[q]}, s[{sLo}:{sLo+1}]')
    a.label(f'{name}_haveq')
    I(f's_waitcnt vmcnt({nkv - 2})')
    I(mfma(S_[0], KA(0), QA[0], '0'))
    I(mfma8(S_[0], KB(0), QB[0]))
    if bar:
        I(f's_cmp_lg_u32 s{sFlag}, 0')
        I(f's_cbranch_scc1 {name}_nobar')
        I('s_barrier')
        a.label(f'{name}_nobar')
    st.mark()
    I('s_nop 9')
    I(f'v_exp_f32 v{S_[0]}, v{S_[0]}')
    I(f'v_exp_f32 v{S_[0]+1}, v{S_[0]+1}')
    a.I('.p2align 3')
    a.label(f'{name}_loop')
    for trip, fn in (trips or {}).items():
        I(f's_lshl_b32 s6, s{sFlag}, 8')
        I(f's_add_u32 s6, s6, s{sCnt}')
        I(f's_cmp_lg_u32 s6, {NT // NS - trip}')
        I(f's_cbranch_scc1 {name}_nt{trip}')
        fn()
        a.label(f'{name}_nt{trip}')
    W1 = 4 * NS - 6
    for s in range(NS):
        for q in range(2):
            Sb, Pb = S_[q], P_[q]
            e = [f'v_exp_f32 v{Sb+r}, v{Sb+r}' for r in range(16)]
            c = [f'v_cvt_pk_bf16_f32 v{Pb+r}, v{Sb+2*r}, v{Sb+2*r+1}' for r in range(8)]
            nq = 1 - q
            ns = s if q == 0 else (s + 1) % NS
            M2 = mfma(S_[nq], KA(ns), QA[nq], '0')
            M3 = mfma8(S_[nq], KB(ns), QB[nq])
            M4 = mfma(O_[q], V0(s), Pb)
            M1n = mfma(O_[q], V1(s), Pb + 4)
            ps = (s - 1) % NS
            if q == 0:
                f1, f2, f3, f4 = ldV0(ps), ldV1(ps), f's_waitcnt vmcnt({W1})', None
            else:
                f1, f2, f3, f4 = ldKa(s, KVREC), ldKb(s, KVREC), None, adv
            if s == NS - 1 and q == 0:
                f4 = f's_sub_u32 s{sCnt}, s{sCnt}, 1'
            if s == NS - 1 and q == 1:
                f4 = adv + f'\ns_cmp_lg_u32 s{sCnt}, 0'
            if not (s == 0 and q == 0) or True:
                I(f1)
            for r in range(2, 6): I(e[r])
            I(M2); I(f2)
            I(e[6]); I(e[7])
            for r in range(4): I(c[r])
            I(M3)
            if f3: I(f3)
            for r in range(8, 12): I(e[r])
            I(M4)
            if f4: I(f4)
            for r in range(12, 16): I(e[r])
            for r in range(4, 8): I(c[r])
            I(f'v_exp_f32 v{S_[nq]}, v{S_[nq]}')
            I(f'v_exp_f32 v{S_[nq]+1}, v{S_[nq]+1}')
            I(M1n)
    I(f's_cbranch_scc1 {name}_loop')
    st.mark()
    I(f's_cmp_lg_u32 s{sFlag}, 0')
    I(f's_cbranch_scc1 {name}_store')
    I(f'v_mov_b32 v{vTmp}, 0x{f2u(2.0**-60):08x}')
    I(f'v_cmp_ge_f32 vcc, v{O_[0]+12}, v{vTmp}')
    I(f'v_cmp_ge_f32 s[6:7], v{O_[1]+12}, v{vTmp}')
    I('s_and_b64 s[6:7], s[6:7], vcc')
    I('s_cmp_eq_u64 s[6:7], -1')
    I(f's_cbranch_scc1 {name}_store')
    I('s_waitcnt vmcnt(0)')
    for q in range(2):
        I(f'v_cndmask_b32 v{QB[q]}, 0, v{QB[q]}, s[{sLo}:{sLo+1}]')
        I(f'v_cndmask_b32 v{QB[q]+1}, 0, v{QB[q]+1}, s[{sLo}:{sLo+1}]')
        I(f'v_mov_b32 v{vM[q]}, 0xff800000')
    I(setp)
    I(f's_mov_b32 s{sCnt}, {NT}')
    a.label(f'{name}_maxloop')
    I(ldKa(0, 0)); I(ldKb(0, 0)); I(adv)
    I('s_waitcnt vmcnt(0)')
    for q in range(2):
        I(mfma(S_[q], KA(0), QA[q], '0'))
        I(mfma8(S_[q], KB(0), QB[q]))
    for q in range(2):
        for r in range(0, 16, 2):
            I(f'v_max3_f32 v{vM[q]}, v{S_[q]+r}, v{S_[q]+r+1}, v{vM[q]}')
    I(f's_sub_u32 s{sCnt}, s{sCnt}, 1')
    I(f's_cmp_lg_u32 s{sCnt}, 0')
    I(f's_cbranch_scc1 {name}_maxloop')
    for q in range(2):
        m, t, u, w = vM[q], S_[0], S_[0] + 1, S_[0] + 2
        I(f'v_mov_b32 v{t}, v{m}')
        I(f'v_permlane32_swap_b32 v{t}, v{m}')
        I(f'v_max_f32 v{m}, v{m}, v{t}')
        I(f'v_sub_f32 v{m}, 0, v{m}')
        I(f'v_and_b32 v{t}, 0xffff0000, v{m}')
        I(f'v_sub_f32 v{m}, v{m}, v{t}')
        I(f'v_and_b32 v{u}, 0xffff0000, v{m}')
        I(f'v_sub_f32 v{m}, v{m}, v{u}')
        I(f'v_lshrrev_b32 v{t}, 16, v{t}')
        I(f'v_or_b32 v{t}, v{t}, v{u}')
        I(f'v_lshrrev_b32 v{w}, 16, v{m}')
        I(f'v_cndmask_b32 v{QB[q]}, v{t}, v{QB[q]}, s[{sLo}:{sLo+1}]')
        I(f'v_cndmask_b32 v{QB[q]+1}, v{w}, v{QB[q]+1}, s[{sLo}:{sLo+1}]')
    I(f's_mov_b32 s{sFlag}, 1')
    I(f's_branch {name}_restart')
    a.label(f'{name}_store')
    for q in range(2):
        I(f'v_rcp_f32 v{S_[1]+q}, v{O_[q]+12}')
    I(f's_lshr_b32 s6, s{sHead}, 2')
    I(f's_mul_i32 s6, s6, 5')
    I(f's_and_b32 s7, s{sHead}, 3')
    I(f's_add_u32 s{sT}, s6, s7')
    I(f's_lshl_b32 s{sT}, s{sT}, 10')
    I(f's_add_u32 s6, s6, 4')
    I(f's_lshl_b32 s6, s6, 10')
    I(f's_lshr_b32 s{sCnt}, s7, 1')
    I(f's_lshl_b32 s{sCnt}, s{sCnt}, 9')
    I(f's_add_u32 s6, s6, s{sCnt}')
    I(f's_and_b32 s7, s7, 1')
    I(f's_lshl_b32 s7, s7, 3')
    I(f's_add_u32 s6, s6, s7')
    I(f's_mul_i32 s7, s{sQT}, {AREC}')
    I(f's_add_u32 s7, s7, {AF_OFF}')
    I(f's_add_u32 s{sT}, s{sT}, s7')
    I(f's_add_u32 s6, s6, s7')
    I(f's_add_u32 s{sKmax}, s{sT}, {AREC}')
    I(f's_add_u32 s7, s6, {AREC}')
    for q in range(2):
        rl = S_[1] + q
        for r in range(12):
            I(f'v_mul_f32 v{O_[q]+r}, v{O_[q]+r}, v{rl}')
        for r in range(6):
            I(f'v_cvt_pk_bf16_f32 v{P_[q]+r}, v{O_[q]+2*r}, v{O_[q]+2*r+1}')
        I(f'buffer_store_dwordx4 {vr(P_[q])}, v{vLane16}, {srd}, s{sKmax if q else sT} offen{stmod}')
    I(f's_mov_b64 exec, s[{sLo}:{sLo+1}]')
    for q in range(2):
        I(f'buffer_store_dwordx2 {vr(P_[q]+4,2)}, v{vTok16}, {srd}, s{6+q} offen{stmod}')
    I('s_mov_b64 exec, -1')
    if endstamp:
        st.end(3, 4, 5)
    a.st = st
    if entry:
        a.label(f'{name}_end')
        I('s_endpgm')
    return a
```

```python
from asmlib import Asm
from layout import *
from k_attn import gen_attn
from k_gemm3 import gen_gemm3
from common import code_prefetch

def gen_k23(name, stamps=False, kidx=1, NS=4, NR=6, helper=1, hw=True, hh=True):
    a = Asm()
    I = a.I
    a.label(name)
    I('s_cmp_ge_u32 s2, 256')
    I(f's_cbranch_scc1 {name}_end')
    if helper:
        I('v_readfirstlane_b32 s3, v0')
        I('s_cmp_ge_u32 s3, 256')
        I(f's_cbranch_scc1 {name}_h')
    def pf(a):
        code_prefetch(a, name + '_a_loop', name + '_end', 3, 4, 1, 164, 32, 36, 8)
    gen_attn(name + '_a', pf=None if helper else pf, bar=bool(helper), NS=NS, stamps=stamps, kidx=kidx, a=a, entry=False, stmod=' sc1', endstamp=False)
    gen_gemm3(name + '_o', NR=NR, a=a, fused=True, st=a.st)
    if helper:
        I('s_endpgm')
        a.label(f'{name}_h')
        I(f's_load_dwordx2 s[8:9], s[0:1], {KA_WS}')
        I('v_and_b32 v0, 63, v0')
        I('v_lshlrev_b32 v1, 7, v0')
        I('v_lshlrev_b32 v2, 4, v0')
        I('s_mov_b32 s3, 0')
        code_prefetch(a, name + '_a_loop', name + '_h', 3, 1, 2, 4, 12, 5, 8)
        I('s_and_b32 s4, s2, 1')
        I(f's_mul_i32 s4, s4, {12*AREC}')
        I('s_lshr_b32 s5, s2, 3')
        I(f's_mul_i32 s6, s5, {12*AREC//32}')
        I('s_add_u32 s4, s4, s6')
        I(f's_add_u32 s4, s4, {WF_OFF}')
        I('s_and_b32 s6, s2, 6')
        I('s_lshl_b32 s6, s6, 3')
        I('s_lshr_b32 s7, s5, 1')
        I('s_add_u32 s6, s6, s7')
        I(f's_mul_i32 s6, s6, {AREC}')
        I('s_and_b32 s7, s5, 1')
        I(f's_mul_i32 s7, s7, {48*1024}')
        I('s_add_u32 s6, s6, s7')
        I(f's_add_u32 s6, s6, {AF_OFF + 40*1024}')
        I(f's_mov_b32 s10, {WS_END}')
        I('s_mov_b32 s11, 0x20000')
        I('s_waitcnt lgkmcnt(0)')
        I('s_barrier')
        for i in range(7):
            if hw:
                I(f'buffer_load_dword v4, v1, s[8:11], s4 offen', tag='pf')
                I('s_add_u32 s4, s4, 8192')
                I(f's_waitcnt vmcnt({helper-1})')
            if hh and i < 6:
                I(f'buffer_load_dword v4, v1, s[8:11], s6 offen', tag='pf')
                I('s_add_u32 s6, s6, 8192')
                I(f's_waitcnt vmcnt({helper-1})')
    a.label(f'{name}_end')
    I('s_endpgm')
    return a
```

```python
from asmlib import Asm
from layout import *
from stamp import Stamps
from common import *
import struct
def f2u(f): return struct.unpack('<I', struct.pack('<f', f))[0]

BSLOT, XSLOT = 20480, 16384
NM_LDS = 0
RR_LDS = NM_LDS + 512
CS_LDS = RR_LDS + 512
B_LDS = 4096
X_LDS = B_LDS + 4 * BSLOT
R_LDS = X_LDS + 2 * XSLOT
K1_LDS = R_LDS + 16384

def gen_gemm1(name, stamps=False, kidx=0, codepf=True, stmod='', prio=True, dbg='', warm=0, wj=0, lin=1, lin2=0, mega=None, lprio=0):
    a = Asm()
    I = a.I
    st = Stamps(a, stamps, kidx)
    def vr(b, n=4): return f'v[{b}:{b+n-1}]'
    vLane16, vT0, vT1, vT2, vT3, vTok, vHk = 1, 2, 3, 4, 5, 6, 7
    vU = 8
    vXB = [12, 13, 14, 15]
    vWB = [[16 + 5 * ss + i for i in range(5)] for ss in range(2)]
    WFR = [26, 46]
    XFR = [[66, 70], [74, 78 - 0]]
    XFR = [[66, 70], [74, 60 + 18]]
    ACC = 82
    vEP = 242
    def Acc(t, u): return ACC + 80 * t + 16 * u
    def Wf(s, u): return WFR[s] + 4 * u
    vD = [26, 27, 28, 29, 30]
    vDX = [31, 32, 33, 34]
    vSA = 36
    vSel = 40
    LW = 44
    LX = [64, 68]
    LCS = 72
    vPF = 248
    sWave, sRB, sCG, sG, sRP, sT, sT2, sL = 3, 28, 29, 30, 31, 33, 34, 32
    sX, sD0, sD1, sD2, sWS = 8, 12, 16, 20, 60
    sO0, sO2, sOX, sSt0, sCnt, sXi = 35, 37, 38, 39, 41, 42
    sLo = 44
    sMX = 47
    sType = 48
    sM = [49, 50, 51]
    def srd(s): return f's[{s}:{s+3}]'

    a.label(name)
    I('s_cmp_ge_u32 s2, 256')
    I(f's_cbranch_scc1 {name}_end')
    st.start()
    I(f's_load_dwordx4 s[4:7], s[0:1], {KA_X}')
    I(f's_load_dwordx4 s[52:55], s[0:1], {KA_WG}')
    I(f's_load_dwordx2 s[{sWS}:{sWS+1}], s[0:1], {KA_WS}')
    I(f'v_lshrrev_b32 v{vT0}, 6, v0')
    I(f'v_and_b32 v{vT3}, 255, v0')
    I('v_and_b32 v0, 63, v0')
    I(f'v_readfirstlane_b32 s{sWave}, v{vT0}')
    I(f'v_lshlrev_b32 v{vLane16}, 4, v0')
    I(f's_and_b32 s{sT}, s2, 7')
    I(f's_lshr_b32 s{sT2}, s2, 3')
    I(f's_and_b32 s{sRB}, s{sT}, 1')
    I(f's_lshl_b32 s{sRB}, s{sRB}, 3')
    I(f's_and_b32 s{sCG}, s{sT2}, 7')
    I(f's_add_u32 s{sRB}, s{sRB}, s{sCG}')
    I(f's_lshr_b32 s{sCG}, s{sT}, 1')
    I(f's_lshl_b32 s{sCG}, s{sCG}, 2')
    I(f's_lshr_b32 s{sT2}, s{sT2}, 3')
    I(f's_add_u32 s{sCG}, s{sCG}, s{sT2}')
    I(f's_and_b32 s{sL}, s{sWave}, 3')
    I(f's_lshr_b32 s{sG}, s{sL}, 1')
    I(f's_and_b32 s{sRP}, s{sL}, 1')
    I(f's_cmp_lt_u32 s{sWave}, 4')
    I(f's_cbranch_scc1 {name}_rd')
    I(f'v_lshrrev_b32 v{vT0}, 3, v0')
    I(f'v_lshrrev_b32 v{vT1}, 4, v0')
    I(f'v_xor_b32 v{vT1}, v{vT1}, v0')
    I(f'v_and_b32 v{vT1}, 7, v{vT1}')
    I(f'v_mul_u32_u24 v{vT0}, 1280, v{vT0}')
    I(f'v_lshl_add_u32 v{vDX[0]}, v{vT1}, 4, v{vT0}')
    I(f'v_xor_b32 v{vT1}, 4, v{vT1}')
    I(f'v_lshl_add_u32 v{vDX[1]}, v{vT1}, 4, v{vT0}')
    I(f'v_add_u32 v{vDX[2]}, {16*1280-2048}, v{vDX[0]}')
    I(f'v_add_u32 v{vDX[3]}, {24*1280-3072}, v{vDX[1]}')
    I(f'v_add_u32 v{vDX[1]}, {8*1280-1024}, v{vDX[1]}')
    I(f's_lshl_b32 s{sOX}, s{sRB}, 7')
    I(f's_lshl_b32 s{sT}, s{sL}, 5')
    I(f's_add_u32 s{sOX}, s{sOX}, s{sT}')
    I(f's_mul_i32 s{sOX}, s{sOX}, 1280')
    I(f's_lshl_b32 s{sMX}, s{sL}, 12')
    I(f's_add_u32 s{sMX}, s{sMX}, {X_LDS}')
    I(f's_mov_b32 s{sX+2}, {S*D*2}')
    for s in (sX, sD0, sD1, sD2):
        I(f's_mov_b32 s{s+3}, 0x20000')
    I(f's_mov_b32 s{sD2+2}, {D*3*D*2}')
    I(f's_mov_b32 s{sXi}, 0')
    I(f's_cmp_ge_u32 s{sCG}, 12')
    I(f's_cbranch_scc1 {name}_setup_qk')
    I(f'v_lshrrev_b32 v{vT0}, 4, v0')
    I(f'v_bfe_u32 v{vT1}, v0, 1, 3')
    I(f'v_lshlrev_b32 v{vT2}, 1, v{vT0}')
    I(f'v_xor_b32 v{vT1}, v{vT1}, v{vT2}')
    I(f'v_mul_u32_u24 v{vT0}, 3072, v{vT0}')
    I(f'v_and_b32 v{vT2}, 1, v0')
    I(f'v_lshl_add_u32 v{vT0}, v{vT2}, 4, v{vT0}')
    I(f'v_lshl_add_u32 v{vD[0]}, v{vT1}, 5, v{vT0}')
    I(f'v_xor_b32 v{vT1}, 1, v{vT1}')
    I(f'v_lshl_add_u32 v{vD[2]}, v{vT1}, 5, v{vT0}')
    I(f'v_add_u32 v{vD[1]}, {4*3072-1024}, v{vD[0]}')
    I(f'v_add_u32 v{vD[3]}, {4*3072-1024}, v{vD[2]}')
    I(f'v_lshrrev_b32 v{vT0}, 3, v0')
    I(f'v_lshrrev_b32 v{vT1}, 2, v0')
    I(f'v_lshrrev_b32 v{vT2}, 4, v0')
    I(f'v_xor_b32 v{vT1}, v{vT1}, v{vT2}')
    I(f'v_and_b32 v{vT1}, 1, v{vT1}')
    I(f'v_mul_u32_u24 v{vT0}, 3840, v{vT0}')
    I(f'v_lshl_add_u32 v{vT0}, v{vT1}, 6, v{vT0}')
    I(f'v_and_b32 v{vT1}, 3, v0')
    I(f'v_lshl_add_u32 v{vD[4]}, v{vT1}, 4, v{vT0}')
    I(f's_mul_i32 s{sO0}, s{sL}, {8*3072}')
    I(f's_lshl_b32 s{sT}, s{sCG}, 8')
    I(f's_add_u32 s{sO0}, s{sO0}, s{sT}')
    I(f's_mul_i32 s{sO2}, s{sL}, {8*3840}')
    I(f's_min_u32 s{sT}, s{sCG}, 9')
    I(f's_lshl_b32 s{sT}, s{sT}, 7')
    I(f's_add_u32 s{sO2}, s{sO2}, s{sT}')
    I(f's_add_u32 s{sO2}, s{sO2}, 2560')
    I(f's_mov_b32 s{sSt0}, {32*3072}')
    I(f's_mov_b32 s{sD0+2}, {D*F*2}')
    I(f's_mov_b32 s{sD1+2}, {D*F*2}')
    I(f's_lshl_b32 s{sM[0]}, s{sL}, 11')
    I(f's_add_u32 s{sM[1]}, s{sM[0]}, 8192')
    I(f's_lshl_b32 s{sM[2]}, s{sL}, 10')
    I(f's_add_u32 s{sM[2]}, s{sM[2]}, 16384')
    I(f's_cmp_ge_u32 s{sCG}, 10')
    I(f's_cselect_b32 s{sD2+2}, 0, s{sD2+2}')
    I('s_waitcnt lgkmcnt(0)')
    I(f's_mov_b32 s{sD0}, s52'); I(f's_mov_b32 s{sD0+1}, s53')
    I(f's_mov_b32 s{sD1}, s54'); I(f's_mov_b32 s{sD1+1}, s55')
    I(f's_branch {name}_setup_done')
    a.label(f'{name}_setup_qk')
    for j in range(5):
        I(f'v_add_u32 v{vT0}, {64*j}, v0')
        I(f'v_mul_u32_u24 v{vT1}, 1639, v{vT0}')
        I(f'v_lshrrev_b32 v{vT1}, 16, v{vT1}')
        I(f'v_lshlrev_b32 v{vT2}, 1, v{vT1}')
        I(f'v_and_b32 v{vT2}, 4, v{vT2}')
        I(f'v_xor_b32 v{vT0}, v{vT0}, v{vT2}')
        I(f'v_mul_u32_u24 v{vT1}, {3840-640}, v{vT1}')
        I(f'v_lshl_add_u32 v{vD[j]}, v{vT0}, 4, v{vT1}')
        if j & 1:
            I(f'v_subrev_u32 v{vD[j]}, 1024, v{vD[j]}')
    I(f's_mul_i32 s{sO0}, s{sL}, {8*3840}')
    I(f's_sub_u32 s{sT}, s{sCG}, 12')
    I(f's_mul_i32 s{sT}, s{sT}, 640')
    I(f's_add_u32 s{sO0}, s{sO0}, s{sT}')
    I(f's_mov_b32 s{sO2}, s{sO0}')
    I(f's_mov_b32 s{sSt0}, {32*3840}')
    I(f's_mov_b32 s{sD0+2}, {D*3*D*2}')
    I(f's_mov_b32 s{sD1+2}, {D*3*D*2}')
    I(f's_mul_i32 s{sM[0]}, s{sL}, 5120')
    I(f's_add_u32 s{sM[1]}, s{sM[0]}, 2048')
    I(f's_add_u32 s{sM[2]}, s{sM[0]}, 4096')
    I('s_waitcnt lgkmcnt(0)')
    I(f's_mov_b32 s{sD0}, s6'); I(f's_mov_b32 s{sD0+1}, s7')
    I(f's_mov_b32 s{sD1}, s6'); I(f's_mov_b32 s{sD1+1}, s7')
    a.label(f'{name}_setup_done')
    if 'fine' in dbg: st.mark()
    I(f's_mov_b32 s{sD2}, s6'); I(f's_mov_b32 s{sD2+1}, s7')
    I(f's_mov_b32 s{sX}, s4'); I(f's_mov_b32 s{sX+1}, s5')

    def dmaB(slot):
        for x in [
            f's_add_u32 m0, s{sM[0]}, {B_LDS+slot*BSLOT}',
            f's_nop 0',
            f'buffer_load_dwordx4 v{vD[0]}, {srd(sD0)}, s{sO0} offen lds',
            f'buffer_load_dwordx4 v{vD[1]}, {srd(sD0)}, s{sO0} offen offset:1024 lds',
            f's_add_u32 m0, s{sM[1]}, {B_LDS+slot*BSLOT}',
            f's_nop 0',
            f'buffer_load_dwordx4 v{vD[2]}, {srd(sD1)}, s{sO0} offen lds',
            f'buffer_load_dwordx4 v{vD[3]}, {srd(sD1)}, s{sO0} offen offset:1024 lds',
            f's_add_u32 m0, s{sM[2]}, {B_LDS+slot*BSLOT}',
            f's_add_u32 s{sO0}, s{sO0}, s{sSt0}',
            f'buffer_load_dwordx4 v{vD[4]}, {srd(sD2)}, s{sO2} offen lds',
            f's_add_u32 s{sO2}, s{sO2}, {32*3840}']: I(x)
    def dmaX(slot):
        for x in [
            f's_cmp_ge_u32 s{sXi}, 10',
            f's_cselect_b32 s{sX+2}, 0, s{sX+2}',
            f's_add_u32 m0, s{sMX}, {slot*XSLOT}',
            f's_add_u32 s{sXi}, s{sXi}, 1',
            f'buffer_load_dwordx4 v{vDX[0]}, {srd(sX)}, s{sOX} offen lds',
            f'buffer_load_dwordx4 v{vDX[1]}, {srd(sX)}, s{sOX} offen offset:1024 lds',
            f'buffer_load_dwordx4 v{vDX[2]}, {srd(sX)}, s{sOX} offen offset:2048 lds',
            f'buffer_load_dwordx4 v{vDX[3]}, {srd(sX)}, s{sOX} offen offset:3072 lds',
            f's_add_u32 s{sOX}, s{sOX}, 128']: I(x)
    sRU, sRK, sRC = 64, 65, 66
    I(f's_load_dwordx2 s[68:69], s[0:1], {KA_WO}')
    I(f's_load_dwordx2 s[72:73], s[0:1], {KA_WD}')
    I(f's_lshl_b32 s{sRU}, s2, 2')
    I(f's_add_u32 s{sRU}, s{sRU}, s{sL}')
    I(f's_mul_i32 s{sRK}, s{sRU}, 13108')
    I(f's_lshr_b32 s{sRK}, s{sRK}, 16')
    I(f's_mul_i32 s{sT}, s{sRK}, 5')
    I(f's_sub_u32 s{sRC}, s{sRU}, s{sT}')
    dmaX(0); dmaB(0)
    if 'fine' in dbg: st.mark()
    dmaB(1)
    if 'fine' in dbg: st.mark()
    a.label(f'{name}_rd')
    npf = 0
    I(f's_cmp_ge_u32 s{sCG}, 10')
    I(f's_cselect_b32 s{sType}, 1, 0')
    I(f's_cmp_ge_u32 s{sCG}, 12')
    I(f's_cselect_b32 s{sType}, 2, s{sType}')
    I(f's_cmp_ge_u32 s{sCG}, 14')
    I(f's_cselect_b32 s{sType}, 3, s{sType}')
    I(f's_cmp_ge_u32 s{sWave}, 4')
    I(f's_cbranch_scc1 {name}_nopf')
    vWA, vWI = 244, 246
    def touch(mask='s[64:65]'):
        for x in [f's_mov_b64 exec, {mask}',
                  f'global_load_dword v{vPF}, v[{vWA}:{vWA+1}], off',
                  's_mov_b64 exec, -1',
                  f'v_add_co_u32 v{vWA}, vcc, v{vWA}, v{vWI}',
                  f'v_addc_co_u32 v{vWA+1}, vcc, 0, v{vWA+1}, vcc']:
            I(x, tag='pf')
    if lin:
        I(f's_lshl_b32 s{sT}, s2, 2')
        I(f's_add_u32 s{sT}, s{sT}, s{sL}')
        I(f'v_lshrrev_b32 v{vT0}, 3, v0')
        I(f'v_and_b32 v{vT1}, 7, v0')
        I(f'v_cmp_gt_u32 vcc, 4, v{vT0}')
        I(f'v_cndmask_b32 v{vT1}, v{vT1}, v0, vcc')
        I(f'v_mov_b32 v{vT2}, 20')
        I(f'v_mov_b32 v{vWI}, {S*D*2}')
        I('s_waitcnt lgkmcnt(0)')
        I(f'v_mov_b32 v{vWA}, s4'); I(f'v_mov_b32 v{vWA+1}, s5')
        for grp, n, q, p in ((4, 5, 160*3840, 6), (5, 4, 160*3072, 52), (6, 4, 160*3072, 54)):
            I(f'v_cmp_eq_u32 vcc, {grp}, v{vT0}')
            I(f'v_mov_b32 v{vU}, s{p}'); I(f'v_mov_b32 v{vU+1}, s{p+1}'); I(f'v_mov_b32 v{vU+2}, {q}')
            I(f'v_cndmask_b32 v{vWA}, v{vWA}, v{vU}, vcc')
            I(f'v_cndmask_b32 v{vWA+1}, v{vWA+1}, v{vU+1}, vcc')
            I(f'v_cndmask_b32 v{vWI}, v{vWI}, v{vU+2}, vcc')
            I(f'v_mov_b32 v{vU}, {n}')
            I(f'v_cndmask_b32 v{vT2}, v{vT2}, v{vU}, vcc')
        I(f'v_mul_lo_u32 v{vT2}, v{vT2}, s{sT}')
        I(f'v_add_u32 v{vT2}, v{vT2}, v{vT1}')
        I(f'v_lshlrev_b32 v{vT2}, 7, v{vT2}')
        I(f'v_subrev_u32 v{vT1}, 128, v{vWI}')
        I(f'v_min_u32 v{vT2}, v{vT2}, v{vT1}')
        I(f'v_add_co_u32 v{vWA}, vcc, v{vWA}, v{vT2}')
        I(f'v_addc_co_u32 v{vWA+1}, vcc, 0, v{vWA+1}, vcc')
        I(f's_mov_b32 s64, 0')
        I(f's_mov_b32 s65, 0x000f0f1f')
        I(f's_mov_b32 s66, 0x000fffff')
        I(f's_mov_b32 s67, 0x000f0f1f')
        touch('s[66:67]')
        for i in range(lin - 1):
            touch()
    if codepf:
        code_prefetch(a, f'{name}_nopf', f'{name}_end', sL, 4, vLane16, vPF, 56, sT, 28 if mega else CODEKB)
    a.label(f'{name}_nopf')
    I(f'v_and_b32 v{vTok}, 31, v0')
    I(f'v_lshrrev_b32 v{vHk}, 5, v0')
    I(f's_lshl_b32 s{sT}, s{sRP}, 1')
    I(f's_cmp_ge_u32 s{sWave}, 4')
    I(f's_cselect_b32 s{sT}, s{sL}, s{sT}')
    I(f's_cselect_b32 s{sT2}, s{sRP}, 0')
    I(f's_lshl_b32 s{sT}, s{sT}, 12')
    I(f's_add_u32 s{sT}, s{sT}, {X_LDS}')
    I(f'v_bfe_u32 v{vT1}, v0, 1, 3')
    I(f'v_xor_b32 v{vT1}, v{vT1}, v{vHk}')
    I(f'v_lshlrev_b32 v{vT0}, 7, v{vTok}')
    I(f'v_add_u32 v{vT0}, s{sT}, v{vT0}')
    for ks in range(4):
        I(f'v_xor_b32 v{vU}, {2*ks}, v{vT1}')
        I(f'v_lshl_add_u32 v{vXB[ks]}, v{vU}, 4, v{vT0}')
    I(f'v_bfe_u32 v{vT0}, v0, 2, 2')
    I(f'v_lshl_add_u32 v{vT1}, v{vHk}, 3, v{vT0}')
    I(f's_lshl_b32 s{sT2}, s{sT2}, 4')
    I(f'v_add_u32 v{vT1}, s{sT2}, v{vT1}')
    I(f'v_and_b32 v{vT2}, 3, v0')
    I(f'v_lshlrev_b32 v{vT2}, 3, v{vT2}')
    I(f'v_add_u32 v{vT2}, {B_LDS}, v{vT2}')
    vG16 = vU
    I(f'v_bfe_u32 v{vG16}, v0, 4, 1')
    W0 = vWB[0]
    I(f's_lshl_b32 s{sT}, s{sG}, 2')
    I(f's_cmp_ge_u32 s{sType}, 2')
    I(f's_cbranch_scc1 {name}_rd_qk')
    I(f'v_lshlrev_b32 v{vU+1}, 8, v{vT1}')
    I(f'v_lshl_add_u32 v{vU+1}, v{vG16}, 13, v{vU+1}')
    I(f'v_add_u32 v{vU+1}, v{vU+1}, v{vT2}')
    I(f'v_lshlrev_b32 v{vU+2}, 1, v{vT0}')
    I(f'v_xor_b32 v{vU+2}, v{vU+2}, v{vG16}')
    I(f'v_xor_b32 v{vU+2}, s{sT}, v{vU+2}')
    for i in range(4):
        I(f'v_xor_b32 v{vU+3}, {i}, v{vU+2}')
        I(f'v_lshl_add_u32 v{W0[i]}, v{vU+3}, 5, v{vU+1}')
    I(f'v_lshrrev_b32 v{vU+3}, 1, v{vT0}')
    I(f'v_xor_b32 v{vU+3}, s{sG}, v{vU+3}')
    I(f'v_lshlrev_b32 v{vU+3}, 6, v{vU+3}')
    I(f'v_lshl_add_u32 v{vU+3}, v{vT1}, 7, v{vU+3}')
    I(f'v_lshl_add_u32 v{vU+3}, v{vG16}, 5, v{vU+3}')
    I(f'v_add_u32 v{vU+3}, v{vU+3}, v{vT2}')
    I(f'v_add_u32 v{W0[4]}, 16384, v{vU+3}')
    I(f's_branch {name}_rd_done')
    a.label(f'{name}_rd_qk')
    I(f'v_mul_u32_u24 v{vU+1}, 640, v{vT1}')
    I(f'v_lshl_add_u32 v{vU+1}, v{vG16}, 5, v{vU+1}')
    I(f'v_add_u32 v{vU+1}, v{vU+1}, v{vT2}')
    I(f'v_lshrrev_b32 v{vU+2}, 1, v{vT0}')
    I(f'v_xor_b32 v{vU+3}, s{sT}, v{vU+2}')
    for i in range(4):
        I(f'v_xor_b32 v{vT0}, {i}, v{vU+3}')
        I(f'v_lshl_add_u32 v{W0[i]}, v{vT0}, 6, v{vU+1}')
    I(f'v_xor_b32 v{vU+3}, s{sG}, v{vU+2}')
    I(f'v_add_u32 v{vU+3}, 8, v{vU+3}')
    I(f'v_lshl_add_u32 v{W0[4]}, v{vU+3}, 6, v{vU+1}')
    a.label(f'{name}_rd_done')
    for i in range(5):
        I(f'v_add_u32 v{vWB[1][i]}, {2*BSLOT}, v{W0[i]}')
    I(f's_mov_b32 s{sCnt}, 5')
    I(f's_cmp_lt_u32 s{sWave}, 4')
    I(f's_cbranch_scc1 {name}_comp')
    if lprio: I(f's_setprio {lprio}')
    I(f'v_lshlrev_b32 v{vT3}, 2, v{vT3}')
    I(f'v_mov_b32 v{vT0}, 0')
    I(f'ds_write_b32 v{vT3}, v{vT0} offset:{CS_LDS}')
    I(f'ds_write_b32 v{vT3}, v{vT0} offset:{CS_LDS+1024}')
    I(f'v_and_b32 v{vT0}, 15, v0')
    I(f'v_cmp_eq_u32 vcc, v{vT0}, v{vG16}')
    I(f'v_mov_b32 v{vT1}, 0x3f803f80')
    for r in range(4):
        I(f'v_cndmask_b32 v{vSel+r}, 0, v{vT1}, vcc')
    for r in range(4):
        I(f'v_mov_b32 v{vSA+r}, 0')
    for r in range(20):
        I(f'v_mov_b32 v{LCS+r}, 0')
    vW2 = [[96 + 5 * ss + i for i in range(5)] for ss in range(2)]
    I(f's_cmp_ge_u32 s{sType}, 2')
    I(f's_cselect_b32 s{sT}, {4*640}, {4*256}'.replace(f'{4*640}, {4*256}', f'{4*640}, s{sT}')) if False else None
    I(f's_movk_i32 s{sT}, {4*256}')
    I(f's_movk_i32 s{sT2}, {4*128}')
    I(f's_cselect_b32 s{sT}, {4*640}, s{sT}')
    I(f's_cselect_b32 s{sT2}, {4*640}, s{sT2}')
    for ss in range(2):
        for i in range(5):
            I(f'v_add_u32 v{vW2[ss][i]}, s{sT if i < 4 else sT2}, v{vWB[ss][i]}')
    I('s_waitcnt vmcnt(5) lgkmcnt(0)')
    if 'fine' in dbg: st.mark()
    I('s_barrier')
    st.mark()
    dmaB(2); dmaX(1); dmaB(3)
    def st_ops(src):
        if 'nostats' in dbg: return
        for d in range(4):
            t = vU + 2 * (d & 1)
            for x in [f'v_lshlrev_b32 v{t}, 16, v{src+d}', f'v_and_b32 v{t+1}, 0xffff0000, v{src+d}',
                      f'v_add_f32 v{vSA}, v{vSA}, v{t}', f'v_add_f32 v{vSA+1}, v{vSA+1}, v{t+1}',
                      f'v_fmac_f32 v{vSA+2}, v{t}, v{t}', f'v_fmac_f32 v{vSA+3}, v{t+1}, v{t+1}']: I(x)
    def lwork(j):
        o = (j & 1) * BSLOT
        for s2 in range(2):
            I(f'ds_read_b128 {vr(LX[s2])}, v{vXB[2*(j&1)+s2]} offset:{((j >> 1) & 1) * XSLOT}')
        for u in range(5 if 'nocs' not in dbg else 0):
            I(f'ds_read_b64_tr_b16 {vr(LW+4*u,2)}, v{vWB[j>>1][u]} offset:{o}')
            I(f'ds_read_b64_tr_b16 {vr(LW+4*u+2,2)}, v{vW2[j>>1][u]} offset:{o}')
        I('s_waitcnt lgkmcnt(11)' if 'nocs' not in dbg else 's_waitcnt lgkmcnt(1)')
        st_ops(LX[0])
        I('s_waitcnt lgkmcnt(0)')
        for u in range(5 if 'nocs' not in dbg else 0):
            I(f'v_mfma_f32_16x16x32_bf16 {vr(LCS+4*u)}, {vr(vSel)}, {vr(LW+4*u)}, {vr(LCS+4*u)}')
        st_ops(LX[1])
    a.I('.p2align 3')
    a.label(f'{name}_lloop')
    for j in range(4):
        if 'nolw' not in dbg:
            lwork(j)
        I(f's_waitcnt vmcnt({10 if j & 1 else 14})')
        I('s_barrier')
        if 'nodma' not in dbg:
            if j & 1:
                dmaX(j >> 1)
            dmaB(j)
    I(f's_sub_u32 s{sCnt}, s{sCnt}, 1')
    I(f's_cmp_lg_u32 s{sCnt}, 0')
    I(f's_cbranch_scc1 {name}_lloop')
    st.mark()
    I(f'v_lshrrev_b32 v{vT0}, 4, v0')
    I(f'v_mul_u32_u24 v{vT0}, {1280-256}, v{vT0}')
    I(f'v_add_u32 v{vT0}, v{vT0}, v{vLane16}')
    I(f's_mul_i32 s{sT}, s{sRK}, 13108')
    I(f's_lshr_b32 s{sT}, s{sT}, 16')
    I(f's_mul_i32 s{sT2}, s{sT}, 5')
    I(f's_sub_u32 s{sT2}, s{sRK}, s{sT2}')
    I(f's_mul_i32 s{sT}, s{sT}, 80')
    I(f's_mul_i32 s74, s{sT2}, 20')
    I(f's_add_u32 s74, s74, s{sT}')
    I(f's_add_u32 s{sT}, s{sT}, 16')
    I(f's_cmp_eq_u32 s{sT2}, 4')
    I(f's_cselect_b32 s74, s{sT}, s74')
    I(f's_cselect_b32 s{sXi}, 1, 0')
    I(f's_sub_u32 s{sT}, s{sRK}, 40')
    I(f's_lshl_b32 s{sT}, s{sT}, 4')
    I(f's_mov_b32 s70, {D*D*2}')
    I(f's_mov_b32 s71, 0x20000')
    I(f's_cmp_ge_u32 s{sRK}, 40')
    I(f's_cselect_b32 s68, s72, s68')
    I(f's_cselect_b32 s69, s73, s69')
    I(f's_cselect_b32 s70, {F*D*2}, s70')
    I(f's_cselect_b32 s74, s{sT}, s74')
    I(f's_cselect_b32 s{sXi}, 0, s{sXi}')
    I(f's_cmp_ge_u32 s{sRU}, 680')
    I(f's_cselect_b32 s70, 0, s70')
    I(f's_mul_i32 s74, s74, 1280')
    I(f's_lshl_b32 s{sT2}, s{sRC}, 8')
    I(f's_add_u32 s74, s74, s{sT2}')
    I(f's_lshl_b32 s67, s{sL}, 12')
    I(f's_add_u32 s67, s67, {R_LDS}')
    for j in range(4):
        I(f's_mov_b32 s{sT}, {4*j*1280}')
        I(f's_cmp_eq_u32 s{sXi}, 1')
        I(f's_cselect_b32 s{sT}, {20*[0,2,1,3][j]*1280}, s{sT}')
        I(f's_add_u32 s{sT}, s{sT}, s74')
        I(f's_add_u32 m0, s67, {1024*j}')
        I(f's_nop 0')
        I(f'buffer_load_dwordx4 v{vT0}, s[68:71], s{sT} offen lds')
    I(f'v_add_f32 v{vSA}, v{vSA}, v{vSA+1}')
    I(f'v_add_f32 v{vSA+1}, v{vSA+2}, v{vSA+3}')
    I(f'v_mov_b32 v{vSA+2}, v{vSA}')
    I(f'v_mov_b32 v{vSA+3}, v{vSA+1}')
    I(f's_lshl_b32 s{sT}, s{sG}, 9')
    I(f'v_lshlrev_b32 v{vT1}, 2, v{vTok}')
    I(f'v_permlane32_swap_b32 v{vSA+2}, v{vSA}')
    I(f'v_permlane32_swap_b32 v{vSA+3}, v{vSA+1}')
    I(f'v_add_u32 v{vT2}, s{sT}, v{vT1}')
    I(f's_lshl_b32 s{sT}, s{sG}, 7')
    I(f'v_add_u32 v{vT0}, s{sT}, v{vT1}')
    I('s_mov_b64 exec, 0xffff')
    for i in range(5):
        for h in range(2):
            if i < 4:
                I(f'ds_add_f32 v{vT2}, v{LCS+4*i+h} offset:{CS_LDS+128*i+64*h}')
            else:
                I(f'ds_add_f32 v{vT0}, v{LCS+4*i+h} offset:{CS_LDS+1024+64*h}')
    I('s_mov_b64 exec, -1')
    I(f'v_add_f32 v{vSA}, v{vSA}, v{vSA+2}')
    I(f'v_add_f32 v{vSA+1}, v{vSA+1}, v{vSA+3}')
    I(f'v_mul_f32 v{vSA}, 0x{f2u(1.0/640):08x}, v{vSA}')
    I(f'v_mul_f32 v{vSA+1}, 0x{f2u(1.0/640):08x}, v{vSA+1}')
    I(f'v_fma_f32 v{vSA+1}, -v{vSA}, v{vSA}, v{vSA+1}')
    I(f'v_max_f32 v{vSA+1}, 0, v{vSA+1}')
    I(f'v_cvt_pk_bf16_f32 v{vSA+2}, v{vSA+1}, -v{vSA}')
    I(f'v_and_b32 v{vSA}, 0xffff0000, v{vSA+2}')
    I(f'v_lshlrev_b32 v{vSA+2}, 16, v{vSA+2}')
    I(f'v_add_f32 v{vSA+2}, 0x{f2u(1e-5):08x}, v{vSA+2}')
    I(f'v_cvt_pk_bf16_f32 v{vSA+2}, v{vSA+2}, v{vSA+2}')
    I(f'v_lshlrev_b32 v{vSA+2}, 16, v{vSA+2}')
    I(f'v_sqrt_f32 v{vSA+2}, v{vSA+2}')
    I(f'v_cvt_pk_bf16_f32 v{vSA+2}, v{vSA+2}, v{vSA+2}')
    I(f'v_lshlrev_b32 v{vSA+2}, 16, v{vSA+2}')
    I(f'v_rcp_f32 v{vSA+1}, v{vSA+2}')
    I(f's_lshl_b32 s{sT}, s{sL}, 7')
    I(f'v_add_u32 v{vT3}, s{sT}, v{vT1}')
    I(f'ds_write_b32 v{vT3}, v{vSA} offset:{NM_LDS}')
    I(f'ds_write_b32 v{vT3}, v{vSA+1} offset:{RR_LDS}')
    I('s_waitcnt lgkmcnt(0)')
    I('s_barrier')
    I(f's_cmp_ge_u32 s{sRU}, 680')
    I(f's_cbranch_scc1 {name}_fin')
    I('s_waitcnt vmcnt(0)')
    I(f'v_bfe_u32 v{vT0}, v0, 2, 2')
    I(f'v_lshl_add_u32 v{vT0}, v{vHk}, 2, v{vT0}')
    I(f'v_lshlrev_b32 v{vT0}, 8, v{vT0}')
    I(f'v_bfe_u32 v{vT1}, v0, 4, 1')
    I(f'v_lshl_add_u32 v{vT0}, v{vT1}, 5, v{vT0}')
    I(f'v_and_b32 v{vT1}, 3, v0')
    I(f'v_lshl_add_u32 v{vT0}, v{vT1}, 3, v{vT0}')
    I(f'v_add_u32 v{vT0}, s67, v{vT0}')
    for j in range(4):
        I(f'ds_read_b64_tr_b16 {vr(LW+4*j,2)}, v{vT0} offset:{64*j}')
        I(f'ds_read_b64_tr_b16 {vr(LW+4*j+2,2)}, v{vT0} offset:{64*j+2048}')
    I(f's_mov_b32 s{sWS+2}, {WS_SIZE}')
    I(f's_mov_b32 s{sWS+3}, 0x20000')
    I(f's_mul_i32 s{sT}, s{sRC}, {4*AREC}')
    I(f's_lshl_b32 s{sT2}, s{sRK}, 10')
    I(f's_add_u32 s{sT}, s{sT}, s{sT2}')
    I(f's_add_u32 s{sT}, s{sT}, {WF_OFF}')
    for j in range(4):
        I(f's_waitcnt lgkmcnt({6-2*j})')
        I(f'buffer_store_dwordx4 {vr(LW+4*j)}, v{vLane16}, {srd(sWS)}, s{sT} offen{stmod}')
        I(f's_add_u32 s{sT}, s{sT}, {AREC}')
    I(f's_branch {name}_fin')
    a.label(f'{name}_comp')
    st.n = 0
    if 'fine' in dbg:
        for i in range(3): st.mark()
    if prio:
        I('s_setprio 1')
    I(f's_mov_b32 s{sWS+2}, {WS_SIZE}')
    I(f's_mov_b32 s{sWS+3}, 0x20000')
    I(f's_mov_b32 s{sLo}, -1')
    I(f's_mov_b32 s{sLo+1}, 0')
    for r in range(160):
        I(f'v_mov_b32 v{ACC+r}, 0')
    I('s_waitcnt lgkmcnt(0)')
    if warm:
        I(f'v_mul_u32_u24 v{vT0}, 13108, v0')
        I(f'v_lshrrev_b32 v{vT0}, 16, v{vT0}')
        I(f'v_mul_u32_u24 v{vT1}, 5, v{vT0}')
        I(f'v_sub_u32 v{vT1}, v0, v{vT1}')
        I(f's_and_b32 s{sT}, s{sRB}, 7')
        I(f's_lshl_b32 s{sT}, s{sT}, 2')
        I(f's_lshl_b32 s{sT2}, s{sL}, 5')
        I(f's_add_u32 s{sT}, s{sT}, s{sT2}')
        I(f's_add_u32 s{sT}, s{sT}, 128')
        I(f'v_add_u32 v{vT0}, s{sT}, v{vT0}')
        I(f'v_mov_b32 v{vWA}, s6')
        I(f'v_mov_b32 v{vWA+1}, s7')
        I(f'v_mov_b32 v{vT2}, 3840')
        I(f's_cmp_ge_u32 s{sType}, 2')
        I(f's_cbranch_scc1 {name}_warm_qk')
        I(f's_min_u32 s{sT}, s{sCG}, 9')
        I(f's_lshl_b32 s{sT}, s{sT}, 7')
        I(f's_add_u32 s{sT}, s{sT}, 2560')
        I(f'v_mov_b32 v{vT3}, s{sT}')
        I(f's_lshl_b32 s{sT}, s{sCG}, 8')
        I(f'v_and_b32 v{26}, 1, v{vT1}')
        I(f'v_lshlrev_b32 v{26}, 7, v{26}')
        I(f'v_add_u32 v{26}, s{sT}, v{26}')
        I(f'v_cmp_gt_u32 vcc, 4, v{vT1}')
        I(f'v_mov_b32 v{27}, 3072')
        I(f'v_cndmask_b32 v{vT2}, v{vT2}, v{27}, vcc')
        I(f'v_cndmask_b32 v{vT3}, v{vT3}, v{26}, vcc')
        I(f'v_mov_b32 v{26}, s54'); I(f'v_mov_b32 v{27}, s55')
        I(f'v_cndmask_b32 v{vWA}, v{vWA}, v{26}, vcc')
        I(f'v_cndmask_b32 v{vWA+1}, v{vWA+1}, v{27}, vcc')
        I(f'v_cmp_gt_u32 vcc, 2, v{vT1}')
        I(f'v_mov_b32 v{26}, s52'); I(f'v_mov_b32 v{27}, s53')
        I(f'v_cndmask_b32 v{vWA}, v{vWA}, v{26}, vcc')
        I(f'v_cndmask_b32 v{vWA+1}, v{vWA+1}, v{27}, vcc')
        I(f's_branch {name}_warm_done')
        a.label(f'{name}_warm_qk')
        I(f's_sub_u32 s{sT}, s{sCG}, 12')
        I(f's_mul_i32 s{sT}, s{sT}, 640')
        I(f'v_lshlrev_b32 v{vT3}, 7, v{vT1}')
        I(f'v_add_u32 v{vT3}, s{sT}, v{vT3}')
        a.label(f'{name}_warm_done')
        I(f'v_mul_u32_u24 v{vT0}, v{vT0}, v{vT2}')
        I(f'v_add_u32 v{vT3}, v{vT3}, v{vT0}')
        I(f'v_lshlrev_b32 v{vWI}, 7, v{vT2}')
        I(f's_lshl_b32 s{sT}, s{sRB}, 7')
        I(f's_and_b32 s{sT2}, s{sCG}, 3')
        I(f's_lshl_b32 s{sT2}, s{sT2}, 5')
        I(f's_add_u32 s{sT}, s{sT}, s{sT2}')
        I(f's_lshl_b32 s{sT2}, s{sRP}, 4')
        I(f's_add_u32 s{sT}, s{sT}, s{sT2}')
        I(f's_mul_i32 s{sT}, s{sT}, 1280')
        I(f's_lshl_b32 s{sT2}, s{sG}, 7')
        I(f's_add_u32 s{sT}, s{sT}, s{sT2}')
        I(f's_add_u32 s{sT}, s{sT}, 256')
        I(f'v_and_b32 v{vT0}, 15, v0')
        I(f'v_mul_u32_u24 v{vT0}, 1280, v{vT0}')
        I(f'v_add_u32 v{vT0}, s{sT}, v{vT0}')
        I(f'v_mov_b32 v{26}, s4'); I(f'v_mov_b32 v{27}, s5'); I(f'v_mov_b32 v{28}, 256')
        I(f'v_cndmask_b32 v{vT3}, v{vT0}, v{vT3}, s[{sLo}:{sLo+1}]')
        I(f'v_cndmask_b32 v{vWA}, v{26}, v{vWA}, s[{sLo}:{sLo+1}]')
        I(f'v_cndmask_b32 v{vWA+1}, v{27}, v{vWA+1}, s[{sLo}:{sLo+1}]')
        I(f'v_cndmask_b32 v{vWI}, v{28}, v{vWI}, s[{sLo}:{sLo+1}]')
        I(f'v_add_co_u32 v{vWA}, vcc, v{vWA}, v{vT3}')
        I(f'v_addc_co_u32 v{vWA+1}, vcc, 0, v{vWA+1}, vcc')
        I(f's_mov_b32 s64, 0x000fffff')
        I(f's_mov_b32 s65, 0x0000ffff')
    for i in range(lin2):
        touch()
    if warm:
        for i in range(warm):
            touch()
    if 'fine' in dbg: st.mark()
    I('s_barrier')
    st.mark()

    def loop(typ):
        rs = [256] * 4 + [128] if typ == 'A' else [640] * 5
        def rdW(fset, u, slot, sp):
            b = vWB[slot >> 1][u]
            o = (slot & 1) * BSLOT + 16 * sp * rs[u]
            return [f'ds_read_b64_tr_b16 {vr(Wf(fset,u),2)}, v{b} offset:{o}',
                    f'ds_read_b64_tr_b16 {vr(Wf(fset,u)+2,2)}, v{b} offset:{o+4*rs[u]}']
        def rdX(fset, j, sp):
            return [f'ds_read_b128 {vr(XFR[fset][t])}, v{vXB[2*(j&1)+sp]} offset:{((j >> 1) & 1) * XSLOT + 4096 * t}' for t in range(2)]
        def mf(fset, u, t):
            acc = vr(Acc(t, u), 16)
            if typ == 'A' and u == 4:
                return f'v_mfma_f32_32x32x16_bf16 {acc}, {vr(XFR[fset][t])}, {vr(Wf(fset,u))}, {acc}'
            return f'v_mfma_f32_32x32x16_bf16 {acc}, {vr(Wf(fset,u))}, {vr(XFR[fset][t])}, {acc}'
        def emit_phase(mf_list, lst, f1, tail=()):
            for k in range(len(mf_list)):
                I(mf_list[k])
                if k < f1:
                    lo, hi = len(lst) * k // f1, len(lst) * (k + 1) // f1
                    for x in lst[lo:hi]:
                        if 'nord' not in dbg: I(x)
                if k == len(mf_list) - 2:
                    for x in tail: I(x)
        L = f'{name}_loop{typ}'
        for x in rdX(0, 0, 0): I(x)
        for u in range(5):
            for x in rdW(0, u, 0, 0): I(x)
        I('s_waitcnt lgkmcnt(0)')
        a.I('.p2align 3')
        a.label(L)
        order = [(u, t) for u in range(5) for t in range(2)]
        for j in range(4):
            if (warm or lin) and j == wj and (warm or lin + lin2 < 4):
                I(f's_cmp_le_u32 s{sCnt}, {1 + (warm if warm else lin + lin2)}')
                I(f's_cbranch_scc1 {L}_nt')
                touch()
                a.label(f'{L}_nt')
            lds = rdX(1, j, 1)
            for u in range(5):
                lds += rdW(1, u, j, 1)
            emit_phase([mf(0, u, t) for u, t in order], lds, 6, ['s_waitcnt lgkmcnt(0)'])
            I('s_barrier')
            jn = (j + 1) & 3
            lds = rdX(0, jn, 0)
            for u in range(5):
                lds += rdW(0, u, jn, 0)
            tail = ['s_waitcnt lgkmcnt(0)']
            if j == 3:
                tail += [f's_sub_u32 s{sCnt}, s{sCnt}, 1', f's_cmp_lg_u32 s{sCnt}, 0']
            emit_phase([mf(1, u, t) for u, t in order], lds, 6, tail)
        I(f's_cbranch_scc1 {L}')
    I(f's_cmp_ge_u32 s{sType}, 2')
    I(f's_cbranch_scc1 {name}_mainQ')
    loop('A')
    I(f's_branch {name}_post')
    a.label(f'{name}_mainQ')
    loop('Q')
    a.label(f'{name}_post')
    st.mark()
    vNM, vR, vR2 = [8, 10], [12, 14], [16, 18]
    I(f'v_lshlrev_b32 v{vT1}, 2, v{vTok}')
    I(f's_lshl_b32 s{sT}, s{sRP}, 8')
    I(f'v_add_u32 v{vT3}, s{sT}, v{vT1}')
    I(f's_lshl_b32 s{sT}, s{sG}, 9')
    I(f'v_lshlrev_b32 v{vT0}, 4, v{vHk}')
    I(f'v_add_u32 v{vT2}, s{sT}, v{vT0}')
    I(f's_lshl_b32 s{sT}, s{sG}, 7')
    I(f'v_add_u32 v{vT0}, s{sT}, v{vT0}')
    I(f's_lshl_b32 s{sT}, s{sRB}, 2')
    I(f's_lshl_b32 s56, s{sRP}, 1')
    I(f's_add_u32 s56, s56, s{sT}')
    I(f's_add_u32 s57, s56, 1')
    sGT = [56, 57]
    I('s_barrier')
    for t in range(2):
        I(f'ds_read_b32 v{vNM[t]}, v{vT3} offset:{NM_LDS+128*t}')
        I(f'ds_read_b32 v{vR[t]}, v{vT3} offset:{RR_LDS+128*t}')
    CSR = [26, 42]
    def rd_cs(i, dst):
        for rq in range(4):
            if i < 4:
                I(f'ds_read_b128 {vr(dst+4*rq)}, v{vT2} offset:{CS_LDS+128*i+32*rq}')
            else:
                I(f'ds_read_b128 {vr(dst+4*rq)}, v{vT0} offset:{CS_LDS+1024+32*rq}')
    def fix(t, i, cs):
        for r in range(0, 16, 2):
            A = vr(Acc(t, i) + r, 2)
            I(f'v_pk_fma_f32 {A}, {vr(cs+r,2)}, {vr(vNM[t],2)}, {A} op_sel_hi:[1,0,1]')
    rd_cs(0, CSR[0]); rd_cs(1, CSR[1])
    I(f's_cmp_ge_u32 s{sType}, 2')
    I(f's_cbranch_scc1 {name}_epQK')
    for t in range(2):
        I(f's_mul_i32 s{58+t}, s{sGT[t]}, {AREC}')
    I(f's_lshl_b32 s{sT}, s{sCG}, 13')
    I(f's_lshl_b32 s{sT2}, s{sG}, 12')
    I(f's_add_u32 s{sT}, s{sT}, s{sT2}')
    I(f's_add_u32 s{sT}, s{sT}, {AF_OFF + 40*1024}')
    for t in range(2):
        I(f's_add_u32 s{58+t}, s{58+t}, s{sT}')
    I('s_waitcnt lgkmcnt(8)')
    for t in range(2):
        I(f'v_mul_f32 v{vR2[t]}, v{vR[t]}, v{vR[t]}')
    for i in range(4):
        I(f's_waitcnt lgkmcnt({4 if i < 3 else 0})')
        fix(0, i, CSR[i & 1]); fix(1, i, CSR[i & 1])
        if i + 2 < 4:
            rd_cs(i + 2, CSR[i & 1])
        for t in range(2):
            A = Acc(t, i)
            for r in range(8):
                I(f'v_max_f32 v{A+r}, 0, v{A+r}')
            for r in range(0, 8, 2):
                I(f'v_pk_mul_f32 {vr(A+8+r,2)}, {vr(A+8+r,2)}, {vr(vR2[t],2)} op_sel_hi:[1,0]')
            for r in range(0, 8, 2):
                I(f'v_pk_mul_f32 {vr(A+r,2)}, {vr(A+r,2)}, {vr(A+8+r,2)}')
            P = A + 8
            for r in range(4):
                I(f'v_cvt_pk_bf16_f32 v{P+r}, v{A+2*r}, v{A+2*r+1}')
            I(f'buffer_store_dwordx4 {vr(P)}, v{vLane16}, {srd(sWS)}, s{58+t} offen offset:{1024*i}{stmod}')
    I(f's_cmp_eq_u32 s{sType}, 1')
    I(f's_cbranch_scc1 {name}_fin')
    I(f's_lshl_b32 s{sT}, s{sG}, 7')
    I(f'v_add_u32 v{vT1}, s{sT}, v{vT1}')
    vCSV = 20
    I(f'ds_read_b32 v{vCSV}, v{vT1} offset:{CS_LDS+1024}')
    I(f'v_lshlrev_b32 v{vT1}, 4, v{vHk}')
    I(f's_lshl_b32 s{sT}, s{sRP}, 8')
    I(f'v_add_u32 v{vT2}, s{sT}, v{vT1}')
    NMR = [26, 42]; RRR = [58, Acc(0, 0)]
    for t in range(2):
        for rq in range(4):
            I(f'ds_read_b128 {vr(NMR[t]+4*rq)}, v{vT2} offset:{NM_LDS+128*t+32*rq}')
        if t == 1:
            I('s_waitcnt lgkmcnt(8)')
        for rq in range(4):
            if t == 1 and rq in (2,):
                pass
            I(f'ds_read_b128 {vr(RRR[t]+4*rq if t == 0 or rq < 2 else Acc(0,1)+4*(rq-2))}, v{vT2} offset:{RR_LDS+128*t+32*rq}')
    def RR(t, r): return RRR[t] + r if t == 0 or r < 8 else Acc(0, 1) + (r - 8)
    I(f's_lshl_b32 s{sT}, s{sCG}, 6')
    I(f's_lshl_b32 s{sT2}, s{sG}, 5')
    I(f's_add_u32 s{sT}, s{sT}, s{sT2}')
    I(f'v_add_u32 v{vT0}, s{sT}, v{vTok}')
    I(f'v_mul_u32_u24 v{vT1}, 3277, v{vT0}')
    I(f'v_lshrrev_b32 v{vT1}, 16, v{vT1}')
    I(f'v_mul_u32_u24 v{vT3}, 20, v{vT1}')
    I(f'v_sub_u32 v{vT0}, v{vT0}, v{vT3}')
    I(f's_mov_b32 s{sT}, {NT*KVREC}')
    I(f'v_mul_lo_u32 v{vT1}, v{vT1}, s{sT}')
    I(f'v_mul_u32_u24 v{vT3}, 320, v{vHk}')
    I(f'v_lshl_add_u32 v{vT3}, v{vT0}, 4, v{vT3}')
    I(f'v_cmp_eq_u32 vcc, 0, v{vT3}')
    I(f'v_add_u32 v{vT3}, v{vT3}, v{vT1}')
    for t in range(2):
        I(f's_mul_i32 s{58+t}, s{sGT[t]}, {KVREC}')
        I(f's_add_u32 s{58+t}, s{58+t}, {KV_OFF}')
    for t in range(2):
        A = Acc(t, 4)
        I(f's_waitcnt lgkmcnt({8 if t == 0 else 0})')
        for r in range(0, 16, 2):
            I(f'v_pk_fma_f32 {vr(A+r,2)}, {vr(NMR[t]+r,2)}, {vr(vCSV,2)}, {vr(A+r,2)} op_sel_hi:[1,0,1]')
        for r in range(0, 16, 2):
            I(f'v_pk_mul_f32 {vr(A+r,2)}, {vr(A+r,2)}, {vr(RR(t,r),2)}')
        for r in range(8):
            I(f'v_cvt_pk_bf16_f32 v{A+r}, v{A+2*r}, v{A+2*r+1}')
        I(f'buffer_store_dwordx4 {vr(A)}, v{vT3}, {srd(sWS)}, s{58+t} offen offset:1280{stmod}')
        I(f'buffer_store_dwordx4 {vr(A+4)}, v{vT3}, {srd(sWS)}, s{58+t} offen offset:1920{stmod}')
    for r in range(4):
        I(f'v_mov_b32 v{8+r}, 0x3f803f80')
        I(f'v_mov_b32 v{12+r}, 0')
    I(f's_and_saveexec_b64 s[54:55], vcc')
    I(f's_cbranch_execz {name}_noones')
    for t in range(2):
        I(f'buffer_store_dwordx4 {vr(8)}, v{vT3}, {srd(sWS)}, s{58+t} offen offset:2560{stmod}')
        I(f'buffer_store_dwordx4 {vr(12)}, v{vT3}, {srd(sWS)}, s{58+t} offen offset:2576{stmod}')
    a.label(f'{name}_noones')
    I('s_mov_b64 exec, -1')
    I(f's_branch {name}_fin')
    a.label(f'{name}_epQK')
    sREC, sHS = 52, 53
    sBase = [58, 59]
    I(f's_cmp_eq_u32 s{sType}, 3')
    I(f's_movk_i32 s{sREC}, {QREC}')
    I(f's_cselect_b32 s{sREC}, {KVREC}, s{sREC}')
    I(f's_cselect_b32 s{sT2}, {KV_OFF}, {QF_OFF}')
    I(f's_cselect_b32 s54, 1.0, 0x{f2u(QSCALE):08x}')
    I(f's_lshl_b32 s{sHS}, s{sREC}, 6')
    I(f's_and_b32 s{sT}, s{sCG}, 1')
    I(f's_lshl_b32 s{sT}, s{sT}, 4')
    I(f's_mul_i32 s{sT}, s{sT}, s{sHS}')
    I(f's_add_u32 s{sT2}, s{sT2}, s{sT}')
    for t in range(2):
        I(f's_mul_i32 s{sBase[t]}, s{sGT[t]}, s{sREC}')
        I(f's_add_u32 s{sBase[t]}, s{sBase[t]}, s{sT2}')
    vFull, vSplit = vEP, vEP + 1
    I(f'v_mul_lo_u32 v{vT1}, v{vHk}, s{sREC}')
    I(f'v_lshl_add_u32 v{vFull}, v{vTok}, 4, v{vT1}')
    I(f'v_mul_lo_u32 v{vT1}, v{vHk}, s{sHS}')
    I(f'v_lshl_add_u32 v{vSplit}, v{vTok}, 3, v{vT1}')
    I('s_waitcnt lgkmcnt(8)')
    for t in range(2):
        I(f'v_mul_f32 v{vR[t]}, s54, v{vR[t]}')
    I(f's_cmp_eq_u32 s{sG}, 1')
    I(f's_cbranch_scc1 {name}_epQK1')
    for g in range(2):
        if g == 1:
            a.label(f'{name}_epQK1')
        for i in range(5):
            b = 4 * g + i if i < 4 else 8 + g
            I(f's_waitcnt lgkmcnt({4 if i < 4 else 0})')
            fix(0, i, CSR[i & 1]); fix(1, i, CSR[i & 1])
            if i + 2 < 5:
                rd_cs(i + 2, CSR[i & 1])
            for t in range(2):
                A = Acc(t, i)
                for r in range(0, 16, 2):
                    I(f'v_pk_mul_f32 {vr(A+r,2)}, {vr(A+r,2)}, {vr(vR[t],2)} op_sel_hi:[1,0]')
            A0, A1 = Acc(0, i), Acc(1, i)
            for rq in range(4):
                I(f'v_cvt_pk_bf16_f32 v{A0+4*rq}, v{A0+4*rq}, v{A0+4*rq+1}')
                I(f'v_cvt_pk_bf16_f32 v{A0+4*rq+1}, v{A0+4*rq+2}, v{A0+4*rq+3}')
                I(f'v_cvt_pk_bf16_f32 v{A0+4*rq+2}, v{A1+4*rq}, v{A1+4*rq+1}')
                I(f'v_cvt_pk_bf16_f32 v{A0+4*rq+3}, v{A1+4*rq+2}, v{A1+4*rq+3}')
            for rq in range(4):
                for t in range(2):
                    I(f'v_dot2_f32_bf16 v{A1+2*rq+t}, v{A0+4*rq+2*t}, v{A0+4*rq+2*t}, 0')
            for rq in range(4):
                for t in range(2):
                    I(f'v_dot2c_f32_bf16 v{A1+2*rq+t}, v{A0+4*rq+2*t+1}, v{A0+4*rq+2*t+1}')
            for rq in range(4):
                G0 = 8 * b + 2 * rq
                c, hp = (G0 // 2) % 5, G0 // 10
                Q = A0 + 4 * rq
                if c == 2:
                    for t in range(2):
                        I(f's_mul_i32 s{sT}, s{sHS}, {2*hp}')
                        I(f's_add_u32 s{sT}, s{sT}, s{sBase[t]}')
                        I(f'buffer_store_dwordx2 {vr(Q+2*t,2)}, v{vSplit}, {srd(sWS)}, s{sT} offen offset:1024{stmod}')
                else:
                    I(f'v_permlane32_swap_b32 v{Q}, v{Q+2}')
                    I(f'v_permlane32_swap_b32 v{Q+1}, v{Q+3}')
                    head = 2 * hp + (1 if c >= 3 else 0)
                    hk = c if c < 2 else c - 3
                    I(f's_mul_i32 s{sT}, s{sHS}, {head}')
                    I(f's_add_u32 s{sT}, s{sT}, s{sBase[0]}')
                    I(f'buffer_store_dwordx4 {vr(Q)}, v{vFull}, {srd(sWS)}, s{sT} offen offset:{512*hk}{stmod}')
        if g == 0:
            I(f's_branch {name}_epQKn')
    a.label(f'{name}_epQKn')
    I(f's_cmp_eq_u32 s{sType}, 2')
    I(f's_cbranch_scc1 {name}_fin')
    def KN(t, k): return Acc(1, k >> 2) + 2 * (k & 3) + t
    def K2(t, k): return Acc(1, k >> 2) + 8 + 2 * (k & 3) + t
    I(f'v_and_b32 v{vT0}, 1, v0')
    I(f'v_cmp_eq_u32 s[52:53], 0, v{vT0}')
    I(f'v_and_b32 v{vT0}, 2, v0')
    I(f'v_cmp_eq_u32 s[54:55], 0, v{vT0}')
    for n, msk, dp in ((10, 's[52:53]', 'quad_perm:[1,0,3,2]'), (5, 's[54:55]', 'quad_perm:[2,3,0,1]')):
        for t in range(2):
            for k in range(n):
                I(f'v_cndmask_b32 v{K2(t,k)}, v{KN(t,k)}, v{KN(t,k+n)}, {msk}')
                I(f'v_cndmask_b32 v{KN(t,k)}, v{KN(t,k+n)}, v{KN(t,k)}, {msk}')
        for t in range(2):
            for k in range(n):
                I(f'v_max_f32_dpp v{KN(t,k)}, v{K2(t,k)}, v{KN(t,k)} {dp} row_mask:0xf bank_mask:0xf')
    for dp in ('row_ror:4', 'row_ror:8'):
        for t in range(2):
            for k in range(5):
                I(f'v_max_f32_dpp v{KN(t,k)}, v{KN(t,k)}, v{KN(t,k)} {dp} row_mask:0xf bank_mask:0xf')
    for t in range(2):
        for k in range(5):
            I(f'v_mov_b32 v{K2(t,k)}, v{KN(t,k)}')
    for t in range(2):
        for k in range(5):
            I(f'v_permlane16_swap_b32 v{K2(t,k)}, v{KN(t,k)}')
    for t in range(2):
        for k in range(5):
            I(f'v_max_f32 v{KN(t,k)}, v{KN(t,k)}, v{K2(t,k)}')
    I(f'v_lshrrev_b32 v{vT0}, 2, v{vTok}')
    for k in range(1, 5):
        I(f'v_cmp_eq_u32 vcc, {k}, v{vT0}')
        for t in range(2):
            I(f'v_cndmask_b32 v{KN(t,0)}, v{KN(t,0)}, v{KN(t,k)}, vcc')
    I(f'v_bfe_u32 v{vT1}, v{vTok}, 1, 1')
    I(f'v_mul_u32_u24 v{vT1}, 5, v{vT1}')
    I(f'v_add_u32 v{vT0}, v{vT0}, v{vT1}')
    I(f'v_and_b32 v{vT1}, 1, v{vTok}')
    I(f'v_mul_u32_u24 v{vT1}, 10, v{vT1}')
    I(f'v_add_u32 v{vT0}, v{vT0}, v{vT1}')
    I(f'v_lshrrev_b32 v{vT2}, 2, v{vT0}')
    I(f's_lshl_b32 s{sT}, s{sG}, 2')
    I(f'v_add_u32 v{vT2}, s{sT}, v{vT2}')
    I(f's_add_u32 s{sT}, s{sG}, 8')
    I(f'v_mov_b32 v{vT1}, s{sT}')
    I(f'v_cmp_gt_u32 vcc, 16, v{vT0}')
    I(f'v_cndmask_b32 v{vT2}, v{vT1}, v{vT2}, vcc')
    I(f'v_and_b32 v{vT1}, 3, v{vT0}')
    I(f'v_lshlrev_b32 v{vT1}, 1, v{vT1}')
    I(f'v_lshl_add_u32 v{vT2}, v{vT2}, 3, v{vT1}')
    I(f'v_add_u32 v{vT2}, v{vT2}, v{vHk}')
    I(f'v_lshlrev_b32 v{vT2}, 8, v{vT2}')
    I(f's_and_b32 s{sT}, s{sCG}, 1')
    I(f's_mul_i32 s{sT}, s{sT}, {80*256}')
    I(f's_add_u32 s{sT}, s{sT}, {KN_OFF}')
    for t in range(2):
        I(f's_lshl_b32 s{58+t}, s{sGT[t]}, 2')
        I(f's_add_u32 s{58+t}, s{58+t}, s{sT}')
    I(f's_mov_b32 exec_lo, 0xfffff')
    I(f's_mov_b32 exec_hi, 0xfffff')
    for t in range(2):
        I(f'buffer_store_dword v{KN(t,0)}, v{vT2}, {srd(sWS)}, s{58+t} offen{stmod}')
    I('s_mov_b64 exec, -1')
    a.label(f'{name}_fin')
    if mega:
        mega(a, st, locals())
    else:
        st.end(sWave, 4, 5)
    a.label(f'{name}_end')
    I('s_endpgm')
    return a
CODEKB = 20
```

```python
from asmlib import Asm
from layout import *
from stamp import Stamps
from common import *

RSTR = 400
K3_LDS = 4 * 64 * RSTR

def gen_gemm3(name, stamps=False, kidx=2, NR=6, a=None, fused=False, st=None, sTag=None):
    if a is None:
        a = Asm()
    I = a.I
    if st is None:
        st = Stamps(a, stamps, kidx)
    def vr(b, n=4): return f'v[{b}:{b+n-1}]'
    vO = [1, 2, 3]
    vT0, vT1, vT2, vTid = 4, 5, 6, 7
    vG = [8, 9, 10]
    vPoll = 11
    vX = 12
    RING = 24
    ACC = RING + 20 * NR
    def Af(s, t): return RING + 20 * s + 4 * t
    def Wf(s, j): return RING + 20 * s + 8 + 4 * j
    def Acc(t, j): return ACC + 48 * t + 16 * j
    sA, sX, sO, sDb = 8, 16, 20, 32
    sWave, sRB, sCB, sAo, sWo, sIt, sT, sCnt = 3, 24, 25, 26, 27, 28, 29, 30
    amod = ' sc1' if fused else ''
    if not fused:
        a.label(name)
        I('s_cmp_ge_u32 s2, 256')
        I(f's_cbranch_scc1 {name}_end')
        st.start()
        I(f's_load_dwordx2 s[{sA}:{sA+1}], s[0:1], {KA_WS}')
    else:
        I(f's_load_dwordx2 s[{sDb}:{sDb+1}], s[0:1], {KA_DBG}')
        I(f's_lshr_b32 s36, s13, 3')
    I(f's_load_dwordx2 s[{sX}:{sX+1}], s[0:1], {KA_X}')
    I(f's_load_dwordx2 s[{sO}:{sO+1}], s[0:1], {KA_OUT}')
    I('s_and_b32 s6, s2, 7')
    I('s_lshr_b32 s7, s2, 3')
    I(f's_lshr_b32 s{sCB}, s7, 3')
    I('s_and_b32 s4, s6, 1')
    I('s_lshl_b32 s4, s4, 2')
    I(f's_add_u32 s{sCB}, s{sCB}, s4')
    if not fused:
        I(f's_cmp_ge_u32 s{sCB}, 7')
        I(f's_cbranch_scc1 {name}_end')
        I(f'v_lshrrev_b32 v{vT0}, 6, v0')
        I(f'v_mov_b32 v{vTid}, v0')
        I('v_and_b32 v0, 63, v0')
        I(f'v_readfirstlane_b32 s{sWave}, v{vT0}')
    else:
        I(f's_lshl_b32 s4, s{sWave}, 6')
        I(f'v_add_u32 v{vTid}, s4, v0')
    I(f'v_lshlrev_b32 v{vO[0]}, 4, v0')
    I(f'v_add_u32 v{vO[1]}, {AREC}, v{vO[0]}')
    I(f'v_add_u32 v{vO[2]}, {2*AREC}, v{vO[0]}')
    I(f's_lshr_b32 s{sRB}, s6, 1')
    I(f's_lshl_b32 s{sRB}, s{sRB}, 3')
    I('s_and_b32 s7, s7, 7')
    I(f's_add_u32 s{sRB}, s{sRB}, s7')
    I(f's_lshl_b32 s{sT}, s{sWave}, 10')
    if fused:
        I(f's_add_u32 s{sT}, s{sT}, {40*1024}')
    I(f's_mul_i32 s{sAo}, s{sRB}, {2*AREC}')
    I(f's_add_u32 s{sAo}, s{sAo}, s{sT}')
    I(f's_add_u32 s{sAo}, s{sAo}, {AF_OFF}')
    I(f's_mul_i32 s{sWo}, s{sCB}, {3*AREC}')
    I(f's_add_u32 s{sWo}, s{sWo}, s{sT}')
    I(f's_add_u32 s{sWo}, s{sWo}, {WF_OFF}')
    I(f's_mov_b32 s{sA+2}, {WF_END}')
    I(f's_mov_b32 s{sA+3}, 0x20000')
    I(f's_mov_b32 s{sIt}, {NR}')
    if fused:
        I(f's_cmp_ge_u32 s{sCB}, 7')
        I(f's_cselect_b32 s{sA+2}, 0, s{sA+2}')
    else:
        I('s_waitcnt lgkmcnt(0)')
    srdA = f's[{sA}:{sA+3}]'
    def loads(s, first=False):
        if not first:
            if fused and s == 0:
                I(f's_cmp_eq_u32 s{sIt}, 24')
                I(f's_cselect_b32 s{sT}, {136*1024}, 0')
                I(f's_sub_u32 s{sAo}, s{sAo}, s{sT}')
                I(f's_sub_u32 s{sWo}, s{sWo}, s{sT}')
            I(f's_cmp_ge_u32 s{sIt}, 34')
            I(f's_cselect_b32 s{sA+2}, 0, s{sA+2}')
            I(f's_add_u32 s{sIt}, s{sIt}, 1')
        for t in range(2):
            I(f'buffer_load_dwordx4 {vr(Af(s,t))}, v{vO[t]}, {srdA}, s{sAo} offen{amod}')
        for j in range(3):
            I(f'buffer_load_dwordx4 {vr(Wf(s,j))}, v{vO[j]}, {srdA}, s{sWo} offen{amod if sTag else ""}')
        I(f's_add_u32 s{sAo}, s{sAo}, 4096')
        I(f's_add_u32 s{sWo}, s{sWo}, 4096')
    assert 24 % NR == 0
    def signal(tag):
        I('s_barrier')
        I(f's_cmp_lg_u32 s{sWave}, 0')
        I(f's_cbranch_scc1 {name}_nosig{tag}')
        if sTag:
            flag_set(a, 40, sTag, 3, 38, 242, vT2, sT)
        else:
            I(f'v_mov_b32 v{vPoll}, 1')
            I(f'v_mov_b32 v{vT2}, 0')
            I('s_mov_b64 exec, 1')
            I(f'buffer_atomic_add v{vPoll}, v{vT2}, s[{sDb}:{sDb+3}], s38 offen')
            I('s_mov_b64 exec, -1')
        a.label(f'{name}_nosig{tag}')
    if fused:
        I('s_waitcnt vmcnt(4)')
    for s in range(NR):
        loads(s, True)
    if fused:
        I(f's_mov_b32 s{sDb+2}, 256')
        I(f's_mov_b32 s{sDb+3}, 0x20000')
        if sTag:
            I('s_lshl_b32 s38, s36, 5')
            I('s_add_u32 s38, s38, s12')
            I(f's_lshr_b32 s36, s{sRB}, 2')
            I('s_lshl_b32 s36, s36, 12')
            I(f's_mov_b32 s40, s{sA}'); I(f's_mov_b32 s41, s{sA+1}'); I(f's_mov_b32 s42, {WS_END}'); I('s_mov_b32 s43, 0x20000')
            I(f'v_and_b32 v{vPoll}, 31, v0')
            I(f'v_lshlrev_b32 v{vPoll}, 7, v{vPoll}')
        else:
            I('s_lshl_b32 s38, s36, 5')
            I(f's_lshr_b32 s36, s{sRB}, 2')
            I('s_lshl_b32 s36, s36, 5')
        I('s_waitcnt lgkmcnt(0)')
        I(f's_cmp_lt_u32 s{sCB}, 7')
        I(f's_cbranch_scc1 {name}_go')
        I('s_waitcnt vmcnt(0)')
        signal('x')
        I(f's_branch {name}_fin')
        a.label(f'{name}_go')
    I(f'v_lshrrev_b32 v{vT0}, 2, v{vTid}')
    I(f'v_and_b32 v{vT1}, 3, v{vTid}')
    I(f'v_mul_u32_u24 v{vT2}, 1280, v{vT0}')
    I(f'v_mul_u32_u24 v{vG[0]}, 48, v{vT1}')
    I(f's_mul_i32 s{sT}, s{sCB}, 192')
    I(f'v_add_u32 v{vG[0]}, s{sT}, v{vG[0]}')
    I(f'v_mov_b32 v{vX}, 0x40000000')
    for j in (2, 1, 0):
        I(f'v_add_u32 v{vG[j]}, {16*j}, v{vG[0]}')
        I(f'v_cmp_gt_u32 vcc, 1280, v{vG[j]}')
        I(f'v_add_u32 v{vG[j]}, v{vG[j]}, v{vT2}')
        I(f'v_cndmask_b32 v{vG[j]}, v{vX}, v{vG[j]}, vcc')
    I(f's_mul_i32 s4, s{sRB}, {64*1280}')
    I(f's_mov_b32 s{sX+2}, {S*D*2}')
    I(f's_mov_b32 s{sX+3}, 0x20000')
    I(f's_mov_b32 s{sO+2}, {S*D*2}')
    I(f's_mov_b32 s{sO+3}, 0x20000')
    for j in range(3):
        I(f'buffer_load_dwordx4 {vr(vX+4*j)}, v{vG[j]}, s[{sX}:{sX+3}], s4 offen')
    I(f'v_mul_u32_u24 v{vT0}, {RSTR}, v{vT0}')
    I(f'v_mul_u32_u24 v{vT1}, 96, v{vT1}')
    I(f'v_add_u32 v{vTid}, v{vT0}, v{vT1}')
    I(f'v_and_b32 v{vT0}, 31, v0')
    I(f'v_mul_u32_u24 v{vT0}, {RSTR}, v{vT0}')
    I(f'v_lshrrev_b32 v{vT1}, 5, v0')
    I(f'v_lshl_add_u32 v{vT0}, v{vT1}, 4, v{vT0}')
    I(f's_mul_i32 s{sT}, s{sWave}, {64*RSTR}')
    I(f'v_add_u32 v{vT0}, s{sT}, v{vT0}')
    I(f'v_mov_b32 v{vT2}, 0')
    for r in range(96):
        I(f'v_mov_b32 v{ACC+r}, 0')
    I(f's_mov_b32 s{sCnt}, {36 // NR}')
    st.mark()
    a.I('.p2align 3')
    a.label(f'{name}_loop')
    if fused:
        I(f's_cmp_lg_u32 s{sIt}, {2*NR}')
        I(f's_cbranch_scc1 {name}_nosigy')
        signal('y')
        I(f's_cmp_lg_u32 s{sIt}, 24')
        I(f's_cbranch_scc1 {name}_nopoll')
        if sTag:
            flag_wait(a, f'{name}_poll', 40, sTag, 3, 1, vPoll, 242, 37, sT, soff=36)
        else:
            I(f's_mov_b32 s37, 0')
            a.label(f'{name}_poll')
            I(f'buffer_load_dword v{vPoll}, v{vT2}, s[{sDb}:{sDb+3}], s36 offen sc1')
            I('s_waitcnt vmcnt(0)')
            I(f'v_readfirstlane_b32 s{sT}, v{vPoll}')
            I('s_add_u32 s37, s37, 1')
            I('s_cmp_ge_u32 s37, 0x400000')
            I(f's_cbranch_scc1 {name}_nopoll')
            I(f's_cmp_lt_u32 s{sT}, 32')
            I(f's_cbranch_scc1 {name}_poll')
        a.label(f'{name}_nopoll')
    for s in range(NR):
        I(f's_waitcnt vmcnt({5*(NR-1)})')
        for j in range(3):
            for t in range(2):
                acc = vr(Acc(t, j), 16)
                I(f'v_mfma_f32_32x32x16_bf16 {acc}, {vr(Wf(s,j))}, {vr(Af(s,t))}, {acc}')
        loads(s)
    I(f's_sub_u32 s{sCnt}, s{sCnt}, 1')
    I(f's_cmp_lg_u32 s{sCnt}, 0')
    I(f's_cbranch_scc1 {name}_loop')
    st.mark()
    for t in range(2):
        for j in range(3):
            for rq in range(4):
                I(f'ds_write_b128 v{vT0}, {vr(Acc(t,j)+4*rq)} offset:{32*RSTR*t+128*j+32*rq}')
    I(f'v_add_u32 v{vT1}, {2*64*RSTR}, v{vTid}')
    I('s_waitcnt vmcnt(0) lgkmcnt(0)')
    I('s_barrier')
    R = RING
    for w in range(4):
        for j in range(6):
            I(f'ds_read_b128 {vr(R+24*w+4*j)}, v{vTid if w < 2 else vT1} offset:{(w&1)*64*RSTR+16*j}')
        if w == 1:
            I('s_waitcnt lgkmcnt(6)')
    U = ACC
    for k in range(12):
        I(f'v_lshlrev_b32 v{U+2*k}, 16, v{vX+k}')
        I(f'v_and_b32 v{U+2*k+1}, 0xffff0000, v{vX+k}')
    I('s_waitcnt lgkmcnt(12)')
    for r in range(0, 24, 2):
        I(f'v_pk_add_f32 {vr(R+r,2)}, {vr(R+r,2)}, {vr(R+24+r,2)}')
    I('s_waitcnt lgkmcnt(0)')
    for r in range(0, 24, 2):
        I(f'v_pk_add_f32 {vr(R+48+r,2)}, {vr(R+48+r,2)}, {vr(R+72+r,2)}')
    for r in range(0, 24, 2):
        I(f'v_pk_add_f32 {vr(R+r,2)}, {vr(R+r,2)}, {vr(R+48+r,2)}')
    for r in range(0, 24, 2):
        I(f'v_pk_add_f32 {vr(R+r,2)}, {vr(R+r,2)}, {vr(U+r,2)}')
    for k in range(12):
        I(f'v_cvt_pk_bf16_f32 v{U+k}, v{R+2*k}, v{R+2*k+1}')
    for j in range(3):
        I(f'buffer_store_dwordx4 {vr(U+4*j)}, v{vG[j]}, s[{sO}:{sO+3}], s4 offen')
    a.label(f'{name}_fin')
    st.end(sWave, 4, 5)
    if not fused:
        a.label(f'{name}_end')
        I('s_endpgm')
    return a
```

```python
S, D, H, DH, F = 2048, 640, 32, 20, 1536
NT = S // 32
QREC, KVREC = 1280, 2688
QF_OFF = 0
KV_OFF = QF_OFF + H * NT * QREC
KN_OFF = KV_OFF + H * NT * KVREC + 0x4000
AF_OFF = KN_OFF + 0x10000
AKS = 136
AREC = AKS * 1024
BD_OFF = AF_OFF + NT * AREC
WF_OFF = BD_OFF
WF_END = WF_OFF + 20 * AREC
FL_OFF = WF_END
CSQ_OFF = FL_OFF + 8 * 32768
RSQ_OFF = CSQ_OFF + 16 * 16 * 1280
WS_END = RSQ_OFF + 16384
WS_SIZE = WS_END
KA_X, KA_WQKV, KA_WO, KA_BX, KA_WG, KA_WU, KA_WD, KA_OUT, KA_DBG, KA_WS = [8 * i for i in range(10)]
QSCALE = (DH ** -0.5) * 1.4426950408889634
STAMP_OFF = 0x1800000
STAMP_KSTRIDE = 0x40000
```

```python
from layout import *
class Stamps:
    def __init__(self, a, on, kidx):
        self.a, self.on, self.k, self.n = a, on, kidx, 0
    def start(self):
        if not self.on: return
        self.a.I('s_memrealtime s[80:81]')
        self.a.I('s_memtime s[82:83]')
        self.n = 0
    def mark(self):
        if not self.on: return
        r = 84 + 2 * self.n
        self.a.I(f's_memtime s[{r}:{r+1}]')
        self.a.I('s_waitcnt lgkmcnt(0)')
        self.n += 1
        assert self.n <= 7, self.n
    def end(self, wave_sgpr, v0, v1):
        if not self.on: return
        I = self.a.I
        I('s_waitcnt vmcnt(0) lgkmcnt(0)')
        I('s_memtime s[98:99]')
        I('s_memrealtime s[100:101]')
        I(f's_load_dwordx2 s[76:77], s[0:1], {KA_WS}')
        I('s_waitcnt lgkmcnt(0)')
        I('s_mov_b32 s78, 0x10000000')
        I('s_mov_b32 s79, 0x20000')
        I(f's_lshl_b32 s75, s2, 3')
        I(f's_add_u32 s75, s75, s{wave_sgpr}')
        I(f's_lshl_b32 s75, s75, 6')
        I(f's_add_u32 s75, s75, {STAMP_OFF + self.k * STAMP_KSTRIDE}')
        I(f'v_mov_b32 v{v1}, 0')
        vals = [80, 100, 82] + [84 + 2 * i for i in range(self.n)] + [98]
        I('s_mov_b64 exec, 1')
        for i, s in enumerate(vals):
            I(f'v_mov_b32 v{v0}, s{s}')
            I(f'buffer_store_dword v{v0}, v{v1}, s[76:79], s75 offen offset:{4*i}')
            I('s_nop 1')
        I(f'v_mov_b32 v{v0}, {len(vals)}')
        I(f'buffer_store_dword v{v0}, v{v1}, s[76:79], s75 offen offset:60')
```

```python
from build import assemble
from k_gemm1 import gen_gemm1, K1_LDS
from k_fused2 import gen_k23
from k_gemm3 import gen_gemm3, K3_LDS
import sys
def build(out, st, k1={}, **kw):
    k2 = gen_k23('k23_kernel', stamps=st, **kw)
    assemble([('k1_kernel', gen_gemm1('k1_kernel', stamps=st, **k1), 256, 512, K1_LDS),
              ('k23_kernel', k2, 256, 320 if kw.get('helper', 1) else 256, K3_LDS)], out)
    n = 'k23_kernel_'
    for take in ([n+'a_store', n+'o_go', n+'o_nosigy', n+'o_nopoll'], [n+'a_store', n+'o_go'], [n+'a_store'], [n+'h']):
        for e in k2.check_waits(take=take)[:10]: print('WAITERR2', e)
if len(sys.argv) > 1:
    build('full_st.s', True)
    build('full_h0.s', True, helper=0)
    build('full_h2.s', True, helper=2)
    build('full_hw.s', True, hh=False)
    build('full_hh.s', True, hw=False)
else:
    build('parallel_sum__softmax_full_mha__glu_gated_reglu__prompt.s', False)
```

```python
from asmlib import Asm
from layout import *
from stamp import Stamps
from common import *
from k_attn import gen_attn
from k_gemm3 import gen_gemm3
import struct
def f2u(f): return struct.unpack('<I', struct.pack('<f', f))[0]

BSLOT, XSLOT = 20512, 16384
GOFF, UOFF = 8192, 6144 + 32
NM_LDS = 0
RR_LDS = NM_LDS + 512
CS_LDS = RR_LDS + 512
TG_LDS = 2304
ST_LDS = 2320
CP_LDS = 2560
B_LDS = 8192
X_LDS = B_LDS + 4 * BSLOT
R_LDS = X_LDS + 2 * XSLOT
K1_LDS = R_LDS + 16384

def gen_mega3(name, stamps=False, kidx=0, codepf=True, stmod=' sc1', prio=True, dbg='', warm=0, wj=0, lin=1, lin2=0, ldmod=' sc1', hdefer=True, lprio=2):
    a = Asm()
    I = a.I
    st = Stamps(a, stamps, kidx)
    def vr(b, n=4): return f'v[{b}:{b+n-1}]'
    vLane16, vT0, vT1, vT2, vT3, vTok, vHk = 1, 2, 3, 4, 5, 6, 7
    vU = 8
    vXB = [12, 13, 14, 15]
    vWB = [[16 + 3 * ss + i for i in range(3)] for ss in range(2)]
    WFR = [26, 46]
    XFR = [[66, 70], [74, 78 - 0]]
    XFR = [[66, 70], [74, 60 + 18]]
    ACC = 82
    vEP = 242
    def Acc(t, u): return ACC + 80 * t + 16 * u
    def Wf(s, u): return WFR[s] + 4 * u
    vD = [26, 27, 28, 29, 30]
    vDX = [31, 32, 33, 34]
    vSA = 36
    vSel = 40
    LW = 44
    LX = [64, 68]
    LCS = 72
    vPF = 248
    sWave, sRB, sCG, sG, sRP, sT, sT2, sL = 3, 28, 29, 30, 31, 33, 34, 32
    sX, sD0, sD1, sD2, sWS = 8, 12, 16, 20, 60
    sO0, sO2, sOX, sSt0, sCnt, sXi = 35, 37, 38, 39, 41, 42
    sLo = 44
    sMX = 47
    sType = 48
    sM = [36, 40, 46]
    def srd(s): return f's[{s}:{s+3}]'

    a.label(name)
    I('s_cmp_ge_u32 s2, 256')
    I(f's_cbranch_scc1 {name}_end')
    st.start()
    I(f's_load_dwordx4 s[4:7], s[0:1], {KA_X}')
    I(f's_load_dwordx4 s[52:55], s[0:1], {KA_WG}')
    I(f's_load_dwordx2 s[{sWS}:{sWS+1}], s[0:1], {KA_WS}')
    I(f's_load_dwordx2 s[24:25], s[0:1], {KA_DBG}')
    I(f'v_lshrrev_b32 v{vT0}, 6, v0')
    I(f'v_and_b32 v{vT3}, 255, v0')
    I('v_and_b32 v0, 63, v0')
    I(f'v_readfirstlane_b32 s{sWave}, v{vT0}')
    I(f'v_lshlrev_b32 v{vLane16}, 4, v0')
    I(f's_and_b32 s{sT}, s2, 7')
    I(f's_lshr_b32 s{sT2}, s2, 3')
    I(f's_and_b32 s{sRB}, s{sT}, 1')
    I(f's_lshl_b32 s{sRB}, s{sRB}, 3')
    I(f's_and_b32 s{sCG}, s{sT2}, 7')
    I(f's_add_u32 s{sRB}, s{sRB}, s{sCG}')
    I(f's_lshr_b32 s{sCG}, s{sT}, 1')
    I(f's_lshl_b32 s{sCG}, s{sCG}, 2')
    I(f's_lshr_b32 s{sT2}, s{sT2}, 3')
    I(f's_add_u32 s{sCG}, s{sCG}, s{sT2}')
    I(f's_and_b32 s{sL}, s{sWave}, 3')
    I(f's_lshr_b32 s{sG}, s{sL}, 1')
    I(f's_and_b32 s{sRP}, s{sL}, 1')
    I(f's_cmp_lt_u32 s{sWave}, 4')
    I(f's_cbranch_scc1 {name}_rd')
    I(f'v_lshrrev_b32 v{vT0}, 3, v0')
    I(f'v_lshrrev_b32 v{vT1}, 4, v0')
    I(f'v_xor_b32 v{vT1}, v{vT1}, v0')
    I(f'v_and_b32 v{vT1}, 7, v{vT1}')
    I(f'v_mul_u32_u24 v{vT0}, 1280, v{vT0}')
    I(f'v_lshl_add_u32 v{vDX[0]}, v{vT1}, 4, v{vT0}')
    I(f'v_xor_b32 v{vT1}, 4, v{vT1}')
    I(f'v_lshl_add_u32 v{vDX[1]}, v{vT1}, 4, v{vT0}')
    I(f'v_add_u32 v{vDX[2]}, {16*1280-2048}, v{vDX[0]}')
    I(f'v_add_u32 v{vDX[3]}, {24*1280-3072}, v{vDX[1]}')
    I(f'v_add_u32 v{vDX[1]}, {8*1280-1024}, v{vDX[1]}')
    I(f's_lshl_b32 s{sOX}, s{sRB}, 7')
    I(f's_lshl_b32 s{sT}, s{sL}, 5')
    I(f's_add_u32 s{sOX}, s{sOX}, s{sT}')
    I(f's_mul_i32 s{sOX}, s{sOX}, 1280')
    I(f's_lshl_b32 s{sMX}, s{sL}, 12')
    I(f's_add_u32 s{sMX}, s{sMX}, {X_LDS}')
    I(f's_mov_b32 s{sX+2}, {S*D*2}')
    for s in (sX, sD0, sD1, sD2):
        I(f's_mov_b32 s{s+3}, 0x20000')
    I(f's_mov_b32 s{sD2+2}, {D*3*D*2}')
    I(f's_mov_b32 s{sD0+2}, {D*F*2}')
    I(f's_mov_b32 s{sXi}, 0')
    I(f'v_lshrrev_b32 v{vT0}, 4, v0')
    I(f'v_lshlrev_b32 v{vT1}, 2, v{vT0}')
    I(f'v_xor_b32 v{vT1}, v{vT1}, v0')
    I(f'v_and_b32 v{vT1}, 15, v{vT1}')
    I(f'v_mul_u32_u24 v{vT0}, 3840, v{vT0}')
    I(f'v_lshl_add_u32 v{vD[0]}, v{vT1}, 4, v{vT0}')
    I(f'v_add_u32 v{vD[1]}, {4*3840-1024}, v{vD[0]}')
    for j in range(3):
        I(f'v_add_u32 v{vT0}, {64*j}, v0')
        I(f'v_mul_u32_u24 v{vT1}, 5462, v{vT0}')
        I(f'v_lshrrev_b32 v{vT1}, 16, v{vT1}')
        I(f'v_mul_u32_u24 v{vT1}, {3072-192}, v{vT1}')
        I(f'v_lshl_add_u32 v{vD[2+j]}, v{vT0}, 4, v{vT1}')
        if j:
            I(f'v_subrev_u32 v{vD[2+j]}, {1024*j}, v{vD[2+j]}')
    I(f's_mul_i32 s{sO2}, s{sL}, {8*3840}')
    I(f's_lshl_b32 s{sT}, s{sCG}, 8')
    I(f's_add_u32 s{sO2}, s{sO2}, s{sT}')
    I(f's_mul_i32 s{sO0}, s{sRP}, {16*3072}')
    I(f's_mul_i32 s{sT}, s{sCG}, 192')
    I(f's_add_u32 s{sO0}, s{sO0}, s{sT}')
    I(f's_lshl_b32 s{sM[0]}, s{sL}, 11')
    I(f's_mul_i32 s{sM[1]}, s{sRP}, 3072')
    I(f's_mul_i32 s{sT}, s{sG}, {UOFF}')
    I(f's_add_u32 s{sM[1]}, s{sM[1]}, s{sT}')
    I(f's_add_u32 s{sM[1]}, s{sM[1]}, {GOFF}')
    I(f's_cmp_eq_u32 s{sCG}, 15')
    I(f's_cselect_b32 s{sD2+2}, 0, s{sD2+2}')
    I('s_waitcnt lgkmcnt(0)')
    I(f's_cmp_eq_u32 s{sG}, 0')
    I(f's_cselect_b32 s{sD0}, s52, s54')
    I(f's_cselect_b32 s{sD0+1}, s53, s55')
    I(f's_mov_b32 s{sD2}, s6'); I(f's_mov_b32 s{sD2+1}, s7')
    I(f's_mov_b32 s{sX}, s4'); I(f's_mov_b32 s{sX+1}, s5')

    q = []
    def V(text, tag):
        I(text); q.append(tag)
    def wait_for(*tags, lgkm=False):
        last = max((i for i, t in enumerate(q) if t in tags), default=-1)
        n = len(q) - 1 - last
        if last >= 0:
            I(f's_waitcnt vmcnt({min(n, 63)})' + (' lgkmcnt(0)' if lgkm else ''))
            del q[:last + 1]
        elif lgkm:
            I('s_waitcnt lgkmcnt(0)')
    def IQ(x, tag):
        if x.startswith('buffer_load'): V(x, tag)
        else: I(x)
    def dmaB(j):
        slot = j & 3
        for x in [
            f's_add_u32 m0, s{sM[0]}, {B_LDS+slot*BSLOT}',
            f's_nop 0',
            f'buffer_load_dwordx4 v{vD[0]}, {srd(sD2)}, s{sO2} offen lds',
            f'buffer_load_dwordx4 v{vD[1]}, {srd(sD2)}, s{sO2} offen offset:1024 lds',
            f's_add_u32 m0, s{sM[1]}, {B_LDS+slot*BSLOT}',
            f's_add_u32 s{sO2}, s{sO2}, {32*3840}',
            f'buffer_load_dwordx4 v{vD[2]}, {srd(sD0)}, s{sO0} offen lds',
            f'buffer_load_dwordx4 v{vD[3]}, {srd(sD0)}, s{sO0} offen offset:1024 lds',
            f'buffer_load_dwordx4 v{vD[4]}, {srd(sD0)}, s{sO0} offen offset:2048 lds',
            f's_add_u32 s{sO0}, s{sO0}, {32*3072}']: IQ(x, f'B{j}')
    def dmaX(i):
        slot = i & 1
        for x in [
            f's_cmp_ge_u32 s{sXi}, 10',
            f's_cselect_b32 s{sX+2}, 0, s{sX+2}',
            f's_add_u32 m0, s{sMX}, {slot*XSLOT}',
            f's_add_u32 s{sXi}, s{sXi}, 1',
            f'buffer_load_dwordx4 v{vDX[0]}, {srd(sX)}, s{sOX} offen lds',
            f'buffer_load_dwordx4 v{vDX[1]}, {srd(sX)}, s{sOX} offen offset:1024 lds',
            f'buffer_load_dwordx4 v{vDX[2]}, {srd(sX)}, s{sOX} offen offset:2048 lds',
            f'buffer_load_dwordx4 v{vDX[3]}, {srd(sX)}, s{sOX} offen offset:3072 lds',
            f's_add_u32 s{sOX}, s{sOX}, 128']: IQ(x, f'X{i}')
    sRU, sRK, sRC = 64, 65, 66
    dmaX(0); dmaB(0)
    if 'fine' in dbg: st.mark()
    dmaB(1)
    if 'fine' in dbg: st.mark()
    a.label(f'{name}_rd')
    npf = 0
    sSec, sSub = 48, 39
    I(f's_mul_i32 s{sSec}, s{sCG}, 13108')
    I(f's_lshr_b32 s{sSec}, s{sSec}, 16')
    I(f's_mul_i32 s{sT}, s{sSec}, 5')
    I(f's_sub_u32 s{sSub}, s{sCG}, s{sT}')
    I(f's_cmp_ge_u32 s{sWave}, 4')
    I(f's_cbranch_scc1 {name}_nopf')
    vWA, vWI = 244, 246
    def touch(mask='s[64:65]'):
        for x in [f's_mov_b64 exec, {mask}',
                  f'global_load_dword v{vPF}, v[{vWA}:{vWA+1}], off',
                  's_mov_b64 exec, -1',
                  f'v_add_co_u32 v{vWA}, vcc, v{vWA}, v{vWI}',
                  f'v_addc_co_u32 v{vWA+1}, vcc, 0, v{vWA+1}, vcc']:
            I(x, tag='pf')
    if lin:
        I(f's_lshl_b32 s{sT}, s2, 2')
        I(f's_add_u32 s{sT}, s{sT}, s{sL}')
        I(f'v_lshrrev_b32 v{vT0}, 3, v0')
        I(f'v_and_b32 v{vT1}, 7, v0')
        I(f'v_cmp_gt_u32 vcc, 4, v{vT0}')
        I(f'v_cndmask_b32 v{vT1}, v{vT1}, v0, vcc')
        I(f'v_mov_b32 v{vT2}, 20')
        I(f'v_mov_b32 v{vWI}, {S*D*2}')
        I('s_waitcnt lgkmcnt(0)')
        I(f'v_mov_b32 v{vWA}, s4'); I(f'v_mov_b32 v{vWA+1}, s5')
        for grp, n, qq, p in ((4, 5, 160*3840, 6), (5, 4, 160*3072, 52), (6, 4, 160*3072, 54)):
            I(f'v_cmp_eq_u32 vcc, {grp}, v{vT0}')
            I(f'v_mov_b32 v{vU}, s{p}'); I(f'v_mov_b32 v{vU+1}, s{p+1}'); I(f'v_mov_b32 v{vU+2}, {qq}')
            I(f'v_cndmask_b32 v{vWA}, v{vWA}, v{vU}, vcc')
            I(f'v_cndmask_b32 v{vWA+1}, v{vWA+1}, v{vU+1}, vcc')
            I(f'v_cndmask_b32 v{vWI}, v{vWI}, v{vU+2}, vcc')
            I(f'v_mov_b32 v{vU}, {n}')
            I(f'v_cndmask_b32 v{vT2}, v{vT2}, v{vU}, vcc')
        I(f'v_mul_lo_u32 v{vT2}, v{vT2}, s{sT}')
        I(f'v_add_u32 v{vT2}, v{vT2}, v{vT1}')
        I(f'v_lshlrev_b32 v{vT2}, 7, v{vT2}')
        I(f'v_subrev_u32 v{vT1}, 128, v{vWI}')
        I(f'v_min_u32 v{vT2}, v{vT2}, v{vT1}')
        I(f'v_add_co_u32 v{vWA}, vcc, v{vWA}, v{vT2}')
        I(f'v_addc_co_u32 v{vWA+1}, vcc, 0, v{vWA+1}, vcc')
        I(f's_mov_b32 s64, 0')
        I(f's_mov_b32 s65, 0x000f0f1f')
        I(f's_mov_b32 s66, 0x000fffff')
        I(f's_mov_b32 s67, 0x000f0f1f')
        touch('s[66:67]')
        for i in range(lin - 1):
            touch()
    if codepf:
        code_prefetch(a, f'{name}_nopf', f'{name}_end', sL, 4, vLane16, vPF, 56, sT, 32)
    a.label(f'{name}_nopf')
    I(f'v_and_b32 v{vTok}, 31, v0')
    I(f'v_lshrrev_b32 v{vHk}, 5, v0')
    I(f's_lshl_b32 s{sT}, s{sRP}, 1')
    I(f's_cmp_ge_u32 s{sWave}, 4')
    I(f's_cselect_b32 s{sT}, s{sL}, s{sT}')
    I(f's_cselect_b32 s{sT2}, s{sRP}, 0')
    I(f's_lshl_b32 s{sT}, s{sT}, 12')
    I(f's_add_u32 s{sT}, s{sT}, {X_LDS}')
    I(f'v_bfe_u32 v{vT1}, v0, 1, 3')
    I(f'v_xor_b32 v{vT1}, v{vT1}, v{vHk}')
    I(f'v_lshlrev_b32 v{vT0}, 7, v{vTok}')
    I(f'v_add_u32 v{vT0}, s{sT}, v{vT0}')
    for ks in range(4):
        I(f'v_xor_b32 v{vU}, {2*ks}, v{vT1}')
        I(f'v_lshl_add_u32 v{vXB[ks]}, v{vU}, 4, v{vT0}')
    I(f'v_bfe_u32 v{vT0}, v0, 2, 2')
    I(f'v_lshl_add_u32 v{vT1}, v{vHk}, 3, v{vT0}')
    I(f's_lshl_b32 s{sT2}, s{sT2}, 4')
    I(f'v_add_u32 v{vT1}, s{sT2}, v{vT1}')
    I(f'v_and_b32 v{vT2}, 3, v0')
    I(f'v_lshlrev_b32 v{vT2}, 3, v{vT2}')
    I(f'v_add_u32 v{vT2}, {B_LDS}, v{vT2}')
    vG16 = vU
    I(f'v_bfe_u32 v{vG16}, v0, 4, 1')
    W0 = vWB[0]
    I(f'v_lshlrev_b32 v{vU+1}, 8, v{vT1}')
    I(f'v_lshl_add_u32 v{vU+1}, v{vG16}, 5, v{vU+1}')
    I(f'v_add_u32 v{vU+1}, v{vU+1}, v{vT2}')
    I(f's_lshl_b32 s{sT}, s{sG}, 1')
    I(f'v_xor_b32 v{vU+2}, s{sT}, v{vT0}')
    I(f'v_lshl_add_u32 v{W0[0]}, v{vU+2}, 6, v{vU+1}')
    I(f'v_xor_b32 v{vU+2}, 1, v{vU+2}')
    I(f'v_lshl_add_u32 v{W0[1]}, v{vU+2}, 6, v{vU+1}')
    I(f'v_mul_u32_u24 v{W0[2]}, 192, v{vT1}')
    I(f'v_mul_u32_u24 v{vU+1}, {UOFF}, v{vG16}')
    I(f'v_add3_u32 v{W0[2]}, v{W0[2]}, v{vU+1}, v{vT2}')
    I(f's_mul_i32 s{sT}, s{sG}, 96')
    I(f's_add_u32 s{sT}, s{sT}, {GOFF}')
    I(f'v_add_u32 v{W0[2]}, s{sT}, v{W0[2]}')
    for i in range(3):
        I(f'v_add_u32 v{vWB[1][i]}, {2*BSLOT}, v{W0[i]}')
    I(f's_mov_b32 s{sCnt}, 5')
    I(f's_cmp_lt_u32 s{sWave}, 4')
    I(f's_cbranch_scc1 {name}_comp')
    I(f's_setprio {lprio}')
    I(f's_mov_b32 s{sLo}, -1')
    I(f's_mov_b32 s{sLo+1}, 0')
    sDb, sTag = 24, 50
    vXS, vLA, vWS, vWSH, vCA, vS, vP, vTg, vFO = 36, 46, 48, 52, 92, 100, 124, 164, 166
    I(f's_mov_b32 s{sDb+2}, 256'); I(f's_mov_b32 s{sDb+3}, 0x20000')
    I(f's_mov_b32 s{sWS+2}, {WS_END}'); I(f's_mov_b32 s{sWS+3}, 0x20000')
    I(f's_or_b32 s{sT}, s2, s{sL}')
    I(f's_cmp_lg_u32 s{sT}, 0')
    I(f's_cbranch_scc1 {name}_notag')
    tag_publish(a, sDb, sTag, vTg, vT0)
    a.label(f'{name}_notag')
    wait_for('X0', 'B0', lgkm=True)
    I('s_barrier')
    st.mark()
    dmaB(2); dmaX(1); dmaB(3)
    vXA = vT3
    def share_setup():
        I(f's_lshl_b32 s{sT}, s{sRB}, 7')
        I(f's_lshl_b32 s{sT2}, s{sCG}, 3')
        I(f's_add_u32 s{sT}, s{sT}, s{sT2}')
        I(f's_lshl_b32 s{sT2}, s{sL}, 1')
        I(f's_add_u32 s{sT}, s{sT}, s{sT2}')
        I(f's_mul_i32 s43, s{sT}, 1280')
        I(f'v_mul_u32_u24 v{vXA}, 1280, v{vHk}')
        I(f'v_lshl_add_u32 v{vXA}, v{vTok}, 3, v{vXA}')
        for j in range(5):
            V(f'buffer_load_dwordx2 {vr(vXS+2*j,2)}, v{vXA}, {srd(sX)}, s43 offen offset:{256*j}', 'xs')
        I(f'v_mov_b32 v{vT0}, 0')
        V(f'buffer_load_dwordx2 {vr(vTg,2)}, v{vT0}, {srd(sDb)}, 0 offen sc1', 'tag')
        I(f's_min_u32 s{sT}, s{sCG}, 14')
        I(f's_lshl_b32 s{sT}, s{sT}, 8')
        I(f'v_add_u32 v{vT0}, s{sT}, v{vLane16}')
        I(f's_mul_i32 s{sT}, s{sCG}, 192')
        I(f's_sub_u32 s{sT2}, s{sT}, {16*16}')
        I(f'v_add_u32 v{vT1}, s{sT2}, v{vLane16}')
        I(f's_sub_u32 s{sT2}, s{sT}, {28*16}')
        I(f'v_add_u32 v{vT2}, s{sT2}, v{vLane16}')
        I(f'v_mov_b32 v{vLA}, s54'); I(f'v_mov_b32 v{vLA+1}, s55'); I(f'v_mov_b32 v{vWS}, 3072')
        I(f'v_cmp_gt_u32 vcc, 28, v0')
        I(f'v_mov_b32 v{vU}, s52'); I(f'v_mov_b32 v{vU+1}, s53')
        I(f'v_cndmask_b32 v{vT2}, v{vT2}, v{vT1}, vcc')
        I(f'v_cndmask_b32 v{vLA}, v{vLA}, v{vU}, vcc')
        I(f'v_cndmask_b32 v{vLA+1}, v{vLA+1}, v{vU+1}, vcc')
        I(f'v_cmp_gt_u32 vcc, 16, v0')
        I(f'v_mov_b32 v{vU}, s6'); I(f'v_mov_b32 v{vU+1}, s7'); I(f'v_mov_b32 v{vU+2}, 3840')
        I(f'v_cndmask_b32 v{vT2}, v{vT2}, v{vT0}, vcc')
        I(f'v_cndmask_b32 v{vLA}, v{vLA}, v{vU}, vcc')
        I(f'v_cndmask_b32 v{vLA+1}, v{vLA+1}, v{vU+1}, vcc')
        I(f'v_cndmask_b32 v{vWS}, v{vWS}, v{vU+2}, vcc')
        I(f's_mul_i32 s{sT}, s{sRB}, 40')
        I(f's_mul_i32 s{sT2}, s{sL}, 10')
        I(f's_add_u32 s{sT}, s{sT}, s{sT2}')
        I(f'v_mul_lo_u32 v{vT0}, v{vWS}, s{sT}')
        I(f'v_add_u32 v{vT2}, v{vT2}, v{vT0}')
        I(f'v_add_co_u32 v{vLA}, vcc, v{vLA}, v{vT2}')
        I(f'v_addc_co_u32 v{vLA+1}, vcc, 0, v{vLA+1}, vcc')
    sc = stmod
    def w_share_issue():
        I('s_mov_b32 exec_hi, 0xff')
        for i in range(10):
            V(f'global_load_dwordx4 {vr(vWSH+4*i)}, v[{vLA}:{vLA+1}], off', 'ws')
            if i < 9:
                I(f'v_add_co_u32 v{vLA}, vcc, v{vLA}, v{vWS}')
                I(f'v_addc_co_u32 v{vLA+1}, vcc, 0, v{vLA+1}, vcc')
        I('s_mov_b64 exec, -1')
    def red32(r, t):
        for d in ('quad_perm:[1,0,3,2]', 'quad_perm:[2,3,0,1]', 'row_half_mirror', 'row_mirror'):
            I(f'v_add_f32_dpp v{r}, v{r}, v{r} {d} row_mask:0xf bank_mask:0xf')
        I(f'v_mov_b32 v{t}, v{r}')
        I(f'v_permlane16_swap_b32 v{t}, v{r}')
        I(f'v_add_f32 v{r}, v{r}, v{t}')
    def x_stats(part):
      m, t = vS + 20, vS + 21
      v2, t2 = vS + 22, vS + 23
      if part == 0:
        wait_for('xs')
        for k in range(10):
            I(f'v_lshlrev_b32 v{vS+2*k}, 16, v{vXS+k}')
            I(f'v_and_b32 v{vS+2*k+1}, 0xffff0000, v{vXS+k}')
        I(f'v_add_f32 v{m}, v{vS}, v{vS+1}')
        I(f'v_add_f32 v{t}, v{vS+2}, v{vS+3}')
        for k in range(4, 20, 2):
            I(f'v_add_f32 v{m}, v{m}, v{vS+k}')
            I(f'v_add_f32 v{t}, v{t}, v{vS+k+1}')
        I(f'v_add_f32 v{m}, v{m}, v{t}')
        red32(m, t)
        I(f'v_mul_f32 v{m}, 0x{f2u(1.0/640):08x}, v{m}')
        for k in range(20):
            I(f'v_subrev_f32 v{vS+k}, v{m}, v{vS+k}')
      else:
        I(f'v_mul_f32 v{v2}, v{vS}, v{vS}')
        I(f'v_mul_f32 v{t2}, v{vS+1}, v{vS+1}')
        for k in range(2, 20, 2):
            I(f'v_fmac_f32 v{v2}, v{vS+k}, v{vS+k}')
            I(f'v_fmac_f32 v{t2}, v{vS+k+1}, v{vS+k+1}')
        I(f'v_add_f32 v{v2}, v{v2}, v{t2}')
        red32(v2, t2)
        I(f'v_mul_f32 v{v2}, 0x{f2u(1.0/640):08x}, v{v2}')
        I(f'v_cvt_pk_bf16_f32 v{t}, v{v2}, -v{m}')
        I(f'v_and_b32 v{m}, 0xffff0000, v{t}')
        I(f'v_lshlrev_b32 v{t}, 16, v{t}')
        I(f'v_add_f32 v{t}, 0x{f2u(1e-5):08x}, v{t}')
        I(f'v_cvt_pk_bf16_f32 v{t}, v{t}, v{t}')
        I(f'v_lshlrev_b32 v{t}, 16, v{t}')
        I(f'v_sqrt_f32 v{t}, v{t}')
        I(f'v_cvt_pk_bf16_f32 v{t}, v{t}, v{t}')
        I(f'v_lshlrev_b32 v{t}, 16, v{t}')
        I(f'v_rcp_f32 v{t}, v{t}')
        I(f's_lshl_b32 s{sT}, s{sL}, 4')
        I(f'v_lshlrev_b32 v{vT0}, 3, v{vHk}')
        I(f'v_add_u32 v{vT0}, s{sT}, v{vT0}')
        I(f'ds_write_b64 v{vT0}, {vr(m,2)} offset:{ST_LDS}')
    def w_sum(i0, i1):
        if i0 == 0:
            wait_for('ws')
        for i in range(i0, i1):
            for d in range(4):
                src = vWSH + 4 * i + d
                if i == 0:
                    I(f'v_lshlrev_b32 v{vCA+2*d}, 16, v{src}')
                    I(f'v_and_b32 v{vCA+2*d+1}, 0xffff0000, v{src}')
                else:
                    t = vU + 2 * (d & 1)
                    I(f'v_lshlrev_b32 v{t}, 16, v{src}')
                    I(f'v_and_b32 v{t+1}, 0xffff0000, v{src}')
                    I(f'v_add_f32 v{vCA+2*d}, v{vCA+2*d}, v{t}')
                    I(f'v_add_f32 v{vCA+2*d+1}, v{vCA+2*d+1}, v{t+1}')
        if i1 == 10:
            I(f'v_subrev_u32 v{vT0}, 16, v0')
            I(f'v_subrev_u32 v{vT1}, 28, v0')
            I(f'v_cmp_gt_u32 vcc, 28, v0')
            I(f'v_cndmask_b32 v{vT0}, v{vT1}, v{vT0}, vcc')
            I(f'v_cndmask_b32 v{vT2}, 16, 0, vcc')
            I(f'v_lshrrev_b32 v{vT1}, 1, v{vT0}')
            I(f'v_lshl_add_u32 v{vT2}, v{vT1}, 5, v{vT2}')
            I(f'v_and_b32 v{vT0}, 1, v{vT0}')
            I(f'v_lshl_add_u32 v{vT2}, v{vT0}, 3, v{vT2}')
            I(f'v_add_u32 v{vT2}, 128, v{vT2}')
            I(f'v_lshlrev_b32 v{vT0}, 3, v0')
            I(f'v_cmp_gt_u32 vcc, 16, v0')
            I(f'v_cndmask_b32 v{vT2}, v{vT2}, v{vT0}, vcc')
            I(f'v_lshlrev_b32 v{vT2}, 2, v{vT2}')
            I(f's_mul_i32 s{sT}, s{sL}, 1280')
            I(f'v_add_u32 v{vT2}, s{sT}, v{vT2}')
            I('s_mov_b32 exec_hi, 0xff')
            I(f'ds_write_b128 v{vT2}, {vr(vCA)} offset:{CP_LDS}')
            I(f'ds_write_b128 v{vT2}, {vr(vCA+4)} offset:{CP_LDS+16}')
            I('s_mov_b64 exec, -1')
    def only0(fn, lab):
        I(f's_cmp_lg_u32 s{sL}, 0')
        I(f's_cbranch_scc1 {lab}')
        n0 = len(q)
        fn()
        del q[n0:]
        a.label(lab)
    def publish_store():
        for h, (n, off) in enumerate(((64, 0), (16, 1024))):
            for w in range(4):
                I(f'ds_read_b128 {vr(vP+16*h+4*w)}, v{vLane16} offset:{CP_LDS+1280*w+off}')
        I(f'ds_read_b128 {vr(vP+32)}, v{vLane16} offset:{ST_LDS}')
        I(f's_lshl_b32 s{sT}, s{sCG}, 4')
        I(f's_add_u32 s{sT}, s{sT}, s{sRB}')
        I(f's_mul_i32 s{sT}, s{sT}, 1280')
        I(f's_add_u32 s{sT}, s{sT}, {CSQ_OFF}')
        I(f's_lshl_b32 s{sT2}, s{sRB}, 10')
        I(f's_lshl_b32 s43, s{sCG}, 6')
        I(f's_add_u32 s{sT2}, s{sT2}, s43')
        I(f's_add_u32 s{sT2}, s{sT2}, {RSQ_OFF}')
        I('s_waitcnt lgkmcnt(0)')
        for h in range(2):
            b = vP + 16 * h
            for r in range(0, 4, 2):
                I(f'v_pk_add_f32 {vr(b+r,2)}, {vr(b+r,2)}, {vr(b+4+r,2)}')
                I(f'v_pk_add_f32 {vr(b+8+r,2)}, {vr(b+8+r,2)}, {vr(b+12+r,2)}')
                I(f'v_pk_add_f32 {vr(b+r,2)}, {vr(b+r,2)}, {vr(b+8+r,2)}')
        V(f'buffer_store_dwordx4 {vr(vP)}, v{vLane16}, {srd(sWS)}, s{sT} offen{sc}', 'pub')
        I('s_mov_b64 exec, 0xffff')
        V(f'buffer_store_dwordx4 {vr(vP+16)}, v{vLane16}, {srd(sWS)}, s{sT} offen offset:1024{sc}', 'pub')
        I('s_mov_b64 exec, 0xf')
        V(f'buffer_store_dwordx4 {vr(vP+32)}, v{vLane16}, {srd(sWS)}, s{sT2} offen{sc}', 'pub')
        I('s_mov_b64 exec, -1')
    def tag_issue():
        I(f'v_mov_b32 v{vT0}, 0')
        V(f'buffer_load_dwordx2 {vr(vTg,2)}, v{vT0}, {srd(sDb)}, 0 offen sc1', 'tag')
    def tag_check():
        wait_for('tag')
        I(f'v_readfirstlane_b32 s{sTag}, v{vTg}')
        I(f'v_readfirstlane_b32 s{sTag+1}, v{vTg+1}')
        I(f's_cmp_lg_u32 s{sTag}, 0')
        I(f's_cbranch_scc1 {name}_tagok')
        tag_get(a, f'{name}_tg', sDb, sTag, vTg, vT0, sT)
        a.label(f'{name}_tagok')
        I(f'v_mov_b32 v{vTg}, s{sTag}')
        I(f'v_mov_b32 v{vTg+1}, s{sTag+1}')
        I(f'v_mov_b32 v{vT0}, 0')
        I(f'ds_write_b64 v{vT0}, {vr(vTg,2)} offset:{TG_LDS}')
    sIdx = 49
    def setflag(kind):
        I(f's_lshl_b32 s{sIdx}, s{sRB}, 4')
        I(f's_add_u32 s{sIdx}, s{sIdx}, s{sCG}')
        flag_set(a, sWS, sTag, kind, sIdx, vTg, vT0, sT)
    def poll_issue():
        I(f'v_and_b32 v{vT0}, 15, v0')
        I(f'v_lshlrev_b32 v{vT1}, 4, v{vT0}')
        I(f'v_add_u32 v{vT1}, s{sCG}, v{vT1}')
        I(f's_lshl_b32 s{sT}, s{sRB}, 4')
        I(f'v_add_u32 v{vT0}, s{sT}, v{vT0}')
        I(f'v_and_b32 v{vT2}, 16, v0')
        I(f'v_cmp_eq_u32 vcc, 0, v{vT2}')
        I(f'v_cndmask_b32 v{vFO}, v{vT0}, v{vT1}, vcc')
        I(f'v_lshlrev_b32 v{vFO}, 7, v{vFO}')
        I(f's_mov_b32 s{sT}, {FL_OFF}')
        V(f'buffer_load_dwordx2 {vr(vP,2)}, v{vFO}, {srd(sWS)}, s{sT} offen sc1', 'poll')
    def poll_check_and_load():
        wait_for('poll')
        I(f'v_xor_b32 v{vP}, s{sTag}, v{vP}')
        I(f'v_xor_b32 v{vP+1}, s{sTag+1}, v{vP+1}')
        I(f'v_or_b32 v{vP}, v{vP}, v{vP+1}')
        I(f'v_cmp_ne_u32 vcc, 0, v{vP}')
        I(f's_cbranch_vccz {name}_stok')
        flag_wait(a, f'{name}_stw', sWS, sTag, 0, 1, vFO, vP, sT2, sT)
        a.label(f'{name}_stok')
        I(f'v_lshrrev_b32 v{vT0}, 4, v0')
        I(f'v_mul_u32_u24 v{vT0}, {1280-256}, v{vT0}')
        I(f'v_add_u32 v{vT0}, v{vT0}, v{vLane16}')
        I(f's_mul_i32 s{sT}, s{sCG}, {16*1280}')
        I(f's_add_u32 s{sT}, s{sT}, {CSQ_OFF}')
        I(f's_lshl_b32 s{sT2}, s{sL}, 8')
        I(f's_add_u32 s{sT2}, s{sT2}, s{sT}')
        for i in range(4):
            V(f'buffer_load_dwordx4 {vr(vP+4*i)}, v{vT0}, {srd(sWS)}, s{sT2} offen sc1', 'cs')
            V(f'buffer_load_dwordx4 {vr(vP+16+4*i)}, v{vT0}, {srd(sWS)}, s{sT} offen offset:1024 sc1', 'cs')
            if i < 3:
                I(f's_add_u32 s{sT}, s{sT}, {4*1280}')
                I(f's_add_u32 s{sT2}, s{sT2}, {4*1280}')
        I(f's_lshl_b32 s{sT}, s{sRB}, 10')
        I(f's_add_u32 s{sT}, s{sT}, {RSQ_OFF}')
        V(f'buffer_load_dwordx4 {vr(vP+32)}, v{vLane16}, {srd(sWS)}, s{sT} offen sc1', 'cs')
    def tables():
        wait_for('cs')
        for h in range(2):
            b = vP + 16 * h
            for r in range(0, 4, 2):
                I(f'v_pk_add_f32 {vr(b+r,2)}, {vr(b+r,2)}, {vr(b+4+r,2)}')
                I(f'v_pk_add_f32 {vr(b+8+r,2)}, {vr(b+8+r,2)}, {vr(b+12+r,2)}')
                I(f'v_pk_add_f32 {vr(b+r,2)}, {vr(b+r,2)}, {vr(b+8+r,2)}')
        for sw in ('v_permlane16_swap_b32', 'v_permlane32_swap_b32'):
            for h in range(2):
                for r in range(4):
                    I(f'v_mov_b32 v{vP+16*h+4+r}, v{vP+16*h+r}')
            for h in range(2):
                for r in range(4):
                    I(f'{sw} v{vP+16*h+4+r}, v{vP+16*h+r}')
            for h in range(2):
                for r in range(4):
                    I(f'v_add_f32 v{vP+16*h+r}, v{vP+16*h+r}, v{vP+16*h+4+r}')
        I(f'v_and_b32 v{vT0}, 15, v0')
        I(f'v_lshlrev_b32 v{vT0}, 4, v{vT0}')
        I(f's_lshl_b32 s{sT}, s{sL}, 8')
        I(f'v_add_u32 v{vT1}, s{sT}, v{vT0}')
        I(f'ds_write_b128 v{vT1}, {vr(vP)} offset:{CS_LDS}')
        I(f'ds_write_b128 v{vT0}, {vr(vP+16)} offset:{CS_LDS+1024}')
        I(f'v_lshlrev_b32 v{vT0}, 3, v0')
        I(f'v_mov_b32 v{vP+36}, v{vP+33}')
        I(f'v_mov_b32 v{vP+33}, v{vP+34}')
        I(f'v_mov_b32 v{vP+37}, v{vP+35}')
        I(f'ds_write_b64 v{vT0}, {vr(vP+32,2)} offset:{NM_LDS}')
        I(f'ds_write_b64 v{vT0}, {vr(vP+36,2)} offset:{RR_LDS}')
    def wf_issue():
        I(f's_load_dwordx2 s[68:69], s[0:1], {KA_WO}')
        I(f's_load_dwordx2 s[72:73], s[0:1], {KA_WD}')
        I(f's_lshl_b32 s{sRU}, s2, 2')
        I(f's_add_u32 s{sRU}, s{sRU}, s{sL}')
        I(f's_mul_i32 s{sRK}, s{sRU}, 13108')
        I(f's_lshr_b32 s{sRK}, s{sRK}, 16')
        I(f's_mul_i32 s{sT}, s{sRK}, 5')
        I(f's_sub_u32 s{sRC}, s{sRU}, s{sT}')
        I(f'v_lshrrev_b32 v{vT0}, 4, v0')
        I(f'v_mul_u32_u24 v{vT0}, {1280-256}, v{vT0}')
        I(f'v_add_u32 v{vT0}, v{vT0}, v{vLane16}')
        I(f's_mul_i32 s{sT}, s{sRK}, 13108')
        I(f's_lshr_b32 s{sT}, s{sT}, 16')
        I(f's_mul_i32 s{sT2}, s{sT}, 5')
        I(f's_sub_u32 s{sT2}, s{sRK}, s{sT2}')
        I(f's_mul_i32 s{sT}, s{sT}, 80')
        I(f's_mul_i32 s74, s{sT2}, 20')
        I(f's_add_u32 s74, s74, s{sT}')
        I(f's_add_u32 s{sT}, s{sT}, 16')
        I(f's_cmp_eq_u32 s{sT2}, 4')
        I(f's_cselect_b32 s74, s{sT}, s74')
        I(f's_cselect_b32 s43, 1, 0')
        I(f's_sub_u32 s{sT}, s{sRK}, 40')
        I(f's_lshl_b32 s{sT}, s{sT}, 4')
        I(f's_mov_b32 s70, {D*D*2}')
        I(f's_mov_b32 s71, 0x20000')
        I('s_waitcnt lgkmcnt(0)')
        I(f's_cmp_ge_u32 s{sRK}, 40')
        I(f's_cselect_b32 s68, s72, s68')
        I(f's_cselect_b32 s69, s73, s69')
        I(f's_cselect_b32 s70, {F*D*2}, s70')
        I(f's_cselect_b32 s74, s{sT}, s74')
        I(f's_cselect_b32 s43, 0, s43')
        I(f's_cmp_ge_u32 s{sRU}, 680')
        I(f's_cselect_b32 s70, 0, s70')
        I(f's_mul_i32 s74, s74, 1280')
        I(f's_lshl_b32 s{sT2}, s{sRC}, 8')
        I(f's_add_u32 s74, s74, s{sT2}')
        I(f's_lshl_b32 s67, s{sL}, 12')
        I(f's_add_u32 s67, s67, {R_LDS}')
        for j in range(4):
            I(f's_mov_b32 s{sT}, {4*j*1280}')
            I(f's_cmp_eq_u32 s43, 1')
            I(f's_cselect_b32 s{sT}, {20*[0,2,1,3][j]*1280}, s{sT}')
            I(f's_add_u32 s{sT}, s{sT}, s74')
            I(f's_add_u32 m0, s67, {1024*j}')
            I(f's_nop 0')
            V(f'buffer_load_dwordx4 v{vT0}, s[68:71], s{sT} offen lds', 'wf')
    def wf_store():
        wait_for('wf')
        I(f'v_bfe_u32 v{vT0}, v0, 2, 2')
        I(f'v_lshl_add_u32 v{vT0}, v{vHk}, 2, v{vT0}')
        I(f'v_lshlrev_b32 v{vT0}, 8, v{vT0}')
        I(f'v_bfe_u32 v{vT1}, v0, 4, 1')
        I(f'v_lshl_add_u32 v{vT0}, v{vT1}, 5, v{vT0}')
        I(f'v_and_b32 v{vT1}, 3, v0')
        I(f'v_lshl_add_u32 v{vT0}, v{vT1}, 3, v{vT0}')
        I(f'v_add_u32 v{vT0}, s67, v{vT0}')
        for j in range(4):
            I(f'ds_read_b64_tr_b16 {vr(vWSH+4*j,2)}, v{vT0} offset:{64*j}')
            I(f'ds_read_b64_tr_b16 {vr(vWSH+4*j+2,2)}, v{vT0} offset:{64*j+2048}')
        I(f's_mul_i32 s{sT}, s{sRC}, {4*AREC}')
        I(f's_lshl_b32 s{sT2}, s{sRK}, 10')
        I(f's_add_u32 s{sT}, s{sT}, s{sT2}')
        I(f's_add_u32 s{sT}, s{sT}, {WF_OFF}')
        I(f's_cmp_ge_u32 s{sRU}, 680')
        I(f's_cselect_b32 s{sWS+2}, 0, s{sWS+2}')
        for j in range(4):
            I(f's_waitcnt lgkmcnt({6-2*j})')
            V(f'buffer_store_dwordx4 {vr(vWSH+4*j)}, v{vLane16}, {srd(sWS)}, s{sT} offen{sc}', 'wfs')
            I(f's_add_u32 s{sT}, s{sT}, {AREC}')
        I(f's_mov_b32 s{sWS+2}, {WS_END}')
    def pubflag():
        I('s_waitcnt vmcnt(14)')
        setflag(0)
    sched = {
        1: [share_setup], 2: [w_share_issue], 4: [lambda: x_stats(0)], 5: [lambda: x_stats(1), tag_check],
        6: [lambda: w_sum(0, 3)], 7: [lambda: w_sum(3, 5)], 8: [lambda: w_sum(5, 8)], 9: [lambda: w_sum(8, 10)],
        10: [lambda: only0(publish_store, f'{name}_o1')], 11: [wf_issue],
        13: [lambda: only0(pubflag, f'{name}_o2')], 14: [wf_store],
        16: [poll_issue], 17: [poll_check_and_load],
    }
    def trace(idx, v=250):
        if 'trace' not in dbg: return
        I('s_memtime s[76:77]')
        I(f's_lshl_b32 s78, s2, 3')
        I(f's_add_u32 s78, s78, s{sWave}')
        I(f's_lshl_b32 s78, s78, 8')
        I(f's_add_u32 s78, s78, {STAMP_OFF + 0x200000 + 4*idx}')
        I(f's_mov_b32 s{sWS+2}, 0x10000000')
        I('s_waitcnt lgkmcnt(0)')
        I(f's_sub_u32 s76, s76, s82')
        I(f'v_mov_b32 v{v}, s76')
        I(f'v_mov_b32 v{v+1}, 0')
        I('s_mov_b64 exec, 1')
        V(f'buffer_store_dword v{v}, v{v+1}, {srd(sWS)}, s78 offen', 'tr')
        I('s_mov_b64 exec, -1')
        I(f's_mov_b32 s{sWS+2}, {WS_END}')
    for j in range(20):
        for fn in sched.get(j, []):
            fn()
        wait_for(f'B{j+1}', f'X{(j+1)//2}', lgkm=True)
        I('s_barrier')
        trace(3 * j + 2)
        if j & 1 and (j + 3) // 2 < 10:
            dmaX((j + 3) // 2)
        if j + 4 < 20:
            dmaB(j + 4)
    st.mark()
    tables()
    I('s_waitcnt vmcnt(0) lgkmcnt(0)')
    I('s_barrier')
    I(f's_cmp_lg_u32 s{sL}, 0')
    I(f's_cbranch_scc1 {name}_end')
    I(f'v_lshlrev_b32 v{vFO}, 7, v0')
    I('s_barrier')
    setflag(1)
    flag_wait(a, f'{name}_qw', sWS, sTag, 1, 4, vFO, vP, sT2, sT)
    I('s_barrier')
    I('s_barrier')
    setflag(2)
    I('s_barrier')
    flag_wait(a, f'{name}_hw', sWS, sTag, 2, 4, vFO, vP, sT2, sT)
    I('s_barrier')
    I(f's_branch {name}_end')
    a.label(f'{name}_comp')
    st.n = 0
    if 'fine' in dbg:
        for i in range(3): st.mark()
    if prio:
        I('s_setprio 1')
    I(f's_mov_b32 s{sWS+2}, {WS_END}')
    I(f's_mov_b32 s{sWS+3}, 0x20000')
    I(f's_mov_b32 s{sLo}, -1')
    I(f's_mov_b32 s{sLo+1}, 0')
    for r in range(160):
        I(f'v_mov_b32 v{ACC+r}, 0')
    I('s_waitcnt lgkmcnt(0)')
    if warm:
        I(f'v_mul_u32_u24 v{vT0}, 13108, v0')
        I(f'v_lshrrev_b32 v{vT0}, 16, v{vT0}')
        I(f'v_mul_u32_u24 v{vT1}, 5, v{vT0}')
        I(f'v_sub_u32 v{vT1}, v0, v{vT1}')
        I(f's_and_b32 s{sT}, s{sRB}, 7')
        I(f's_lshl_b32 s{sT}, s{sT}, 2')
        I(f's_lshl_b32 s{sT2}, s{sL}, 5')
        I(f's_add_u32 s{sT}, s{sT}, s{sT2}')
        I(f's_add_u32 s{sT}, s{sT}, 128')
        I(f'v_add_u32 v{vT0}, s{sT}, v{vT0}')
        I(f'v_mov_b32 v{vWA}, s6')
        I(f'v_mov_b32 v{vWA+1}, s7')
        I(f'v_mov_b32 v{vT2}, 3840')
        I(f's_cmp_ge_u32 s{sType}, 2')
        I(f's_cbranch_scc1 {name}_warm_qk')
        I(f's_min_u32 s{sT}, s{sCG}, 9')
        I(f's_lshl_b32 s{sT}, s{sT}, 7')
        I(f's_add_u32 s{sT}, s{sT}, 2560')
        I(f'v_mov_b32 v{vT3}, s{sT}')
        I(f's_lshl_b32 s{sT}, s{sCG}, 8')
        I(f'v_and_b32 v{26}, 1, v{vT1}')
        I(f'v_lshlrev_b32 v{26}, 7, v{26}')
        I(f'v_add_u32 v{26}, s{sT}, v{26}')
        I(f'v_cmp_gt_u32 vcc, 4, v{vT1}')
        I(f'v_mov_b32 v{27}, 3072')
        I(f'v_cndmask_b32 v{vT2}, v{vT2}, v{27}, vcc')
        I(f'v_cndmask_b32 v{vT3}, v{vT3}, v{26}, vcc')
        I(f'v_mov_b32 v{26}, s54'); I(f'v_mov_b32 v{27}, s55')
        I(f'v_cndmask_b32 v{vWA}, v{vWA}, v{26}, vcc')
        I(f'v_cndmask_b32 v{vWA+1}, v{vWA+1}, v{27}, vcc')
        I(f'v_cmp_gt_u32 vcc, 2, v{vT1}')
        I(f'v_mov_b32 v{26}, s52'); I(f'v_mov_b32 v{27}, s53')
        I(f'v_cndmask_b32 v{vWA}, v{vWA}, v{26}, vcc')
        I(f'v_cndmask_b32 v{vWA+1}, v{vWA+1}, v{27}, vcc')
        I(f's_branch {name}_warm_done')
        a.label(f'{name}_warm_qk')
        I(f's_sub_u32 s{sT}, s{sCG}, 12')
        I(f's_mul_i32 s{sT}, s{sT}, 640')
        I(f'v_lshlrev_b32 v{vT3}, 7, v{vT1}')
        I(f'v_add_u32 v{vT3}, s{sT}, v{vT3}')
        a.label(f'{name}_warm_done')
        I(f'v_mul_u32_u24 v{vT0}, v{vT0}, v{vT2}')
        I(f'v_add_u32 v{vT3}, v{vT3}, v{vT0}')
        I(f'v_lshlrev_b32 v{vWI}, 7, v{vT2}')
        I(f's_lshl_b32 s{sT}, s{sRB}, 7')
        I(f's_and_b32 s{sT2}, s{sCG}, 3')
        I(f's_lshl_b32 s{sT2}, s{sT2}, 5')
        I(f's_add_u32 s{sT}, s{sT}, s{sT2}')
        I(f's_lshl_b32 s{sT2}, s{sRP}, 4')
        I(f's_add_u32 s{sT}, s{sT}, s{sT2}')
        I(f's_mul_i32 s{sT}, s{sT}, 1280')
        I(f's_lshl_b32 s{sT2}, s{sG}, 7')
        I(f's_add_u32 s{sT}, s{sT}, s{sT2}')
        I(f's_add_u32 s{sT}, s{sT}, 256')
        I(f'v_and_b32 v{vT0}, 15, v0')
        I(f'v_mul_u32_u24 v{vT0}, 1280, v{vT0}')
        I(f'v_add_u32 v{vT0}, s{sT}, v{vT0}')
        I(f'v_mov_b32 v{26}, s4'); I(f'v_mov_b32 v{27}, s5'); I(f'v_mov_b32 v{28}, 256')
        I(f'v_cndmask_b32 v{vT3}, v{vT0}, v{vT3}, s[{sLo}:{sLo+1}]')
        I(f'v_cndmask_b32 v{vWA}, v{26}, v{vWA}, s[{sLo}:{sLo+1}]')
        I(f'v_cndmask_b32 v{vWA+1}, v{27}, v{vWA+1}, s[{sLo}:{sLo+1}]')
        I(f'v_cndmask_b32 v{vWI}, v{28}, v{vWI}, s[{sLo}:{sLo+1}]')
        I(f'v_add_co_u32 v{vWA}, vcc, v{vWA}, v{vT3}')
        I(f'v_addc_co_u32 v{vWA+1}, vcc, 0, v{vWA+1}, vcc')
        I(f's_mov_b32 s64, 0x000fffff')
        I(f's_mov_b32 s65, 0x0000ffff')
    for i in range(lin2):
        touch()
    if warm:
        for i in range(warm):
            touch()
    if 'fine' in dbg: st.mark()
    I('s_barrier')
    st.mark()

    def loop(typ):
        def rdW(fset, u, slot, sp):
            b = vWB[slot >> 1][min(u, 2)]
            rs = 256 if u < 2 else 192
            o = (slot & 1) * BSLOT + 16 * sp * rs + (32 * (u - 2) if u >= 2 else 0)
            return [f'ds_read_b64_tr_b16 {vr(Wf(fset,u),2)}, v{b} offset:{o}',
                    f'ds_read_b64_tr_b16 {vr(Wf(fset,u)+2,2)}, v{b} offset:{o+4*rs}']
        def rdX(fset, j, sp):
            return [f'ds_read_b128 {vr(XFR[fset][t])}, v{vXB[2*(j&1)+sp]} offset:{((j >> 1) & 1) * XSLOT + 4096 * t}' for t in range(2)]
        def mf(fset, u, t):
            acc = vr(Acc(t, u), 16)
            if typ == 'A' and u < 2:
                return f'v_mfma_f32_32x32x16_bf16 {acc}, {vr(XFR[fset][t])}, {vr(Wf(fset,u))}, {acc}'
            return f'v_mfma_f32_32x32x16_bf16 {acc}, {vr(Wf(fset,u))}, {vr(XFR[fset][t])}, {acc}'
        def emit_phase(mf_list, lst, f1, tail=()):
            for k in range(len(mf_list)):
                I(mf_list[k])
                if k < f1:
                    lo, hi = len(lst) * k // f1, len(lst) * (k + 1) // f1
                    for x in lst[lo:hi]:
                        if 'nord' not in dbg: I(x)
                if k == len(mf_list) - 2:
                    for x in tail: I(x)
        L = f'{name}_loop{typ}'
        for x in rdX(0, 0, 0): I(x)
        for u in range(5):
            for x in rdW(0, u, 0, 0): I(x)
        I('s_waitcnt lgkmcnt(0)')
        a.I('.p2align 3')
        a.label(L)
        order = [(u, t) for u in range(5) for t in range(2)]
        for j in range(4):
            if (warm or lin) and j == wj and (warm or lin + lin2 < 4):
                I(f's_cmp_le_u32 s{sCnt}, {1 + (warm if warm else lin + lin2)}')
                I(f's_cbranch_scc1 {L}_nt')
                touch()
                a.label(f'{L}_nt')
            lds = rdX(1, j, 1)
            for u in range(5):
                lds += rdW(1, u, j, 1)
            emit_phase([mf(0, u, t) for u, t in order], lds, 6, ['s_waitcnt lgkmcnt(0)'])
            I('s_barrier')
            jn = (j + 1) & 3
            lds = rdX(0, jn, 0)
            for u in range(5):
                lds += rdW(0, u, jn, 0)
            tail = ['s_waitcnt lgkmcnt(0)']
            if j == 3:
                tail += [f's_sub_u32 s{sCnt}, s{sCnt}, 1', f's_cmp_lg_u32 s{sCnt}, 0']
            emit_phase([mf(1, u, t) for u, t in order], lds, 6, tail)
        I(f's_cbranch_scc1 {L}')
    I(f's_cmp_lg_u32 s{sSec}, 2')
    I(f's_cbranch_scc1 {name}_mainQ')
    loop('A')
    I(f's_branch {name}_post')
    a.label(f'{name}_mainQ')
    loop('Q')
    a.label(f'{name}_post')
    st.mark()
    vE = 26
    sc = stmod
    def Acc1(t, i): return Acc(t, i)
    def Acc2(t, i): return Acc(t, 2 + i)
    vNM, vR = [vE, vE + 2], [vE + 4, vE + 6]
    CSR = vE + 8
    sGT = [52, 53]
    def common_tables():
        I(f'v_lshlrev_b32 v{vT1}, 2, v{vTok}')
        I(f's_lshl_b32 s{sT}, s{sRP}, 8')
        I(f'v_add_u32 v{vT3}, s{sT}, v{vT1}')
        for t in range(2):
            I(f'ds_read_b32 v{vNM[t]}, v{vT3} offset:{NM_LDS+128*t}')
            I(f'ds_read_b32 v{vR[t]}, v{vT3} offset:{RR_LDS+128*t}')
        I(f's_lshl_b32 s{sT}, s{sRB}, 2')
        I(f's_lshl_b32 s{sGT[0]}, s{sRP}, 1')
        I(f's_add_u32 s{sGT[0]}, s{sGT[0]}, s{sT}')
        I(f's_add_u32 s{sGT[1]}, s{sGT[0]}, 1')
    def fix(A, t, cs):
        for r in range(0, 16, 2):
            I(f'v_pk_fma_f32 {vr(A+r,2)}, {vr(cs+r,2)}, {vr(vNM[t],2)}, {vr(A+r,2)} op_sel_hi:[1,0,1]')
    I('s_barrier')
    common_tables()
    I(f'v_mov_b32 v{vT0}, 0')
    I(f'ds_read_b64 {vr(vU,2)}, v{vT0} offset:{TG_LDS}')
    I(f's_cmp_eq_u32 s{sSec}, 3')
    I(f's_cbranch_scc1 {name}_e1x')
    I(f's_cmp_eq_u32 s{sSec}, 2')
    I(f's_cbranch_scc1 {name}_e1v')
    sREC, sHS, sI0 = 54, 55, 56
    sBase = [58, 59]
    I(f's_lshl_b32 s{sT}, s{sG}, 8')
    I(f'v_lshlrev_b32 v{vT0}, 4, v{vHk}')
    I(f'v_add_u32 v{vT2}, s{sT}, v{vT0}')
    for rq in range(4):
        I(f'ds_read_b128 {vr(CSR+4*rq)}, v{vT2} offset:{CS_LDS+32*rq}')
    I(f's_cmp_eq_u32 s{sSec}, 1')
    I(f's_movk_i32 s{sREC}, {QREC}')
    I(f's_cselect_b32 s{sREC}, {KVREC}, s{sREC}')
    I(f's_cselect_b32 s{sT2}, {KV_OFF}, {QF_OFF}')
    I(f's_cselect_b32 s57, 1.0, 0x{f2u(QSCALE):08x}')
    I(f's_lshl_b32 s{sHS}, s{sREC}, 6')
    for t in range(2):
        I(f's_mul_i32 s{sBase[t]}, s{sGT[t]}, s{sREC}')
        I(f's_add_u32 s{sBase[t]}, s{sBase[t]}, s{sT2}')
    I(f's_lshl_b32 s{sI0}, s{sSub}, 4')
    I(f's_lshl_b32 s{sT}, s{sG}, 3')
    I(f's_add_u32 s{sI0}, s{sI0}, s{sT}')
    vFull, vSplit, vRS = 20, 21, [58, 58]
    I(f'v_mul_lo_u32 v{vT1}, v{vHk}, s{sREC}')
    I(f'v_lshl_add_u32 v{vFull}, v{vTok}, 4, v{vT1}')
    I(f'v_mul_lo_u32 v{vT1}, v{vHk}, s{sHS}')
    I(f'v_lshl_add_u32 v{vSplit}, v{vTok}, 3, v{vT1}')
    for i in range(2):
        I('s_waitcnt lgkmcnt(0)')
        for t in range(2):
            fix(Acc1(t, i), t, CSR)
        if i == 0:
            for rq in range(4):
                I(f'ds_read_b128 {vr(CSR+4*rq)}, v{vT2} offset:{CS_LDS+128+32*rq}')
        for t in range(2):
            I(f'v_mul_f32 v{vRS[t]}, s57, v{vR[t]}')
            A = Acc1(t, i)
            for r in range(0, 16, 2):
                I(f'v_pk_mul_f32 {vr(A+r,2)}, {vr(A+r,2)}, {vr(vRS[t],2)} op_sel_hi:[1,0]')
        A0, B0 = Acc1(0, i), Acc1(1, i)
        for rq in range(4):
            I(f'v_cvt_pk_bf16_f32 v{A0+4*rq}, v{A0+4*rq}, v{A0+4*rq+1}')
            I(f'v_cvt_pk_bf16_f32 v{A0+4*rq+1}, v{A0+4*rq+2}, v{A0+4*rq+3}')
            I(f'v_cvt_pk_bf16_f32 v{A0+4*rq+2}, v{B0+4*rq}, v{B0+4*rq+1}')
            I(f'v_cvt_pk_bf16_f32 v{A0+4*rq+3}, v{B0+4*rq+2}, v{B0+4*rq+3}')
        for rq in range(4):
            for t in range(2):
                I(f'v_dot2_f32_bf16 v{B0+2*rq+t}, v{A0+4*rq+2*t}, v{A0+4*rq+2*t}, 0')
        for rq in range(4):
            for t in range(2):
                I(f'v_dot2c_f32_bf16 v{B0+2*rq+t}, v{A0+4*rq+2*t+1}, v{A0+4*rq+2*t+1}')
        for rq in range(4):
            Q = A0 + 4 * rq
            L1, L2 = f'{name}_sp{i}{rq}', f'{name}_it{i}{rq}'
            I(f's_add_u32 s{sT}, s{sI0}, {4*i+rq}')
            I(f's_mul_i32 s{sT2}, s{sT}, 13108')
            I(f's_lshr_b32 s{sT2}, s{sT2}, 16')
            I(f's_mul_i32 s46, s{sT2}, 5')
            I(f's_sub_u32 s{sT}, s{sT}, s46')
            I(f's_lshl_b32 s{sT2}, s{sT2}, 1')
            I(f's_mul_i32 s46, s{sT2}, s{sHS}')
            I(f's_cmp_eq_u32 s{sT}, 2')
            I(f's_cbranch_scc1 {L1}')
            I(f'v_permlane32_swap_b32 v{Q}, v{Q+2}')
            I(f'v_permlane32_swap_b32 v{Q+1}, v{Q+3}')
            I(f's_sub_u32 s47, s{sHS}, 1536')
            I(f's_cmp_ge_u32 s{sT}, 3')
            I(f's_cselect_b32 s47, s47, 0')
            I(f's_lshl_b32 s{sT}, s{sT}, 9')
            I(f's_add_u32 s46, s46, s47')
            I(f's_add_u32 s46, s46, s{sT}')
            I(f's_add_u32 s46, s46, s{sBase[0]}')
            I(f'buffer_store_dwordx4 {vr(Q)}, v{vFull}, {srd(sWS)}, s46 offen{sc}')
            I(f's_branch {L2}')
            a.label(L1)
            for t in range(2):
                I(f's_add_u32 s47, s46, s{sBase[t]}')
                I(f'buffer_store_dwordx2 {vr(Q+2*t,2)}, v{vSplit}, {srd(sWS)}, s47 offen offset:1024{sc}')
            a.label(L2)
    I(f's_cmp_eq_u32 s{sSec}, 0')
    I(f's_cbranch_scc1 {name}_e1x')
    def KN(v): return Acc1(1, (v >> 2) & 1) + 2 * (v & 3) + (v >> 3)
    def K2(v): return KN(v) + 8
    I(f'v_and_b32 v{vT0}, 1, v0')
    I(f'v_cmp_eq_u32 s[46:47], 0, v{vT0}')
    I(f'v_and_b32 v{vT0}, 2, v0')
    I(f'v_cmp_eq_u32 s[48:49], 0, v{vT0}')
    for n, msk, dp in ((8, 's[46:47]', 'quad_perm:[1,0,3,2]'), (4, 's[48:49]', 'quad_perm:[2,3,0,1]')):
        for k in range(n):
            I(f'v_cndmask_b32 v{K2(k)}, v{KN(k)}, v{KN(k+n)}, {msk}')
            I(f'v_cndmask_b32 v{KN(k)}, v{KN(k+n)}, v{KN(k)}, {msk}')
        for k in range(n):
            I(f'v_max_f32_dpp v{KN(k)}, v{K2(k)}, v{KN(k)} {dp} row_mask:0xf bank_mask:0xf')
    for dp in ('row_ror:4', 'row_ror:8'):
        for k in range(4):
            I(f'v_max_f32_dpp v{KN(k)}, v{KN(k)}, v{KN(k)} {dp} row_mask:0xf bank_mask:0xf')
    for k in range(4):
        I(f'v_mov_b32 v{K2(k)}, v{KN(k)}')
    for k in range(4):
        I(f'v_permlane16_swap_b32 v{K2(k)}, v{KN(k)}')
    for k in range(4):
        I(f'v_max_f32 v{KN(k)}, v{KN(k)}, v{K2(k)}')
    I(f'v_lshrrev_b32 v{vT0}, 2, v{vTok}')
    for k in range(1, 4):
        I(f'v_cmp_eq_u32 vcc, {k}, v{vT0}')
        I(f'v_cndmask_b32 v{KN(0)}, v{KN(0)}, v{KN(k)}, vcc')
    I(f'v_bfe_u32 v{vT1}, v{vTok}, 1, 1')
    I(f'v_lshl_add_u32 v{vT0}, v{vT1}, 2, v{vT0}')
    I(f'v_add_u32 v{vT0}, s{sI0}, v{vT0}')
    I(f'v_lshl_add_u32 v{vT0}, v{vT0}, 1, v{vHk}')
    I(f'v_lshlrev_b32 v{vT0}, 8, v{vT0}')
    I(f'v_and_b32 v{vT1}, 1, v{vTok}')
    I(f'v_lshl_add_u32 v{vT0}, v{vT1}, 2, v{vT0}')
    I(f's_lshl_b32 s{sT}, s{sGT[0]}, 2')
    I(f's_add_u32 s{sT}, s{sT}, {KN_OFF}')
    I('s_mov_b32 exec_lo, 0xffff')
    I('s_mov_b32 exec_hi, 0xffff')
    I(f'buffer_store_dword v{KN(0)}, v{vT0}, {srd(sWS)}, s{sT} offen{sc}')
    I('s_mov_b64 exec, -1')
    I(f's_branch {name}_e1x')
    a.label(f'{name}_e1v')
    I(f's_lshl_b32 s{sT}, s{sG}, 8')
    I(f'v_add_u32 v{vT1}, s{sT}, v{vT1}')
    vCSV = [58, 60]
    for i in range(2):
        I(f'ds_read_b32 v{vCSV[i]}, v{vT1} offset:{CS_LDS+128*i}')
    I(f'v_lshlrev_b32 v{vT1}, 4, v{vHk}')
    I(f's_lshl_b32 s{sT}, s{sRP}, 8')
    I(f'v_add_u32 v{vT2}, s{sT}, v{vT1}')
    vVA = [20, 21]
    for i in range(2):
        I(f's_lshl_b32 s{sT}, s{sSub}, 7')
        I(f's_lshl_b32 s{sT2}, s{sG}, 6')
        I(f's_add_u32 s{sT}, s{sT}, s{sT2}')
        I(f's_add_u32 s{sT}, s{sT}, {32*i}')
        I(f'v_add_u32 v{vT0}, s{sT}, v{vTok}')
        I(f'v_mul_u32_u24 v{vT1}, 3277, v{vT0}')
        I(f'v_lshrrev_b32 v{vT1}, 16, v{vT1}')
        I(f'v_mul_u32_u24 v{vT3}, 20, v{vT1}')
        I(f'v_sub_u32 v{vT0}, v{vT0}, v{vT3}')
        I(f's_mov_b32 s{sT}, {NT*KVREC}')
        I(f'v_mul_lo_u32 v{vT1}, v{vT1}, s{sT}')
        I(f'v_mul_u32_u24 v{vT3}, 320, v{vHk}')
        I(f'v_lshl_add_u32 v{vT3}, v{vT0}, 4, v{vT3}')
        I(f'v_cmp_eq_u32 s[{46+2*i}:{47+2*i}], 0, v{vT3}')
        I(f'v_add_u32 v{vVA[i]}, v{vT3}, v{vT1}')
    for t in range(2):
        I(f's_mul_i32 s{58+t}, s{sGT[t]}, {KVREC}')
        I(f's_add_u32 s{58+t}, s{58+t}, {KV_OFF}')
    for t in range(2):
        for half, tab in ((0, NM_LDS), (1, RR_LDS)):
            for rq in range(4):
                I(f'ds_read_b128 {vr(CSR+4*rq)}, v{vT2} offset:{tab+128*t+32*rq}')
            I('s_waitcnt lgkmcnt(0)')
            for i in range(2):
                A = Acc1(t, i)
                for r in range(0, 16, 2):
                    if half == 0:
                        I(f'v_pk_fma_f32 {vr(A+r,2)}, {vr(CSR+r,2)}, {vr(vCSV[i],2)}, {vr(A+r,2)} op_sel_hi:[1,0,1]')
                    else:
                        I(f'v_pk_mul_f32 {vr(A+r,2)}, {vr(A+r,2)}, {vr(CSR+r,2)}')
        for i in range(2):
            A = Acc1(t, i)
            for r in range(8):
                I(f'v_cvt_pk_bf16_f32 v{A+r}, v{A+2*r}, v{A+2*r+1}')
            I(f'buffer_store_dwordx4 {vr(A)}, v{vVA[i]}, {srd(sWS)}, s{58+t} offen offset:1280{sc}')
            I(f'buffer_store_dwordx4 {vr(A+4)}, v{vVA[i]}, {srd(sWS)}, s{58+t} offen offset:1920{sc}')
    for r in range(4):
        I(f'v_mov_b32 v{CSR+r}, 0x3f803f80')
        I(f'v_mov_b32 v{CSR+4+r}, 0')
    for i in range(2):
        I(f's_mov_b64 exec, s[{46+2*i}:{47+2*i}]')
        I(f's_cbranch_execz {name}_no1{i}')
        for t in range(2):
            I(f'buffer_store_dwordx4 {vr(CSR)}, v{vVA[i]}, {srd(sWS)}, s{58+t} offen offset:2560{sc}')
            I(f'buffer_store_dwordx4 {vr(CSR+4)}, v{vVA[i]}, {srd(sWS)}, s{58+t} offen offset:2576{sc}')
        a.label(f'{name}_no1{i}')
        I('s_mov_b64 exec, -1')
    a.label(f'{name}_e1x')
    I('s_waitcnt lgkmcnt(0)')
    I(f'v_readfirstlane_b32 s{sTag}, v{vU}')
    I(f'v_readfirstlane_b32 s{sTag+1}, v{vU+1}')
    I(f's_mul_i32 s{sT}, s{sG}, 384')
    I(f'v_lshlrev_b32 v{vT0}, 4, v{vHk}')
    I(f'v_add_u32 v{vT2}, s{sT}, v{vT0}')
    CS2 = [34, 50, 66]
    for i in range(3):
        for rq in range(4):
            I(f'ds_read_b128 {vr(CS2[i]+4*rq)}, v{vT2} offset:{CS_LDS+512+128*i+32*rq}')
    for t in range(2):
        I(f's_mul_i32 s{58+t}, s{sGT[t]}, {AREC}')
    I(f's_mul_i32 s{sT}, s{sCG}, 6144')
    I(f's_mul_i32 s{sT2}, s{sG}, 3072')
    I(f's_add_u32 s{sT}, s{sT}, s{sT2}')
    I(f's_add_u32 s{sT}, s{sT}, {AF_OFF + 40*1024}')
    for t in range(2):
        I(f's_add_u32 s{58+t}, s{58+t}, s{sT}')
        I(f'v_mul_f32 v{vR[t]}, v{vR[t]}, v{vR[t]}')
    for i in range(3):
        I(f's_waitcnt lgkmcnt({8-4*i})')
        for t in range(2):
            A = Acc2(t, i)
            fix(A, t, CS2[i])
            for r in range(8):
                I(f'v_max_f32 v{A+r}, 0, v{A+r}')
            for r in range(0, 8, 2):
                I(f'v_pk_mul_f32 {vr(A+8+r,2)}, {vr(A+8+r,2)}, {vr(vR[t],2)} op_sel_hi:[1,0]')
            for r in range(0, 8, 2):
                I(f'v_pk_mul_f32 {vr(A+r,2)}, {vr(A+r,2)}, {vr(A+8+r,2)}')
            for r in range(4):
                I(f'v_cvt_pk_bf16_f32 v{A+8+r}, v{A+2*r}, v{A+2*r+1}')
    I('s_waitcnt vmcnt(0)')
    I('s_barrier')
    I('s_barrier')
    for i in range(3):
        for t in range(2):
            I(f'buffer_store_dwordx4 {vr(Acc2(t,i)+8)}, v{vLane16}, {srd(sWS)}, s{58+t} offen offset:{1024*i}{sc}')
    a.label(f'{name}_att')
    st.mark()
    I('s_setprio 0')
    bar = lambda: I('s_barrier')
    gen_attn(name + '_a', a=a, entry=False, stmod=stmod, ldmod=ldmod, endstamp=False, st=st, ids=False, trips={1: bar, 12: bar})
    I('s_barrier')
    gen_gemm3(name + '_o', a=a, fused=True, st=st, sTag=sTag)
    a.label(f'{name}_end')
    I('s_endpgm')
    return a
CODEKB = 20
```

```python
from build import assemble
from k_mega3 import gen_mega3, K1_LDS
N='parallel_sum__softmax_full_mha__glu_gated_reglu__prompt_kernel'
assemble([(N, gen_mega3(N), 256, 512, K1_LDS)], 'parallel_sum__softmax_full_mha__glu_gated_reglu__prompt.s', plain=True)
assemble([('m_kernel', gen_mega3('m_kernel'), 256, 512, K1_LDS)], 'rel.s')
```

```python
def code_prefetch(a, l0, l1, wave_sgpr, nw, vlane16, vdst, squad, stmp, maxkb):
    I = a.I
    I(f's_getpc_b64 s[{squad}:{squad+1}]')
    lab = f'.Lpc_{l0}_{len(a.ins)}'
    a.I(lab + ':')
    I(f's_add_u32 s{squad}, s{squad}, {l0}-{lab}')
    I(f's_addc_u32 s{squad+1}, s{squad+1}, ({l0}-{lab})>>32')
    I(f's_mov_b32 s{squad+2}, {l1}-{l0}')
    I(f's_mov_b32 s{squad+3}, 0x20000')
    I(f's_lshl_b32 s{stmp}, s{wave_sgpr}, 13')
    I(f'v_lshlrev_b32 v{vdst+1}, 3, v{vlane16}')
    n = (maxkb + 8 * nw - 1) // (8 * nw)
    for i in range(n):
        if i:
            I(f's_add_u32 s{stmp}, s{stmp}, {nw*8192}')
        I(f'buffer_load_dword v{vdst}, v{vdst+1}, s[{squad}:{squad+3}], s{stmp} offen', tag='pf')
    return n

from layout import *
SPIN_MAX = 0x200000

def tag_publish(a, sDbg, sTag, vA, vB):
    I = a.I
    I(f's_memrealtime s[{sTag}:{sTag+1}]')
    I('s_waitcnt lgkmcnt(0)')
    I(f's_or_b32 s{sTag}, s{sTag}, 1')
    I(f'v_mov_b32 v{vA}, s{sTag}')
    I(f'v_mov_b32 v{vA+1}, s{sTag+1}')
    I(f'v_mov_b32 v{vB}, 0')
    I('s_mov_b64 exec, 1')
    I(f'buffer_store_dwordx2 v[{vA}:{vA+1}], v{vB}, s[{sDbg}:{sDbg+3}], 0 offen sc1')
    I('s_mov_b64 exec, -1')

def tag_get(a, lab, sDbg, sTag, vA, vB, sCnt):
    I = a.I
    I(f'v_mov_b32 v{vB}, 0')
    I(f's_mov_b32 s{sCnt}, 0')
    a.label(lab)
    I(f'buffer_load_dwordx2 v[{vA}:{vA+1}], v{vB}, s[{sDbg}:{sDbg+3}], 0 offen sc1')
    I('s_waitcnt vmcnt(0)')
    I(f'v_readfirstlane_b32 s{sTag}, v{vA}')
    I(f'v_readfirstlane_b32 s{sTag+1}, v{vA+1}')
    I(f's_add_u32 s{sCnt}, s{sCnt}, 1')
    I(f's_cmp_ge_u32 s{sCnt}, {SPIN_MAX}')
    I(f's_cbranch_scc1 {lab}_x')
    I(f's_cmp_eq_u32 s{sTag}, 0')
    I(f's_cbranch_scc1 {lab}')
    a.label(lab + '_x')

def flag_set(a, sWS, sTag, kind, sIdx, vA, vB, sT):
    I = a.I
    I(f's_lshl_b32 s{sT}, s{sIdx}, 7')
    I(f's_add_u32 s{sT}, s{sT}, {FL_OFF + kind * 32768}')
    I(f'v_mov_b32 v{vA}, s{sTag}')
    I(f'v_mov_b32 v{vA+1}, s{sTag+1}')
    I(f'v_mov_b32 v{vB}, 0')
    I('s_mov_b64 exec, 1')
    I(f'buffer_store_dwordx2 v[{vA}:{vA+1}], v{vB}, s[{sWS}:{sWS+3}], s{sT} offen sc1')
    I('s_mov_b64 exec, -1')

def flag_wait(a, lab, sWS, sTag, kind, n, vOff, vD, sCnt, sT, soff=None, sleep=0):
    I = a.I
    I(f's_mov_b32 s{sCnt}, 0')
    if soff is None:
        I(f's_mov_b32 s{sT}, {FL_OFF + kind * 32768}')
    else:
        I(f's_add_u32 s{sT}, s{soff}, {FL_OFF + kind * 32768}')
    if sleep:
        I(f's_branch {lab}_f')
    a.label(lab)
    if sleep:
        I(f's_sleep {sleep}')
        a.label(lab + '_f')
    for i in range(n):
        I(f'buffer_load_dwordx2 v[{vD+2*i}:{vD+2*i+1}], v{vOff}, s[{sWS}:{sWS+3}], s{sT} offen sc1')
        if i < n - 1:
            I(f's_add_u32 s{sT}, s{sT}, 8192')
    if n > 1:
        I(f's_sub_u32 s{sT}, s{sT}, {8192*(n-1)}')
    I('s_waitcnt vmcnt(0)')
    for i in range(n):
        I(f'v_xor_b32 v{vD+2*i}, s{sTag}, v{vD+2*i}')
        I(f'v_xor_b32 v{vD+2*i+1}, s{sTag+1}, v{vD+2*i+1}')
    for i in range(1, 2 * n):
        I(f'v_or_b32 v{vD}, v{vD}, v{vD+i}')
    I(f'v_cmp_ne_u32 vcc, 0, v{vD}')
    I(f's_add_u32 s{sCnt}, s{sCnt}, 1')
    I(f's_cmp_ge_u32 s{sCnt}, {SPIN_MAX}')
    I(f's_cbranch_scc1 {lab}_x')
    I(f's_cbranch_vccnz {lab}')
    a.label(lab + '_x')

def ctr_add(a, sDbg, off, vA, vB):
    I = a.I
    I(f'v_mov_b32 v{vA}, 1')
    I(f'v_mov_b32 v{vB}, {off}')
    I('s_mov_b64 exec, 1')
    I(f'buffer_atomic_add v{vA}, v{vB}, s[{sDbg}:{sDbg+3}], 0 offen')
    I('s_mov_b64 exec, -1')

def ctr_wait(a, lab, sDbg, off, val, vA, vB, sCnt, sT):
    I = a.I
    I(f'v_mov_b32 v{vB}, {off}')
    I(f's_mov_b32 s{sCnt}, 0')
    a.label(lab)
    I(f'buffer_load_dword v{vA}, v{vB}, s[{sDbg}:{sDbg+3}], 0 offen sc1')
    I('s_waitcnt vmcnt(0)')
    I(f'v_readfirstlane_b32 s{sT}, v{vA}')
    I(f's_add_u32 s{sCnt}, s{sCnt}, 1')
    I(f's_cmp_ge_u32 s{sCnt}, {SPIN_MAX}')
    I(f's_cbranch_scc1 {lab}_x')
    I(f's_cmp_lt_u32 s{sT}, {val}')
    I(f's_cbranch_scc1 {lab}')
    a.label(lab + '_x')
```

```python
from asmlib import Asm
from layout import *
from stamp import Stamps
from common import *

RSTR = 400
K3_LDS = 4 * 64 * RSTR

def gen_gemm3(name, stamps=False, kidx=2, NR=6, a=None, fused=False, st=None, sTag=None, pre=0, gmod=' sc1'):
    if a is None:
        a = Asm()
    I = a.I
    if st is None:
        st = Stamps(a, stamps, kidx)
    def vr(b, n=4): return f'v[{b}:{b+n-1}]'
    vO = [1, 2, 3]
    vT0, vT1, vT2, vTid = 4, 5, 6, 7
    vG = [8, 9, 10]
    vPoll = 11
    vX = 12
    RING = 24
    ACC = RING + 20 * NR
    def Af(s, t): return RING + 20 * s + 4 * t
    def Wf(s, j): return RING + 20 * s + 8 + 4 * j
    def Acc(t, j): return ACC + 48 * t + 16 * j
    sA, sX, sO, sDb = 8, 16, 20, 32
    sWave, sRB, sCB, sAo, sWo, sIt, sT, sCnt = 3, 24, 25, 26, 27, 28, 29, 30
    amod = gmod if fused else ''
    if not fused:
        a.label(name)
        I('s_cmp_ge_u32 s2, 256')
        I(f's_cbranch_scc1 {name}_end')
        st.start()
        I(f's_load_dwordx2 s[{sA}:{sA+1}], s[0:1], {KA_WS}')
    else:
        I(f's_load_dwordx2 s[{sDb}:{sDb+1}], s[0:1], {KA_DBG}')
        I(f's_lshr_b32 s36, s13, 3')
    I(f's_load_dwordx2 s[{sX}:{sX+1}], s[0:1], {KA_X}')
    I(f's_load_dwordx2 s[{sO}:{sO+1}], s[0:1], {KA_OUT}')
    I('s_and_b32 s6, s2, 7')
    I('s_lshr_b32 s7, s2, 3')
    I(f's_lshr_b32 s{sCB}, s7, 3')
    I('s_and_b32 s4, s6, 1')
    I('s_lshl_b32 s4, s4, 2')
    I(f's_add_u32 s{sCB}, s{sCB}, s4')
    if not fused:
        I(f's_cmp_ge_u32 s{sCB}, 7')
        I(f's_cbranch_scc1 {name}_end')
        I(f'v_lshrrev_b32 v{vT0}, 6, v0')
        I(f'v_mov_b32 v{vTid}, v0')
        I('v_and_b32 v0, 63, v0')
        I(f'v_readfirstlane_b32 s{sWave}, v{vT0}')
    else:
        I(f's_lshl_b32 s4, s{sWave}, 6')
        I(f'v_add_u32 v{vTid}, s4, v0')
    I(f'v_lshlrev_b32 v{vO[0]}, 4, v0')
    I(f'v_add_u32 v{vO[1]}, {AREC}, v{vO[0]}')
    I(f'v_add_u32 v{vO[2]}, {2*AREC}, v{vO[0]}')
    I(f's_lshr_b32 s{sRB}, s6, 1')
    I(f's_lshl_b32 s{sRB}, s{sRB}, 3')
    I('s_and_b32 s7, s7, 7')
    I(f's_add_u32 s{sRB}, s{sRB}, s7')
    I(f's_lshl_b32 s{sT}, s{sWave}, 10')
    if fused:
        I(f's_add_u32 s{sT}, s{sT}, {40*1024 + 4096*pre}')
    I(f's_mul_i32 s{sAo}, s{sRB}, {2*AREC}')
    I(f's_add_u32 s{sAo}, s{sAo}, s{sT}')
    I(f's_add_u32 s{sAo}, s{sAo}, {AF_OFF}')
    I(f's_mul_i32 s{sWo}, s{sCB}, {3*AREC}')
    I(f's_add_u32 s{sWo}, s{sWo}, s{sT}')
    I(f's_add_u32 s{sWo}, s{sWo}, {WF_OFF}')
    I(f's_mov_b32 s{sA+2}, {WF_END}')
    I(f's_mov_b32 s{sA+3}, 0x20000')
    I(f's_mov_b32 s{sIt}, {NR}')
    if fused:
        I(f's_cmp_ge_u32 s{sCB}, 7')
        I(f's_cselect_b32 s{sA+2}, 0, s{sA+2}')
    else:
        I('s_waitcnt lgkmcnt(0)')
    srdA = f's[{sA}:{sA+3}]'
    def loads(s, first=False):
        if not first:
            if fused and s == 0:
                I(f's_cmp_eq_u32 s{sIt}, {24-pre}')
                I(f's_cselect_b32 s{sT}, {136*1024}, 0')
                I(f's_sub_u32 s{sAo}, s{sAo}, s{sT}')
                I(f's_sub_u32 s{sWo}, s{sWo}, s{sT}')
            I(f's_cmp_ge_u32 s{sIt}, {34-pre}')
            I(f's_cselect_b32 s{sA+2}, 0, s{sA+2}')
            I(f's_add_u32 s{sIt}, s{sIt}, 1')
        for t in range(2):
            I(f'buffer_load_dwordx4 {vr(Af(s,t))}, v{vO[t]}, {srdA}, s{sAo} offen{amod}')
        for j in range(3):
            I(f'buffer_load_dwordx4 {vr(Wf(s,j))}, v{vO[j]}, {srdA}, s{sWo} offen{amod if sTag else ""}')
        I(f's_add_u32 s{sAo}, s{sAo}, 4096')
        I(f's_add_u32 s{sWo}, s{sWo}, 4096')
    assert (24 - pre) % NR == 0 and (36 - pre) % NR == 0
    def signal(tag):
        I('s_barrier')
        I(f's_cmp_lg_u32 s{sWave}, 0')
        I(f's_cbranch_scc1 {name}_nosig{tag}')
        if sTag:
            flag_set(a, 40, sTag, 3, 38, 242, vT2, sT)
        else:
            I(f'v_mov_b32 v{vPoll}, 1')
            I(f'v_mov_b32 v{vT2}, 0')
            I('s_mov_b64 exec, 1')
            I(f'buffer_atomic_add v{vPoll}, v{vT2}, s[{sDb}:{sDb+3}], s38 offen')
            I('s_mov_b64 exec, -1')
        a.label(f'{name}_nosig{tag}')
    if fused:
        I('s_waitcnt vmcnt(4)')
    for s in range(NR - 2 if pre else NR):
        loads(s, True)
    if fused:
        I(f's_mov_b32 s{sDb+2}, 256')
        I(f's_mov_b32 s{sDb+3}, 0x20000')
        if sTag:
            I('s_lshl_b32 s38, s36, 5')
            I('s_add_u32 s38, s38, s12')
            I(f's_lshr_b32 s36, s{sRB}, 2')
            I('s_lshl_b32 s36, s36, 12')
            I(f's_mov_b32 s40, s{sA}'); I(f's_mov_b32 s41, s{sA+1}'); I(f's_mov_b32 s42, {WS_END}'); I('s_mov_b32 s43, 0x20000')
            I(f'v_and_b32 v{vPoll}, 31, v0')
            I(f'v_lshlrev_b32 v{vPoll}, 7, v{vPoll}')
        else:
            I('s_lshl_b32 s38, s36, 5')
            I(f's_lshr_b32 s36, s{sRB}, 2')
            I('s_lshl_b32 s36, s36, 5')
        I('s_waitcnt lgkmcnt(0)')
        I(f's_cmp_lt_u32 s{sCB}, 7')
        I(f's_cbranch_scc1 {name}_go')
        I('s_waitcnt vmcnt(0)')
        signal('x')
        I(f's_branch {name}_fin')
        a.label(f'{name}_go')
    I(f'v_lshrrev_b32 v{vT0}, 2, v{vTid}')
    I(f'v_and_b32 v{vT1}, 3, v{vTid}')
    I(f'v_mul_u32_u24 v{vT2}, 1280, v{vT0}')
    I(f'v_mul_u32_u24 v{vG[0]}, 48, v{vT1}')
    I(f's_mul_i32 s{sT}, s{sCB}, 192')
    I(f'v_add_u32 v{vG[0]}, s{sT}, v{vG[0]}')
    I(f'v_mov_b32 v{vX}, 0x40000000')
    for j in (2, 1, 0):
        I(f'v_add_u32 v{vG[j]}, {16*j}, v{vG[0]}')
        I(f'v_cmp_gt_u32 vcc, 1280, v{vG[j]}')
        I(f'v_add_u32 v{vG[j]}, v{vG[j]}, v{vT2}')
        I(f'v_cndmask_b32 v{vG[j]}, v{vX}, v{vG[j]}, vcc')
    I(f's_mul_i32 s4, s{sRB}, {64*1280}')
    I(f's_mov_b32 s{sX+2}, {S*D*2}')
    I(f's_mov_b32 s{sX+3}, 0x20000')
    I(f's_mov_b32 s{sO+2}, {S*D*2}')
    I(f's_mov_b32 s{sO+3}, 0x20000')
    for j in range(3):
        I(f'buffer_load_dwordx4 {vr(vX+4*j)}, v{vG[j]}, s[{sX}:{sX+3}], s4 offen')
    I(f'v_mul_u32_u24 v{vT0}, {RSTR}, v{vT0}')
    I(f'v_mul_u32_u24 v{vT1}, 96, v{vT1}')
    I(f'v_add_u32 v{vTid}, v{vT0}, v{vT1}')
    I(f'v_and_b32 v{vT0}, 31, v0')
    I(f'v_mul_u32_u24 v{vT0}, {RSTR}, v{vT0}')
    I(f'v_lshrrev_b32 v{vT1}, 5, v0')
    I(f'v_lshl_add_u32 v{vT0}, v{vT1}, 4, v{vT0}')
    I(f's_mul_i32 s{sT}, s{sWave}, {64*RSTR}')
    I(f'v_add_u32 v{vT0}, s{sT}, v{vT0}')
    I(f'v_mov_b32 v{vT2}, 0')
    for r in range(96):
        I(f'v_mov_b32 v{ACC+r}, 0')
    I(f's_mov_b32 s{sCnt}, {(36 - pre) // NR}')
    st.mark()
    if pre:
        vB = [242, 243, 244]
        I(f's_lshl_b32 s{sT}, s{sWave}, 10')
        I(f'v_add_u32 v{vB[0]}, s{sT}, v{vO[0]}')
        I(f'v_add_u32 v{vB[1]}, {2*4096*pre}, v{vB[0]}')
        I(f'v_add_u32 v{vB[2]}, {4*4096*pre}, v{vB[0]}')
        def lrd(i):
            sl = NR - 2 + (i & 1)
            for k in range(5):
                I(f'ds_read_b128 {vr(RING+20*sl+4*k)}, v{vB[k>>1]} offset:{(k&1)*4096*pre + 4096*i}')
        lrd(0)
        for i in range(pre):
            if i + 1 < pre:
                lrd(i + 1)
            I(f's_waitcnt lgkmcnt({5 if i + 1 < pre else 0})')
            sl = NR - 2 + (i & 1)
            for j in range(3):
                for t in range(2):
                    acc = vr(Acc(t, j), 16)
                    I(f'v_mfma_f32_32x32x16_bf16 {acc}, {vr(Wf(sl,j))}, {vr(Af(sl,t))}, {acc}')
            if i >= pre - 2:
                loads(sl, True)
    a.I('.p2align 3')
    a.label(f'{name}_loop')
    if fused:
        I(f's_cmp_lg_u32 s{sIt}, {2*NR}')
        I(f's_cbranch_scc1 {name}_nosigy')
        signal('y')
        I(f's_cmp_lg_u32 s{sIt}, {24-pre}')
        I(f's_cbranch_scc1 {name}_nopoll')
        if sTag:
            flag_wait(a, f'{name}_poll', 40, sTag, 3, 1, vPoll, 242, 37, sT, soff=36)
        else:
            I(f's_mov_b32 s37, 0')
            a.label(f'{name}_poll')
            I(f'buffer_load_dword v{vPoll}, v{vT2}, s[{sDb}:{sDb+3}], s36 offen sc1')
            I('s_waitcnt vmcnt(0)')
            I(f'v_readfirstlane_b32 s{sT}, v{vPoll}')
            I('s_add_u32 s37, s37, 1')
            I('s_cmp_ge_u32 s37, 0x400000')
            I(f's_cbranch_scc1 {name}_nopoll')
            I(f's_cmp_lt_u32 s{sT}, 32')
            I(f's_cbranch_scc1 {name}_poll')
        a.label(f'{name}_nopoll')
    for s in range(NR):
        I(f's_waitcnt vmcnt({5*(NR-1)})')
        for j in range(3):
            for t in range(2):
                acc = vr(Acc(t, j), 16)
                I(f'v_mfma_f32_32x32x16_bf16 {acc}, {vr(Wf(s,j))}, {vr(Af(s,t))}, {acc}')
        loads(s)
    I(f's_sub_u32 s{sCnt}, s{sCnt}, 1')
    I(f's_cmp_lg_u32 s{sCnt}, 0')
    I(f's_cbranch_scc1 {name}_loop')
    st.mark()
    for t in range(2):
        for j in range(3):
            for rq in range(4):
                I(f'ds_write_b128 v{vT0}, {vr(Acc(t,j)+4*rq)} offset:{32*RSTR*t+128*j+32*rq}')
    I(f'v_add_u32 v{vT1}, {2*64*RSTR}, v{vTid}')
    I('s_waitcnt vmcnt(0) lgkmcnt(0)')
    I('s_barrier')
    R = RING
    for w in range(4):
        for j in range(6):
            I(f'ds_read_b128 {vr(R+24*w+4*j)}, v{vTid if w < 2 else vT1} offset:{(w&1)*64*RSTR+16*j}')
        if w == 1:
            I('s_waitcnt lgkmcnt(6)')
    U = max(ACC, RING + 96)
    for k in range(12):
        I(f'v_lshlrev_b32 v{U+2*k}, 16, v{vX+k}')
        I(f'v_and_b32 v{U+2*k+1}, 0xffff0000, v{vX+k}')
    I('s_waitcnt lgkmcnt(12)')
    for r in range(0, 24, 2):
        I(f'v_pk_add_f32 {vr(R+r,2)}, {vr(R+r,2)}, {vr(R+24+r,2)}')
    I('s_waitcnt lgkmcnt(0)')
    for r in range(0, 24, 2):
        I(f'v_pk_add_f32 {vr(R+48+r,2)}, {vr(R+48+r,2)}, {vr(R+72+r,2)}')
    for r in range(0, 24, 2):
        I(f'v_pk_add_f32 {vr(R+r,2)}, {vr(R+r,2)}, {vr(R+48+r,2)}')
    for r in range(0, 24, 2):
        I(f'v_pk_add_f32 {vr(R+r,2)}, {vr(R+r,2)}, {vr(U+r,2)}')
    for k in range(12):
        I(f'v_cvt_pk_bf16_f32 v{U+k}, v{R+2*k}, v{R+2*k+1}')
    for j in range(3):
        I(f'buffer_store_dwordx4 {vr(U+4*j)}, v{vG[j]}, s[{sO}:{sO+3}], s4 offen')
    a.label(f'{name}_fin')
    st.end(sWave, 4, 5)
    if not fused:
        a.label(f'{name}_end')
        I('s_endpgm')
    return a
```

```python
from asmlib import Asm
from layout import *
from stamp import Stamps
from common import *
from k_attn import gen_attn
from k_gemm3 import gen_gemm3
import struct
def f2u(f): return struct.unpack('<I', struct.pack('<f', f))[0]

BSLOT, XSLOT = 20512, 16384
GOFF, UOFF = 8192, 6144 + 32
NM_LDS = 0
RR_LDS = NM_LDS + 512
CS_LDS = RR_LDS + 512
TG_LDS = 2304
SY_LDS = 0
ST_LDS = 2320
CP_LDS = 2560
B_LDS = 8192
X_LDS = B_LDS + 4 * BSLOT
R_LDS = X_LDS + 2 * XSLOT
SYB = R_LDS + 16384
K1_LDS = SYB + 64

def gen_mega3(name, stamps=False, kidx=0, codepf=True, stmod=' sc1', prio=True, dbg='', warm=0, wj=0, lin=1, lin2=0, ldmod=' sc1', hdefer=True, lprio=2, ctr=False, repf=True, fsleep=4, t2=12, NS=4, pre=6, pth=1, gs=64, schedv=0):
    a = Asm()
    I = a.I
    st = Stamps(a, stamps, kidx)
    def vr(b, n=4): return f'v[{b}:{b+n-1}]'
    vLane16, vT0, vT1, vT2, vT3, vTok, vHk = 1, 2, 3, 4, 5, 6, 7
    vU = 8
    vXB = [12, 13, 14, 15]
    vWB = [[16 + 3 * ss + i for i in range(3)] for ss in range(2)]
    WFR = [26, 46]
    XFR = [[66, 70], [74, 78 - 0]]
    XFR = [[66, 70], [74, 60 + 18]]
    ACC = 82
    vEP = 242
    def Acc(t, u): return ACC + 80 * t + 16 * u
    def Wf(s, u): return WFR[s] + 4 * u
    vD = [26, 27, 28, 29, 30]
    vDX = [31, 32, 33, 34]
    vSA = 36
    vSel = 40
    LW = 44
    LX = [64, 68]
    LCS = 72
    vPF = 248
    sWave, sRB, sCG, sG, sRP, sT, sT2, sL = 3, 28, 29, 30, 31, 33, 34, 32
    sX, sD0, sD1, sD2, sWS = 8, 12, 16, 20, 60
    sO0, sO2, sOX, sSt0, sCnt, sXi = 35, 37, 38, 39, 41, 42
    sLo = 44
    sMX = 47
    sType = 48
    sM = [36, 40, 46]
    def srd(s): return f's[{s}:{s+3}]'

    a.label(name)
    I('s_cmp_ge_u32 s2, 256')
    I(f's_cbranch_scc1 {name}_end')
    st.start()
    I(f's_load_dwordx4 s[4:7], s[0:1], {KA_X}')
    I(f's_load_dwordx4 s[52:55], s[0:1], {KA_WG}')
    I(f's_load_dwordx2 s[{sWS}:{sWS+1}], s[0:1], {KA_WS}')
    I(f's_load_dwordx2 s[24:25], s[0:1], {KA_DBG}')
    I(f'v_lshrrev_b32 v{vT0}, 6, v0')
    I(f'v_and_b32 v{vT3}, 255, v0')
    I('v_and_b32 v0, 63, v0')
    I(f'v_readfirstlane_b32 s{sWave}, v{vT0}')
    I(f'v_lshlrev_b32 v{vLane16}, 4, v0')
    I(f's_and_b32 s{sT}, s2, 7')
    I(f's_lshr_b32 s{sT2}, s2, 3')
    I(f's_and_b32 s{sRB}, s{sT}, 1')
    I(f's_lshl_b32 s{sRB}, s{sRB}, 3')
    I(f's_and_b32 s{sCG}, s{sT2}, 7')
    I(f's_add_u32 s{sRB}, s{sRB}, s{sCG}')
    I(f's_lshr_b32 s{sCG}, s{sT}, 1')
    I(f's_lshl_b32 s{sCG}, s{sCG}, 2')
    I(f's_lshr_b32 s{sT2}, s{sT2}, 3')
    I(f's_add_u32 s{sCG}, s{sCG}, s{sT2}')
    I(f's_and_b32 s{sL}, s{sWave}, 3')
    I(f's_lshr_b32 s{sG}, s{sL}, 1')
    I(f's_and_b32 s{sRP}, s{sL}, 1')
    I(f's_cmp_lt_u32 s{sWave}, 4')
    I(f's_cbranch_scc1 {name}_rd')
    I(f'v_lshrrev_b32 v{vT0}, 3, v0')
    I(f'v_lshrrev_b32 v{vT1}, 4, v0')
    I(f'v_xor_b32 v{vT1}, v{vT1}, v0')
    I(f'v_and_b32 v{vT1}, 7, v{vT1}')
    I(f'v_mul_u32_u24 v{vT0}, 1280, v{vT0}')
    I(f'v_lshl_add_u32 v{vDX[0]}, v{vT1}, 4, v{vT0}')
    I(f'v_xor_b32 v{vT1}, 4, v{vT1}')
    I(f'v_lshl_add_u32 v{vDX[1]}, v{vT1}, 4, v{vT0}')
    I(f'v_add_u32 v{vDX[2]}, {16*1280-2048}, v{vDX[0]}')
    I(f'v_add_u32 v{vDX[3]}, {24*1280-3072}, v{vDX[1]}')
    I(f'v_add_u32 v{vDX[1]}, {8*1280-1024}, v{vDX[1]}')
    I(f's_lshl_b32 s{sOX}, s{sRB}, 7')
    I(f's_lshl_b32 s{sT}, s{sL}, 5')
    I(f's_add_u32 s{sOX}, s{sOX}, s{sT}')
    I(f's_mul_i32 s{sOX}, s{sOX}, 1280')
    I(f's_lshl_b32 s{sMX}, s{sL}, 12')
    I(f's_add_u32 s{sMX}, s{sMX}, {X_LDS}')
    I(f's_mov_b32 s{sX+2}, {S*D*2}')
    for s in (sX, sD0, sD1, sD2):
        I(f's_mov_b32 s{s+3}, 0x20000')
    I(f's_mov_b32 s{sD2+2}, {D*3*D*2}')
    I(f's_mov_b32 s{sD0+2}, {D*F*2}')
    I(f's_mov_b32 s{sXi}, 0')
    I(f'v_lshrrev_b32 v{vT0}, 4, v0')
    I(f'v_lshlrev_b32 v{vT1}, 2, v{vT0}')
    I(f'v_xor_b32 v{vT1}, v{vT1}, v0')
    I(f'v_and_b32 v{vT1}, 15, v{vT1}')
    I(f'v_mul_u32_u24 v{vT0}, 3840, v{vT0}')
    I(f'v_lshl_add_u32 v{vD[0]}, v{vT1}, 4, v{vT0}')
    I(f'v_add_u32 v{vD[1]}, {4*3840-1024}, v{vD[0]}')
    for j in range(3):
        I(f'v_add_u32 v{vT0}, {64*j}, v0')
        I(f'v_mul_u32_u24 v{vT1}, 5462, v{vT0}')
        I(f'v_lshrrev_b32 v{vT1}, 16, v{vT1}')
        I(f'v_mul_u32_u24 v{vT1}, {3072-192}, v{vT1}')
        I(f'v_lshl_add_u32 v{vD[2+j]}, v{vT0}, 4, v{vT1}')
        if j:
            I(f'v_subrev_u32 v{vD[2+j]}, {1024*j}, v{vD[2+j]}')
    I(f's_mul_i32 s{sO2}, s{sL}, {8*3840}')
    I(f's_lshl_b32 s{sT}, s{sCG}, 8')
    I(f's_add_u32 s{sO2}, s{sO2}, s{sT}')
    I(f's_mul_i32 s{sO0}, s{sRP}, {16*3072}')
    I(f's_mul_i32 s{sT}, s{sCG}, 192')
    I(f's_add_u32 s{sO0}, s{sO0}, s{sT}')
    I(f's_lshl_b32 s{sM[0]}, s{sL}, 11')
    I(f's_mul_i32 s{sM[1]}, s{sRP}, 3072')
    I(f's_mul_i32 s{sT}, s{sG}, {UOFF}')
    I(f's_add_u32 s{sM[1]}, s{sM[1]}, s{sT}')
    I(f's_add_u32 s{sM[1]}, s{sM[1]}, {GOFF}')
    I(f's_cmp_eq_u32 s{sCG}, 15')
    I(f's_cselect_b32 s{sD2+2}, 0, s{sD2+2}')
    I('s_waitcnt lgkmcnt(0)')
    I(f's_cmp_eq_u32 s{sG}, 0')
    I(f's_cselect_b32 s{sD0}, s52, s54')
    I(f's_cselect_b32 s{sD0+1}, s53, s55')
    I(f's_mov_b32 s{sD2}, s6'); I(f's_mov_b32 s{sD2+1}, s7')
    I(f's_mov_b32 s{sX}, s4'); I(f's_mov_b32 s{sX+1}, s5')

    q = []
    def V(text, tag):
        I(text); q.append(tag)
    def wait_for(*tags, lgkm=False):
        last = max((i for i, t in enumerate(q) if t in tags), default=-1)
        n = len(q) - 1 - last
        if last >= 0:
            I(f's_waitcnt vmcnt({min(n, 63)})' + (' lgkmcnt(0)' if lgkm else ''))
            del q[:last + 1]
        elif lgkm:
            I('s_waitcnt lgkmcnt(0)')
    def IQ(x, tag):
        if x.startswith('buffer_load'): V(x, tag)
        else: I(x)
    def dmaB(j):
        slot = j & 3
        for x in [
            f's_add_u32 m0, s{sM[0]}, {B_LDS+slot*BSLOT}',
            f's_nop 0',
            f'buffer_load_dwordx4 v{vD[0]}, {srd(sD2)}, s{sO2} offen lds',
            f'buffer_load_dwordx4 v{vD[1]}, {srd(sD2)}, s{sO2} offen offset:1024 lds',
            f's_add_u32 m0, s{sM[1]}, {B_LDS+slot*BSLOT}',
            f's_add_u32 s{sO2}, s{sO2}, {32*3840}',
            f'buffer_load_dwordx4 v{vD[2]}, {srd(sD0)}, s{sO0} offen lds',
            f'buffer_load_dwordx4 v{vD[3]}, {srd(sD0)}, s{sO0} offen offset:1024 lds',
            f'buffer_load_dwordx4 v{vD[4]}, {srd(sD0)}, s{sO0} offen offset:2048 lds',
            f's_add_u32 s{sO0}, s{sO0}, {32*3072}']: IQ(x, f'B{j}')
    def dmaX(i):
        slot = i & 1
        for x in [
            f's_cmp_ge_u32 s{sXi}, 10',
            f's_cselect_b32 s{sX+2}, 0, s{sX+2}',
            f's_add_u32 m0, s{sMX}, {slot*XSLOT}',
            f's_add_u32 s{sXi}, s{sXi}, 1',
            f'buffer_load_dwordx4 v{vDX[0]}, {srd(sX)}, s{sOX} offen lds',
            f'buffer_load_dwordx4 v{vDX[1]}, {srd(sX)}, s{sOX} offen offset:1024 lds',
            f'buffer_load_dwordx4 v{vDX[2]}, {srd(sX)}, s{sOX} offen offset:2048 lds',
            f'buffer_load_dwordx4 v{vDX[3]}, {srd(sX)}, s{sOX} offen offset:3072 lds',
            f's_add_u32 s{sOX}, s{sOX}, 128']: IQ(x, f'X{i}')
    sRU, sRK, sRC = 64, 65, 66
    dmaX(0); dmaB(0)
    if 'fine' in dbg: st.mark()
    dmaB(1)
    if 'fine' in dbg: st.mark()
    a.label(f'{name}_rd')
    npf = 0
    sSec, sSub = 48, 39
    I(f's_mul_i32 s{sSec}, s{sCG}, 13108')
    I(f's_lshr_b32 s{sSec}, s{sSec}, 16')
    I(f's_mul_i32 s{sT}, s{sSec}, 5')
    I(f's_sub_u32 s{sSub}, s{sCG}, s{sT}')
    I(f's_cmp_ge_u32 s{sWave}, 4')
    I(f's_cbranch_scc1 {name}_nopf')
    vWA, vWI = 244, 246
    def touch(mask='s[64:65]'):
        for x in [f's_mov_b64 exec, {mask}',
                  f'global_load_dword v{vPF}, v[{vWA}:{vWA+1}], off',
                  's_mov_b64 exec, -1',
                  f'v_add_co_u32 v{vWA}, vcc, v{vWA}, v{vWI}',
                  f'v_addc_co_u32 v{vWA+1}, vcc, 0, v{vWA+1}, vcc']:
            I(x, tag='pf')
    if lin:
        I(f's_lshl_b32 s{sT}, s2, 2')
        I(f's_add_u32 s{sT}, s{sT}, s{sL}')
        I(f'v_lshrrev_b32 v{vT0}, 3, v0')
        I(f'v_and_b32 v{vT1}, 7, v0')
        I(f'v_cmp_gt_u32 vcc, 4, v{vT0}')
        I(f'v_cndmask_b32 v{vT1}, v{vT1}, v0, vcc')
        I(f'v_mov_b32 v{vT2}, 20')
        I(f'v_mov_b32 v{vWI}, {S*D*2}')
        I('s_waitcnt lgkmcnt(0)')
        I(f'v_mov_b32 v{vWA}, s4'); I(f'v_mov_b32 v{vWA+1}, s5')
        for grp, n, qq, p in ((4, 5, 160*3840, 6), (5, 4, 160*3072, 52), (6, 4, 160*3072, 54)):
            I(f'v_cmp_eq_u32 vcc, {grp}, v{vT0}')
            I(f'v_mov_b32 v{vU}, s{p}'); I(f'v_mov_b32 v{vU+1}, s{p+1}'); I(f'v_mov_b32 v{vU+2}, {qq}')
            I(f'v_cndmask_b32 v{vWA}, v{vWA}, v{vU}, vcc')
            I(f'v_cndmask_b32 v{vWA+1}, v{vWA+1}, v{vU+1}, vcc')
            I(f'v_cndmask_b32 v{vWI}, v{vWI}, v{vU+2}, vcc')
            I(f'v_mov_b32 v{vU}, {n}')
            I(f'v_cndmask_b32 v{vT2}, v{vT2}, v{vU}, vcc')
        I(f'v_mul_lo_u32 v{vT2}, v{vT2}, s{sT}')
        I(f'v_add_u32 v{vT2}, v{vT2}, v{vT1}')
        I(f'v_lshlrev_b32 v{vT2}, 7, v{vT2}')
        I(f'v_subrev_u32 v{vT1}, 128, v{vWI}')
        I(f'v_min_u32 v{vT2}, v{vT2}, v{vT1}')
        I(f'v_add_co_u32 v{vWA}, vcc, v{vWA}, v{vT2}')
        I(f'v_addc_co_u32 v{vWA+1}, vcc, 0, v{vWA+1}, vcc')
        I(f's_mov_b32 s64, 0')
        I(f's_mov_b32 s65, 0x000f0f1f')
        I(f's_mov_b32 s66, 0x000fffff')
        I(f's_mov_b32 s67, 0x000f0f1f')
        touch('s[66:67]')
        for i in range(lin - 1):
            touch()
    if codepf:
        code_prefetch(a, f'{name}_nopf', f'{name}_end', sL, 4, vLane16, vPF, 56, sT, 32)
    a.label(f'{name}_nopf')
    I(f'v_and_b32 v{vTok}, 31, v0')
    I(f'v_lshrrev_b32 v{vHk}, 5, v0')
    I(f's_lshl_b32 s{sT}, s{sRP}, 1')
    I(f's_cmp_ge_u32 s{sWave}, 4')
    I(f's_cselect_b32 s{sT}, s{sL}, s{sT}')
    I(f's_cselect_b32 s{sT2}, s{sRP}, 0')
    I(f's_lshl_b32 s{sT}, s{sT}, 12')
    I(f's_add_u32 s{sT}, s{sT}, {X_LDS}')
    I(f'v_bfe_u32 v{vT1}, v0, 1, 3')
    I(f'v_xor_b32 v{vT1}, v{vT1}, v{vHk}')
    I(f'v_lshlrev_b32 v{vT0}, 7, v{vTok}')
    I(f'v_add_u32 v{vT0}, s{sT}, v{vT0}')
    for ks in range(4):
        I(f'v_xor_b32 v{vU}, {2*ks}, v{vT1}')
        I(f'v_lshl_add_u32 v{vXB[ks]}, v{vU}, 4, v{vT0}')
    I(f'v_bfe_u32 v{vT0}, v0, 2, 2')
    I(f'v_lshl_add_u32 v{vT1}, v{vHk}, 3, v{vT0}')
    I(f's_lshl_b32 s{sT2}, s{sT2}, 4')
    I(f'v_add_u32 v{vT1}, s{sT2}, v{vT1}')
    I(f'v_and_b32 v{vT2}, 3, v0')
    I(f'v_lshlrev_b32 v{vT2}, 3, v{vT2}')
    I(f'v_add_u32 v{vT2}, {B_LDS}, v{vT2}')
    vG16 = vU
    I(f'v_bfe_u32 v{vG16}, v0, 4, 1')
    W0 = vWB[0]
    I(f'v_lshlrev_b32 v{vU+1}, 8, v{vT1}')
    I(f'v_lshl_add_u32 v{vU+1}, v{vG16}, 5, v{vU+1}')
    I(f'v_add_u32 v{vU+1}, v{vU+1}, v{vT2}')
    I(f's_lshl_b32 s{sT}, s{sG}, 1')
    I(f'v_xor_b32 v{vU+2}, s{sT}, v{vT0}')
    I(f'v_lshl_add_u32 v{W0[0]}, v{vU+2}, 6, v{vU+1}')
    I(f'v_xor_b32 v{vU+2}, 1, v{vU+2}')
    I(f'v_lshl_add_u32 v{W0[1]}, v{vU+2}, 6, v{vU+1}')
    I(f'v_mul_u32_u24 v{W0[2]}, 192, v{vT1}')
    I(f'v_mul_u32_u24 v{vU+1}, {UOFF}, v{vG16}')
    I(f'v_add3_u32 v{W0[2]}, v{W0[2]}, v{vU+1}, v{vT2}')
    I(f's_mul_i32 s{sT}, s{sG}, 96')
    I(f's_add_u32 s{sT}, s{sT}, {GOFF}')
    I(f'v_add_u32 v{W0[2]}, s{sT}, v{W0[2]}')
    for i in range(3):
        I(f'v_add_u32 v{vWB[1][i]}, {2*BSLOT}, v{W0[i]}')
    I(f's_mov_b32 s{sCnt}, 5')
    I(f's_cmp_lt_u32 s{sWave}, 4')
    I(f's_cbranch_scc1 {name}_comp')
    I(f's_setprio {lprio}')
    I(f's_mov_b32 s{sLo}, -1')
    I(f's_mov_b32 s{sLo+1}, 0')
    sDb, sTag = 24, 50
    vXS, vLA, vWS, vWSH, vCA, vS, vP, vTg, vFO = 36, 46, 48, 52, 92, 100, 124, 164, 166
    I(f's_mov_b32 s{sDb+2}, 256'); I(f's_mov_b32 s{sDb+3}, 0x20000')
    I(f's_mov_b32 s{sWS+2}, {WS_END}'); I(f's_mov_b32 s{sWS+3}, 0x20000')
    I(f's_or_b32 s{sT}, s2, s{sL}')
    I(f's_cmp_lg_u32 s{sT}, 0')
    I(f's_cbranch_scc1 {name}_notag')
    tag_publish(a, sDb, sTag, vTg, vT0)
    a.label(f'{name}_notag')
    I(f'v_mov_b32 v{vFO+1}, {SYB}')
    I(f'v_mov_b32 v{vP}, 0'); I(f'v_mov_b32 v{vP+1}, 0')
    I(f'ds_write_b64 v{vFO+1}, {vr(vP,2)}')
    wait_for('X0', 'B0', lgkm=True)
    I('s_barrier')
    st.mark()
    dmaB(2); dmaX(1); dmaB(3)
    vXA = vT3
    def share_setup():
        I(f's_lshl_b32 s{sT}, s{sRB}, 7')
        I(f's_lshl_b32 s{sT2}, s{sCG}, 3')
        I(f's_add_u32 s{sT}, s{sT}, s{sT2}')
        I(f's_lshl_b32 s{sT2}, s{sL}, 1')
        I(f's_add_u32 s{sT}, s{sT}, s{sT2}')
        I(f's_mul_i32 s43, s{sT}, 1280')
        I(f'v_mul_u32_u24 v{vXA}, 1280, v{vHk}')
        I(f'v_lshl_add_u32 v{vXA}, v{vTok}, 3, v{vXA}')
        for j in range(5):
            V(f'buffer_load_dwordx2 {vr(vXS+2*j,2)}, v{vXA}, {srd(sX)}, s43 offen offset:{256*j}', 'xs')
        I(f'v_mov_b32 v{vT0}, 0')
        V(f'buffer_load_dwordx2 {vr(vTg,2)}, v{vT0}, {srd(sDb)}, 0 offen sc1', 'tag')
        I(f's_min_u32 s{sT}, s{sCG}, 14')
        I(f's_lshl_b32 s{sT}, s{sT}, 8')
        I(f'v_add_u32 v{vT0}, s{sT}, v{vLane16}')
        I(f's_mul_i32 s{sT}, s{sCG}, 192')
        I(f's_sub_u32 s{sT2}, s{sT}, {16*16}')
        I(f'v_add_u32 v{vT1}, s{sT2}, v{vLane16}')
        I(f's_sub_u32 s{sT2}, s{sT}, {28*16}')
        I(f'v_add_u32 v{vT2}, s{sT2}, v{vLane16}')
        I(f'v_mov_b32 v{vLA}, s54'); I(f'v_mov_b32 v{vLA+1}, s55'); I(f'v_mov_b32 v{vWS}, 3072')
        I(f'v_cmp_gt_u32 vcc, 28, v0')
        I(f'v_mov_b32 v{vU}, s52'); I(f'v_mov_b32 v{vU+1}, s53')
        I(f'v_cndmask_b32 v{vT2}, v{vT2}, v{vT1}, vcc')
        I(f'v_cndmask_b32 v{vLA}, v{vLA}, v{vU}, vcc')
        I(f'v_cndmask_b32 v{vLA+1}, v{vLA+1}, v{vU+1}, vcc')
        I(f'v_cmp_gt_u32 vcc, 16, v0')
        I(f'v_mov_b32 v{vU}, s6'); I(f'v_mov_b32 v{vU+1}, s7'); I(f'v_mov_b32 v{vU+2}, 3840')
        I(f'v_cndmask_b32 v{vT2}, v{vT2}, v{vT0}, vcc')
        I(f'v_cndmask_b32 v{vLA}, v{vLA}, v{vU}, vcc')
        I(f'v_cndmask_b32 v{vLA+1}, v{vLA+1}, v{vU+1}, vcc')
        I(f'v_cndmask_b32 v{vWS}, v{vWS}, v{vU+2}, vcc')
        I(f's_mul_i32 s{sT}, s{sRB}, 40')
        I(f's_mul_i32 s{sT2}, s{sL}, 10')
        I(f's_add_u32 s{sT}, s{sT}, s{sT2}')
        I(f'v_mul_lo_u32 v{vT0}, v{vWS}, s{sT}')
        I(f'v_add_u32 v{vT2}, v{vT2}, v{vT0}')
        I(f'v_add_co_u32 v{vLA}, vcc, v{vLA}, v{vT2}')
        I(f'v_addc_co_u32 v{vLA+1}, vcc, 0, v{vLA+1}, vcc')
    sc = stmod
    def w_share_issue(i0=0, i1=10):
        I('s_mov_b32 exec_hi, 0xff')
        for i in range(i0, i1):
            V(f'global_load_dwordx4 {vr(vWSH+4*i)}, v[{vLA}:{vLA+1}], off', 'ws')
            if i < 9:
                I(f'v_add_co_u32 v{vLA}, vcc, v{vLA}, v{vWS}')
                I(f'v_addc_co_u32 v{vLA+1}, vcc, 0, v{vLA+1}, vcc')
        I('s_mov_b64 exec, -1')
    def red32(r, t):
        for d in ('quad_perm:[1,0,3,2]', 'quad_perm:[2,3,0,1]', 'row_half_mirror', 'row_mirror'):
            I(f'v_add_f32_dpp v{r}, v{r}, v{r} {d} row_mask:0xf bank_mask:0xf')
        I(f'v_mov_b32 v{t}, v{r}')
        I(f'v_permlane16_swap_b32 v{t}, v{r}')
        I(f'v_add_f32 v{r}, v{r}, v{t}')
    def capture(fn):
        keep = a.ins
        a.ins = []
        fn()
        got, a.ins = a.ins, keep
        return got
    def x_stats():
        m, t = vS + 20, vS + 21
        v2, t2 = vS + 22, vS + 23
        for k in range(10):
            I(f'v_lshlrev_b32 v{vS+2*k}, 16, v{vXS+k}')
            I(f'v_and_b32 v{vS+2*k+1}, 0xffff0000, v{vXS+k}')
        I(f'v_add_f32 v{m}, v{vS}, v{vS+1}')
        I(f'v_add_f32 v{t}, v{vS+2}, v{vS+3}')
        for k in range(4, 20, 2):
            I(f'v_add_f32 v{m}, v{m}, v{vS+k}')
            I(f'v_add_f32 v{t}, v{t}, v{vS+k+1}')
        I(f'v_add_f32 v{m}, v{m}, v{t}')
        red32(m, t)
        I(f'v_mul_f32 v{m}, 0x{f2u(-1.0/640):08x}, v{m}')
        for k in range(20):
            I(f'v_add_f32 v{vS+k}, v{m}, v{vS+k}')
        I(f'v_mul_f32 v{v2}, v{vS}, v{vS}')
        I(f'v_mul_f32 v{t2}, v{vS+1}, v{vS+1}')
        for k in range(2, 20, 2):
            I(f'v_fmac_f32 v{v2}, v{vS+k}, v{vS+k}')
            I(f'v_fmac_f32 v{t2}, v{vS+k+1}, v{vS+k+1}')
        I(f'v_add_f32 v{v2}, v{v2}, v{t2}')
        red32(v2, t2)
        I(f'v_mul_f32 v{v2}, 0x{f2u(1.0/640):08x}, v{v2}')
        I(f'v_cvt_pk_bf16_f32 v{t}, v{v2}, v{m}')
        I(f'v_and_b32 v{m}, 0xffff0000, v{t}')
        I(f'v_lshlrev_b32 v{t}, 16, v{t}')
        I(f'v_add_f32 v{t}, 0x{f2u(1e-5):08x}, v{t}')
        I(f'v_cvt_pk_bf16_f32 v{t}, v{t}, v{t}')
        I(f'v_lshlrev_b32 v{t}, 16, v{t}')
        I(f'v_sqrt_f32 v{t}, v{t}')
        I(f'v_cvt_pk_bf16_f32 v{t}, v{t}, v{t}')
        I(f'v_lshlrev_b32 v{t}, 16, v{t}')
        I(f'v_rcp_f32 v{t}, v{t}')
        I(f'v_lshlrev_b32 v{v2}, 3, v{vHk}')
        I(f'v_add_u32 v{v2}, s49, v{v2}')
        I(f'ds_write_b64 v{v2}, {vr(m,2)} offset:{ST_LDS}')
    vCI = vS + 24
    def w_sum():
        for i in range(10):
            for d in range(4):
                src = vWSH + 4 * i + d
                if i == 0:
                    I(f'v_lshlrev_b32 v{vCA+2*d}, 16, v{src}')
                    I(f'v_and_b32 v{vCA+2*d+1}, 0xffff0000, v{src}')
                else:
                    t = vS + 2 * d
                    I(f'v_lshlrev_b32 v{t}, 16, v{src}')
                    I(f'v_and_b32 v{t+1}, 0xffff0000, v{src}')
                    I(f'v_add_f32 v{vCA+2*d}, v{vCA+2*d}, v{t}')
                    I(f'v_add_f32 v{vCA+2*d+1}, v{vCA+2*d+1}, v{t+1}')
    def w_index():
        I(f'v_subrev_u32 v{vT0}, 16, v0')
        I(f'v_subrev_u32 v{vT1}, 28, v0')
        I(f'v_cmp_gt_u32 vcc, 28, v0')
        I(f'v_cndmask_b32 v{vT0}, v{vT1}, v{vT0}, vcc')
        I(f'v_cndmask_b32 v{vT2}, 16, 0, vcc')
        I(f'v_lshrrev_b32 v{vT1}, 1, v{vT0}')
        I(f'v_lshl_add_u32 v{vT2}, v{vT1}, 5, v{vT2}')
        I(f'v_and_b32 v{vT0}, 1, v{vT0}')
        I(f'v_lshl_add_u32 v{vT2}, v{vT0}, 3, v{vT2}')
        I(f'v_add_u32 v{vT2}, 128, v{vT2}')
        I(f'v_lshlrev_b32 v{vT0}, 3, v0')
        I(f'v_cmp_gt_u32 vcc, 16, v0')
        I(f'v_cndmask_b32 v{vT2}, v{vT2}, v{vT0}, vcc')
        I(f'v_lshlrev_b32 v{vT2}, 2, v{vT2}')
        I(f's_mul_i32 s{sT}, s{sL}, 1280')
        I(f'v_add_u32 v{vCI}, s{sT}, v{vT2}')
        I(f's_lshl_b32 s49, s{sL}, 4')
    def w_write():
        I('s_mov_b32 exec_hi, 0xff')
        I(f'ds_write_b128 v{vCI}, {vr(vCA)} offset:{CP_LDS}')
        I(f'ds_write_b128 v{vCI}, {vr(vCA+4)} offset:{CP_LDS+16}')
        I('s_mov_b64 exec, -1')
    xs_l, ws_l = capture(x_stats), capture(w_sum)
    def sl(lst, k, n, w=None):
        def g():
            if w: wait_for(w)
            a.ins.extend(lst[len(lst) * k // n: len(lst) * (k + 1) // n])
        return g
    def only0(fn, lab):
        I(f's_cmp_lg_u32 s{sL}, 0')
        I(f's_cbranch_scc1 {lab}')
        n0 = len(q)
        fn()
        del q[n0:]
        a.label(lab)
    def publish_store():
        for h, (n, off) in enumerate(((64, 0), (16, 1024))):
            for w in range(4):
                I(f'ds_read_b128 {vr(vP+16*h+4*w)}, v{vLane16} offset:{CP_LDS+1280*w+off}')
        I(f'ds_read_b128 {vr(vP+32)}, v{vLane16} offset:{ST_LDS}')
        I(f's_lshl_b32 s{sT}, s{sCG}, 4')
        I(f's_add_u32 s{sT}, s{sT}, s{sRB}')
        I(f's_mul_i32 s{sT}, s{sT}, 1280')
        I(f's_add_u32 s{sT}, s{sT}, {CSQ_OFF}')
        I(f's_lshl_b32 s{sT2}, s{sRB}, 10')
        I(f's_lshl_b32 s43, s{sCG}, 6')
        I(f's_add_u32 s{sT2}, s{sT2}, s43')
        I(f's_add_u32 s{sT2}, s{sT2}, {RSQ_OFF}')
        I('s_waitcnt lgkmcnt(0)')
        for h in range(2):
            b = vP + 16 * h
            for r in range(0, 4, 2):
                I(f'v_pk_add_f32 {vr(b+r,2)}, {vr(b+r,2)}, {vr(b+4+r,2)}')
                I(f'v_pk_add_f32 {vr(b+8+r,2)}, {vr(b+8+r,2)}, {vr(b+12+r,2)}')
                I(f'v_pk_add_f32 {vr(b+r,2)}, {vr(b+r,2)}, {vr(b+8+r,2)}')
        V(f'buffer_store_dwordx4 {vr(vP)}, v{vLane16}, {srd(sWS)}, s{sT} offen{sc}', 'pub')
        I('s_mov_b64 exec, 0xffff')
        V(f'buffer_store_dwordx4 {vr(vP+16)}, v{vLane16}, {srd(sWS)}, s{sT} offen offset:1024{sc}', 'pub')
        I('s_mov_b64 exec, 0xf')
        V(f'buffer_store_dwordx4 {vr(vP+32)}, v{vLane16}, {srd(sWS)}, s{sT2} offen{sc}', 'pub')
        I('s_mov_b64 exec, -1')
    def tag_issue():
        I(f'v_mov_b32 v{vT0}, 0')
        V(f'buffer_load_dwordx2 {vr(vTg,2)}, v{vT0}, {srd(sDb)}, 0 offen sc1', 'tag')
    def tag_check():
        wait_for('tag')
        I(f'v_readfirstlane_b32 s{sTag}, v{vTg}')
        I(f'v_readfirstlane_b32 s{sTag+1}, v{vTg+1}')
        I(f's_cmp_lg_u32 s{sTag}, 0')
        I(f's_cbranch_scc1 {name}_tagok')
        tag_get(a, f'{name}_tg', sDb, sTag, vTg, vT0, sT)
        a.label(f'{name}_tagok')
        I(f'v_mov_b32 v{vTg}, s{sTag}')
        I(f'v_mov_b32 v{vTg+1}, s{sTag+1}')
        I(f'v_mov_b32 v{vT0}, 0')
        I(f'ds_write_b64 v{vT0}, {vr(vTg,2)} offset:{TG_LDS}')
    sIdx = 49
    def setflag(kind):
        I(f's_lshl_b32 s{sIdx}, s{sRB}, 4')
        I(f's_add_u32 s{sIdx}, s{sIdx}, s{sCG}')
        flag_set(a, sWS, sTag, kind, sIdx, vTg, vT0, sT)
    def poll_issue():
        I(f'v_and_b32 v{vT0}, 15, v0')
        I(f'v_lshlrev_b32 v{vT1}, 4, v{vT0}')
        I(f'v_add_u32 v{vT1}, s{sCG}, v{vT1}')
        I(f's_lshl_b32 s{sT}, s{sRB}, 4')
        I(f'v_add_u32 v{vT0}, s{sT}, v{vT0}')
        I(f'v_and_b32 v{vT2}, 16, v0')
        I(f'v_cmp_eq_u32 vcc, 0, v{vT2}')
        I(f'v_cndmask_b32 v{vFO}, v{vT0}, v{vT1}, vcc')
        I(f'v_lshlrev_b32 v{vFO}, 7, v{vFO}')
        I(f's_mov_b32 s{sT}, {FL_OFF}')
        V(f'buffer_load_dwordx2 {vr(vP,2)}, v{vFO}, {srd(sWS)}, s{sT} offen sc1', 'poll')
    def poll_check_and_load():
        wait_for('poll')
        I(f'v_xor_b32 v{vP}, s{sTag}, v{vP}')
        I(f'v_xor_b32 v{vP+1}, s{sTag+1}, v{vP+1}')
        I(f'v_or_b32 v{vP}, v{vP}, v{vP+1}')
        I(f'v_cmp_ne_u32 vcc, 0, v{vP}')
        I(f's_cbranch_vccz {name}_stok')
        flag_wait(a, f'{name}_stw', sWS, sTag, 0, 1, vFO, vP, sT2, sT)
        a.label(f'{name}_stok')
        I(f'v_lshrrev_b32 v{vT0}, 4, v0')
        I(f'v_mul_u32_u24 v{vT0}, {1280-256}, v{vT0}')
        I(f'v_add_u32 v{vT0}, v{vT0}, v{vLane16}')
        I(f's_mul_i32 s{sT}, s{sCG}, {16*1280}')
        I(f's_add_u32 s{sT}, s{sT}, {CSQ_OFF}')
        I(f's_lshl_b32 s{sT2}, s{sL}, 8')
        I(f's_add_u32 s{sT2}, s{sT2}, s{sT}')
        for i in range(4):
            V(f'buffer_load_dwordx4 {vr(vP+4*i)}, v{vT0}, {srd(sWS)}, s{sT2} offen sc1', 'cs')
            V(f'buffer_load_dwordx4 {vr(vP+16+4*i)}, v{vT0}, {srd(sWS)}, s{sT} offen offset:1024 sc1', 'cs')
            if i < 3:
                I(f's_add_u32 s{sT}, s{sT}, {4*1280}')
                I(f's_add_u32 s{sT2}, s{sT2}, {4*1280}')
        I(f's_lshl_b32 s{sT}, s{sRB}, 10')
        I(f's_add_u32 s{sT}, s{sT}, {RSQ_OFF}')
        V(f'buffer_load_dwordx4 {vr(vP+32)}, v{vLane16}, {srd(sWS)}, s{sT} offen sc1', 'cs')
    def tables():
        wait_for('cs')
        for h in range(2):
            b = vP + 16 * h
            for r in range(0, 4, 2):
                I(f'v_pk_add_f32 {vr(b+r,2)}, {vr(b+r,2)}, {vr(b+4+r,2)}')
                I(f'v_pk_add_f32 {vr(b+8+r,2)}, {vr(b+8+r,2)}, {vr(b+12+r,2)}')
                I(f'v_pk_add_f32 {vr(b+r,2)}, {vr(b+r,2)}, {vr(b+8+r,2)}')
        for sw in ('v_permlane16_swap_b32', 'v_permlane32_swap_b32'):
            for h in range(2):
                for r in range(4):
                    I(f'v_mov_b32 v{vP+16*h+4+r}, v{vP+16*h+r}')
            for h in range(2):
                for r in range(4):
                    I(f'{sw} v{vP+16*h+4+r}, v{vP+16*h+r}')
            for h in range(2):
                for r in range(4):
                    I(f'v_add_f32 v{vP+16*h+r}, v{vP+16*h+r}, v{vP+16*h+4+r}')
        I(f'v_and_b32 v{vT0}, 15, v0')
        I(f'v_lshlrev_b32 v{vT0}, 4, v{vT0}')
        I(f's_lshl_b32 s{sT}, s{sL}, 8')
        I(f'v_add_u32 v{vT1}, s{sT}, v{vT0}')
        I(f'ds_write_b128 v{vT1}, {vr(vP)} offset:{CS_LDS}')
        I(f'ds_write_b128 v{vT0}, {vr(vP+16)} offset:{CS_LDS+1024}')
        I(f'v_lshlrev_b32 v{vT0}, 3, v0')
        I(f'v_mov_b32 v{vP+36}, v{vP+33}')
        I(f'v_mov_b32 v{vP+33}, v{vP+34}')
        I(f'v_mov_b32 v{vP+37}, v{vP+35}')
        I(f'ds_write_b64 v{vT0}, {vr(vP+32,2)} offset:{NM_LDS}')
        I(f'ds_write_b64 v{vT0}, {vr(vP+36,2)} offset:{RR_LDS}')
    def wf_issue():
        I(f's_load_dwordx2 s[68:69], s[0:1], {KA_WO}')
        I(f's_load_dwordx2 s[72:73], s[0:1], {KA_WD}')
        I(f's_lshl_b32 s{sRU}, s2, 2')
        I(f's_add_u32 s{sRU}, s{sRU}, s{sL}')
        I(f's_mul_i32 s{sRK}, s{sRU}, 13108')
        I(f's_lshr_b32 s{sRK}, s{sRK}, 16')
        I(f's_mul_i32 s{sT}, s{sRK}, 5')
        I(f's_sub_u32 s{sRC}, s{sRU}, s{sT}')
        I(f'v_lshrrev_b32 v{vT0}, 4, v0')
        I(f'v_mul_u32_u24 v{vT0}, {1280-256}, v{vT0}')
        I(f'v_add_u32 v{vT0}, v{vT0}, v{vLane16}')
        I(f's_mul_i32 s{sT}, s{sRK}, 13108')
        I(f's_lshr_b32 s{sT}, s{sT}, 16')
        I(f's_mul_i32 s{sT2}, s{sT}, 5')
        I(f's_sub_u32 s{sT2}, s{sRK}, s{sT2}')
        I(f's_mul_i32 s{sT}, s{sT}, 80')
        I(f's_mul_i32 s74, s{sT2}, 20')
        I(f's_add_u32 s74, s74, s{sT}')
        I(f's_add_u32 s{sT}, s{sT}, 16')
        I(f's_cmp_eq_u32 s{sT2}, 4')
        I(f's_cselect_b32 s74, s{sT}, s74')
        I(f's_cselect_b32 s43, 1, 0')
        I(f's_sub_u32 s{sT}, s{sRK}, 40')
        I(f's_lshl_b32 s{sT}, s{sT}, 4')
        I(f's_mov_b32 s70, {D*D*2}')
        I(f's_mov_b32 s71, 0x20000')
        I('s_waitcnt lgkmcnt(0)')
        I(f's_cmp_ge_u32 s{sRK}, 40')
        I(f's_cselect_b32 s68, s72, s68')
        I(f's_cselect_b32 s69, s73, s69')
        I(f's_cselect_b32 s70, {F*D*2}, s70')
        I(f's_cselect_b32 s74, s{sT}, s74')
        I(f's_cselect_b32 s43, 0, s43')
        I(f's_cmp_ge_u32 s{sRU}, 680')
        I(f's_cselect_b32 s70, 0, s70')
        I(f's_mul_i32 s74, s74, 1280')
        I(f's_lshl_b32 s{sT2}, s{sRC}, 8')
        I(f's_add_u32 s74, s74, s{sT2}')
        I(f's_lshl_b32 s67, s{sL}, 12')
        I(f's_add_u32 s67, s67, {R_LDS}')
        for j in range(4):
            I(f's_mov_b32 s{sT}, {4*j*1280}')
            I(f's_cmp_eq_u32 s43, 1')
            I(f's_cselect_b32 s{sT}, {20*[0,2,1,3][j]*1280}, s{sT}')
            I(f's_add_u32 s{sT}, s{sT}, s74')
            I(f's_add_u32 m0, s67, {1024*j}')
            I(f's_nop 0')
            V(f'buffer_load_dwordx4 v{vT0}, s[68:71], s{sT} offen lds', 'wf')
    def wf_store():
        wait_for('wf')
        I(f'v_bfe_u32 v{vT0}, v0, 2, 2')
        I(f'v_lshl_add_u32 v{vT0}, v{vHk}, 2, v{vT0}')
        I(f'v_lshlrev_b32 v{vT0}, 8, v{vT0}')
        I(f'v_bfe_u32 v{vT1}, v0, 4, 1')
        I(f'v_lshl_add_u32 v{vT0}, v{vT1}, 5, v{vT0}')
        I(f'v_and_b32 v{vT1}, 3, v0')
        I(f'v_lshl_add_u32 v{vT0}, v{vT1}, 3, v{vT0}')
        I(f'v_add_u32 v{vT0}, s67, v{vT0}')
        for j in range(4):
            I(f'ds_read_b64_tr_b16 {vr(vWSH+4*j,2)}, v{vT0} offset:{64*j}')
            I(f'ds_read_b64_tr_b16 {vr(vWSH+4*j+2,2)}, v{vT0} offset:{64*j+2048}')
        I(f's_mul_i32 s{sT}, s{sRC}, {4*AREC}')
        I(f's_lshl_b32 s{sT2}, s{sRK}, 10')
        I(f's_add_u32 s{sT}, s{sT}, s{sT2}')
        I(f's_add_u32 s{sT}, s{sT}, {WF_OFF}')
        I(f's_cmp_ge_u32 s{sRU}, 680')
        I(f's_cselect_b32 s{sWS+2}, 0, s{sWS+2}')
        for j in range(4):
            I(f's_waitcnt lgkmcnt({6-2*j})')
            V(f'buffer_store_dwordx4 {vr(vWSH+4*j)}, v{vLane16}, {srd(sWS)}, s{sT} offen{sc}', 'wfs')
            I(f's_add_u32 s{sT}, s{sT}, {AREC}')
        I(f's_mov_b32 s{sWS+2}, {WS_END}')
    def const_lines():
        I(f's_cmp_lg_u32 s{sL}, 1')
        I(f's_cbranch_scc1 {name}_ncl')
        I(f'v_lshrrev_b32 v{vT0}, 3, v0')
        I(f'v_mul_u32_u24 v{vT0}, {KVREC-128}, v{vT0}')
        I(f'v_add_u32 v{vT0}, v{vT0}, v{vLane16}')
        I(f'v_and_b32 v{vT1}, 7, v0')
        I(f'v_cmp_eq_u32 vcc, 0, v{vT1}')
        I(f'v_mov_b32 v{vT1}, 0x3f803f80')
        for r in range(4):
            I(f'v_cndmask_b32 v{vP+r}, 0, v{vT1}, vcc')
        I(f's_mul_i32 s{sT}, s2, {8*KVREC}')
        I(f's_add_u32 s{sT}, s{sT}, {KV_OFF + 2560}')
        I(f'buffer_store_dwordx4 {vr(vP)}, v{vT0}, {srd(sWS)}, s{sT} offen{sc}')
        a.label(f'{name}_ncl')
    def pubflag():
        I('s_waitcnt vmcnt(9)')
        setflag(0)
    if schedv == 0:
      sched = {
        1: [share_setup], 2: [w_share_issue, w_index], 4: [sl(xs_l, 0, 2, 'xs')], 5: [sl(xs_l, 1, 2), tag_check],
        6: [sl(ws_l, 0, 4, 'ws')], 7: [sl(ws_l, 1, 4)], 8: [sl(ws_l, 2, 4)], 9: [sl(ws_l, 3, 4), w_write],
        10: [lambda: only0(publish_store, f'{name}_o1')], 11: [wf_issue], 12: [const_lines],
        13: [lambda: only0(pubflag, f'{name}_o2')], 14: [wf_store], 16: [poll_issue], 17: [poll_check_and_load]}
    else:
      sched = {
        1: [share_setup, w_share_issue, w_index], 4: [sl(xs_l, 0, 1, 'xs'), tag_check, sl(ws_l, 0, 1, 'ws'), w_write],
        5: [lambda: only0(publish_store, f'{name}_o1'), const_lines, wf_issue],
        8: [lambda: only0(pubflag, f'{name}_o2')], 16: [wf_store, poll_issue], 18: [poll_check_and_load]}
    def trace(idx, v=250):
        if 'trace' not in dbg: return
        I('s_memtime s[76:77]')
        I(f's_lshl_b32 s78, s2, 3')
        I(f's_add_u32 s78, s78, s{sWave}')
        I(f's_lshl_b32 s78, s78, 8')
        I(f's_add_u32 s78, s78, {STAMP_OFF + 0x200000 + 4*idx}')
        I(f's_mov_b32 s{sWS+2}, 0x10000000')
        I('s_waitcnt lgkmcnt(0)')
        I(f's_sub_u32 s76, s76, s82')
        I(f'v_mov_b32 v{v}, s76')
        I(f'v_mov_b32 v{v+1}, 0')
        I('s_mov_b64 exec, 1')
        V(f'buffer_store_dword v{v}, v{v+1}, {srd(sWS)}, s78 offen', 'tr')
        I('s_mov_b64 exec, -1')
        I(f's_mov_b32 s{sWS+2}, {WS_END}')
    for j in range(20):
        for fn in sched.get(j, []):
            fn()
        wait_for(f'B{j+1}', f'X{(j+1)//2}', lgkm=True)
        I('s_barrier')
        trace(3 * j + 2)
        if j & 1 and (j + 3) // 2 < 10:
            dmaX((j + 3) // 2)
        if j + 4 < 20:
            dmaB(j + 4)
    st.mark()
    tables()
    I('s_waitcnt vmcnt(0) lgkmcnt(0)')
    I('s_barrier')
    I(f'v_lshlrev_b32 v{vFO}, 7, v0')
    I('s_barrier')
    I(f's_cmp_lg_u32 s{sL}, 0')
    I(f's_cbranch_scc1 {name}_nq')
    setflag(1)
    flag_wait(a, f'{name}_qw', sWS, sTag, 1, 4, vFO, vP, sT2, sT, sleep=fsleep)
    a.label(f'{name}_nq')
    I('s_barrier')
    I('s_setprio 0')
    I(f's_lshl_b32 s{sT}, s{sRB}, 2')
    I(f's_lshl_b32 s{sT2}, s{sRP}, 1')
    I(f's_add_u32 s{sT}, s{sT}, s{sT2}')
    I(f's_mul_i32 s{sT}, s{sT}, {AREC}')
    I(f's_mul_i32 s{sT2}, s{sCG}, 6144')
    I(f's_add_u32 s{sT}, s{sT}, s{sT2}')
    I(f's_mul_i32 s{sT2}, s{sG}, 3072')
    I(f's_add_u32 s{sT}, s{sT}, s{sT2}')
    I(f's_add_u32 s{sT}, s{sT}, {AF_OFF + 40*1024}')
    I(f's_add_u32 s43, s{sT}, {AREC}')
    I(f's_mul_i32 s{sT2}, s{sL}, 6144')
    I(f'v_add_u32 v{vT0}, s{sT2}, v{vLane16}')
    for k in range(6):
        I(f'ds_read_b128 {vr(vWSH+4*k)}, v{vT0} offset:{B_LDS + 1024*k}')
    for k in range(6):
        t, i = divmod(k, 3)
        I(f's_waitcnt lgkmcnt({5-k})')
        I(f'buffer_store_dwordx4 {vr(vWSH+4*k)}, v{vLane16}, {srd(sWS)}, s{43 if t else sT} offen offset:{1024*i}{sc}')
    I('s_waitcnt vmcnt(0)')
    def lwait(lab, off, val, sleep):
        I(f's_branch {lab}_f')
        a.label(lab)
        I(f's_sleep {sleep}')
        a.label(lab + '_f')
        I(f'ds_read_b32 v{vP}, v{vFO+1} offset:{off}')
        I('s_waitcnt lgkmcnt(0)')
        I(f'v_readfirstlane_b32 s{sT}, v{vP}')
        I(f's_cmp_lt_u32 s{sT}, {val}')
        I(f's_cbranch_scc1 {lab}')
    I(f'v_mov_b32 v{vP}, 1')
    I('s_mov_b64 exec, 1')
    I(f'ds_add_u32 v{vFO+1}, v{vP} offset:{SY_LDS}')
    I('s_mov_b64 exec, -1')
    I(f's_cmp_lg_u32 s{sL}, 0')
    I(f's_cbranch_scc1 {name}_nh')
    lwait(f'{name}_hc', SY_LDS, 4, 16)
    setflag(2)
    flag_wait(a, f'{name}_hw', sWS, sTag, 2, 4, vFO, vP, sT2, sT, sleep=gs)
    I(f'v_mov_b32 v{vP}, 1')
    I(f'ds_write_b32 v{vFO+1}, v{vP} offset:{SY_LDS+4}')
    a.label(f'{name}_nh')
    lwait(f'{name}_go', SY_LDS + 4, 1, gs)
    if pre:
        I('s_and_b32 s6, s2, 7')
        I('s_lshr_b32 s7, s2, 3')
        I(f's_lshr_b32 s{sT}, s7, 3')
        I('s_and_b32 s4, s6, 1')
        I('s_lshl_b32 s4, s4, 2')
        I(f's_add_u32 s{sT}, s{sT}, s4')
        I(f's_cmp_ge_u32 s{sT}, 7')
        I(f's_cbranch_scc1 {name}_nopre')
        I('s_lshr_b32 s6, s6, 1')
        I('s_lshl_b32 s6, s6, 3')
        I('s_and_b32 s7, s7, 7')
        I('s_add_u32 s6, s6, s7')
        I(f's_mul_i32 s6, s6, {2*AREC}')
        I(f's_add_u32 s6, s6, {AF_OFF + 40*1024}')
        I(f's_mul_i32 s7, s{sT}, {3*AREC}')
        I(f's_add_u32 s7, s7, {WF_OFF + 40*1024}')
        I(f's_mov_b32 s{sWS+2}, {WF_END}')
        I(f's_lshl_b32 s4, s{sL}, 10')
        I(f'v_add_u32 v{vT1}, s4, v{vLane16}')
        I('s_mov_b32 s5, 0')
        a.label(f'{name}_pst')
        I(f's_cmp_lt_u32 s5, 2')
        I(f's_cselect_b32 s{sT2}, s6, s7')
        I(f's_cselect_b32 s6, s7, s6') if False else None
        for gidx in range(pre):
            I(f's_add_u32 m0, s4, {4096*gidx}')
            I(f's_add_u32 s{sT}, s{sT2}, {4096*gidx}')
            I(f'buffer_load_dwordx4 v{vT1}, {srd(sWS)}, s{sT} offen sc1 lds')
            I(f's_waitcnt vmcnt({pth})')
        I(f's_cmp_lt_u32 s5, 2')
        I(f's_cselect_b32 s{sT}, {AREC}, 0')
        I(f's_add_u32 s6, s6, s{sT}')
        I(f's_cmp_lt_u32 s5, 2')
        I(f's_cselect_b32 s{sT}, 0, {AREC}')
        I(f's_add_u32 s7, s7, s{sT}')
        I(f's_add_u32 s4, s4, {4096*pre}')
        I('s_add_u32 s5, s5, 1')
        I('s_cmp_lt_u32 s5, 5')
        I(f's_cbranch_scc1 {name}_pst')
        I('s_waitcnt vmcnt(0)')
        a.label(f'{name}_nopre')
    I('s_barrier')
    I(f's_branch {name}_end')
    a.label(f'{name}_comp')
    st.n = 0
    if 'fine' in dbg:
        for i in range(3): st.mark()
    if prio:
        I('s_setprio 1')
    I(f's_mov_b32 s{sWS+2}, {WS_END}')
    I(f's_mov_b32 s{sWS+3}, 0x20000')
    I(f's_mov_b32 s{sLo}, -1')
    I(f's_mov_b32 s{sLo+1}, 0')
    for r in range(160):
        I(f'v_mov_b32 v{ACC+r}, 0')
    I('s_waitcnt lgkmcnt(0)')
    if warm:
        I(f'v_mul_u32_u24 v{vT0}, 13108, v0')
        I(f'v_lshrrev_b32 v{vT0}, 16, v{vT0}')
        I(f'v_mul_u32_u24 v{vT1}, 5, v{vT0}')
        I(f'v_sub_u32 v{vT1}, v0, v{vT1}')
        I(f's_and_b32 s{sT}, s{sRB}, 7')
        I(f's_lshl_b32 s{sT}, s{sT}, 2')
        I(f's_lshl_b32 s{sT2}, s{sL}, 5')
        I(f's_add_u32 s{sT}, s{sT}, s{sT2}')
        I(f's_add_u32 s{sT}, s{sT}, 128')
        I(f'v_add_u32 v{vT0}, s{sT}, v{vT0}')
        I(f'v_mov_b32 v{vWA}, s6')
        I(f'v_mov_b32 v{vWA+1}, s7')
        I(f'v_mov_b32 v{vT2}, 3840')
        I(f's_cmp_ge_u32 s{sType}, 2')
        I(f's_cbranch_scc1 {name}_warm_qk')
        I(f's_min_u32 s{sT}, s{sCG}, 9')
        I(f's_lshl_b32 s{sT}, s{sT}, 7')
        I(f's_add_u32 s{sT}, s{sT}, 2560')
        I(f'v_mov_b32 v{vT3}, s{sT}')
        I(f's_lshl_b32 s{sT}, s{sCG}, 8')
        I(f'v_and_b32 v{26}, 1, v{vT1}')
        I(f'v_lshlrev_b32 v{26}, 7, v{26}')
        I(f'v_add_u32 v{26}, s{sT}, v{26}')
        I(f'v_cmp_gt_u32 vcc, 4, v{vT1}')
        I(f'v_mov_b32 v{27}, 3072')
        I(f'v_cndmask_b32 v{vT2}, v{vT2}, v{27}, vcc')
        I(f'v_cndmask_b32 v{vT3}, v{vT3}, v{26}, vcc')
        I(f'v_mov_b32 v{26}, s54'); I(f'v_mov_b32 v{27}, s55')
        I(f'v_cndmask_b32 v{vWA}, v{vWA}, v{26}, vcc')
        I(f'v_cndmask_b32 v{vWA+1}, v{vWA+1}, v{27}, vcc')
        I(f'v_cmp_gt_u32 vcc, 2, v{vT1}')
        I(f'v_mov_b32 v{26}, s52'); I(f'v_mov_b32 v{27}, s53')
        I(f'v_cndmask_b32 v{vWA}, v{vWA}, v{26}, vcc')
        I(f'v_cndmask_b32 v{vWA+1}, v{vWA+1}, v{27}, vcc')
        I(f's_branch {name}_warm_done')
        a.label(f'{name}_warm_qk')
        I(f's_sub_u32 s{sT}, s{sCG}, 12')
        I(f's_mul_i32 s{sT}, s{sT}, 640')
        I(f'v_lshlrev_b32 v{vT3}, 7, v{vT1}')
        I(f'v_add_u32 v{vT3}, s{sT}, v{vT3}')
        a.label(f'{name}_warm_done')
        I(f'v_mul_u32_u24 v{vT0}, v{vT0}, v{vT2}')
        I(f'v_add_u32 v{vT3}, v{vT3}, v{vT0}')
        I(f'v_lshlrev_b32 v{vWI}, 7, v{vT2}')
        I(f's_lshl_b32 s{sT}, s{sRB}, 7')
        I(f's_and_b32 s{sT2}, s{sCG}, 3')
        I(f's_lshl_b32 s{sT2}, s{sT2}, 5')
        I(f's_add_u32 s{sT}, s{sT}, s{sT2}')
        I(f's_lshl_b32 s{sT2}, s{sRP}, 4')
        I(f's_add_u32 s{sT}, s{sT}, s{sT2}')
        I(f's_mul_i32 s{sT}, s{sT}, 1280')
        I(f's_lshl_b32 s{sT2}, s{sG}, 7')
        I(f's_add_u32 s{sT}, s{sT}, s{sT2}')
        I(f's_add_u32 s{sT}, s{sT}, 256')
        I(f'v_and_b32 v{vT0}, 15, v0')
        I(f'v_mul_u32_u24 v{vT0}, 1280, v{vT0}')
        I(f'v_add_u32 v{vT0}, s{sT}, v{vT0}')
        I(f'v_mov_b32 v{26}, s4'); I(f'v_mov_b32 v{27}, s5'); I(f'v_mov_b32 v{28}, 256')
        I(f'v_cndmask_b32 v{vT3}, v{vT0}, v{vT3}, s[{sLo}:{sLo+1}]')
        I(f'v_cndmask_b32 v{vWA}, v{26}, v{vWA}, s[{sLo}:{sLo+1}]')
        I(f'v_cndmask_b32 v{vWA+1}, v{27}, v{vWA+1}, s[{sLo}:{sLo+1}]')
        I(f'v_cndmask_b32 v{vWI}, v{28}, v{vWI}, s[{sLo}:{sLo+1}]')
        I(f'v_add_co_u32 v{vWA}, vcc, v{vWA}, v{vT3}')
        I(f'v_addc_co_u32 v{vWA+1}, vcc, 0, v{vWA+1}, vcc')
        I(f's_mov_b32 s64, 0x000fffff')
        I(f's_mov_b32 s65, 0x0000ffff')
    for i in range(lin2):
        touch()
    if warm:
        for i in range(warm):
            touch()
    if 'fine' in dbg: st.mark()
    I('s_barrier')
    st.mark()

    def loop(typ):
        def rdW(fset, u, slot, sp):
            b = vWB[slot >> 1][min(u, 2)]
            rs = 256 if u < 2 else 192
            o = (slot & 1) * BSLOT + 16 * sp * rs + (32 * (u - 2) if u >= 2 else 0)
            return [f'ds_read_b64_tr_b16 {vr(Wf(fset,u),2)}, v{b} offset:{o}',
                    f'ds_read_b64_tr_b16 {vr(Wf(fset,u)+2,2)}, v{b} offset:{o+4*rs}']
        def rdX(fset, j, sp):
            return [f'ds_read_b128 {vr(XFR[fset][t])}, v{vXB[2*(j&1)+sp]} offset:{((j >> 1) & 1) * XSLOT + 4096 * t}' for t in range(2)]
        def mf(fset, u, t):
            acc = vr(Acc(t, u), 16)
            if typ == 'A' and u < 2:
                return f'v_mfma_f32_32x32x16_bf16 {acc}, {vr(XFR[fset][t])}, {vr(Wf(fset,u))}, {acc}'
            return f'v_mfma_f32_32x32x16_bf16 {acc}, {vr(Wf(fset,u))}, {vr(XFR[fset][t])}, {acc}'
        def emit_phase(mf_list, lst, f1, tail=()):
            for k in range(len(mf_list)):
                I(mf_list[k])
                if k < f1:
                    lo, hi = len(lst) * k // f1, len(lst) * (k + 1) // f1
                    for x in lst[lo:hi]:
                        if 'nord' not in dbg: I(x)
                if k == len(mf_list) - 2:
                    for x in tail: I(x)
        L = f'{name}_loop{typ}'
        for x in rdX(0, 0, 0): I(x)
        for u in range(5):
            for x in rdW(0, u, 0, 0): I(x)
        I('s_waitcnt lgkmcnt(0)')
        a.I('.p2align 3')
        a.label(L)
        order = [(u, t) for u in range(5) for t in range(2)]
        for j in range(4):
            if repf and j == 2:
                I(f's_cmp_lg_u32 s{sCnt}, 2')
                I(f's_cbranch_scc1 {L}_np')
                code_prefetch(a, f'{name}_post', f'{name}_end', sL, 4, vLane16, vPF, 56, sT, 24)
                a.label(f'{L}_np')
            if (warm or lin) and j == wj and (warm or lin + lin2 < 4):
                I(f's_cmp_le_u32 s{sCnt}, {1 + (warm if warm else lin + lin2)}')
                I(f's_cbranch_scc1 {L}_nt')
                touch()
                a.label(f'{L}_nt')
            lds = rdX(1, j, 1)
            for u in range(5):
                lds += rdW(1, u, j, 1)
            emit_phase([mf(0, u, t) for u, t in order], lds, 6, ['s_waitcnt lgkmcnt(0)'])
            I('s_barrier')
            jn = (j + 1) & 3
            lds = rdX(0, jn, 0)
            for u in range(5):
                lds += rdW(0, u, jn, 0)
            tail = ['s_waitcnt lgkmcnt(0)']
            if j == 3:
                tail += [f's_sub_u32 s{sCnt}, s{sCnt}, 1', f's_cmp_lg_u32 s{sCnt}, 0']
            emit_phase([mf(1, u, t) for u, t in order], lds, 6, tail)
        I(f's_cbranch_scc1 {L}')
    I(f's_cmp_lg_u32 s{sSec}, 2')
    I(f's_cbranch_scc1 {name}_mainQ')
    loop('A')
    I(f's_branch {name}_post')
    a.label(f'{name}_mainQ')
    loop('Q')
    a.label(f'{name}_post')
    st.mark()
    vE = 26
    sc = stmod
    def Acc1(t, i): return Acc(t, i)
    def Acc2(t, i): return Acc(t, 2 + i)
    def HP(t, i): return 164 + 12 * t + 4 * i
    vNM, vR = [vE, vE + 2], [vE + 4, vE + 6]
    CSR = vE + 8
    sGT = [52, 53]
    def common_tables():
        I(f'v_lshlrev_b32 v{vT1}, 2, v{vTok}')
        I(f's_lshl_b32 s{sT}, s{sRP}, 8')
        I(f'v_add_u32 v{vT3}, s{sT}, v{vT1}')
        for t in range(2):
            I(f'ds_read_b32 v{vNM[t]}, v{vT3} offset:{NM_LDS+128*t}')
            I(f'ds_read_b32 v{vR[t]}, v{vT3} offset:{RR_LDS+128*t}')
        I(f's_lshl_b32 s{sT}, s{sRB}, 2')
        I(f's_lshl_b32 s{sGT[0]}, s{sRP}, 1')
        I(f's_add_u32 s{sGT[0]}, s{sGT[0]}, s{sT}')
        I(f's_add_u32 s{sGT[1]}, s{sGT[0]}, 1')
    def fix(A, t, cs):
        for r in range(0, 16, 2):
            I(f'v_pk_fma_f32 {vr(A+r,2)}, {vr(cs+r,2)}, {vr(vNM[t],2)}, {vr(A+r,2)} op_sel_hi:[1,0,1]')
    I('s_barrier')
    if 'cdiag' in dbg: st.mark()
    common_tables()
    I(f'v_mov_b32 v{vT0}, 0')
    I(f'ds_read_b64 {vr(vU,2)}, v{vT0} offset:{TG_LDS}')
    I(f's_cmp_eq_u32 s{sSec}, 3')
    I(f's_cbranch_scc1 {name}_e1x')
    I(f's_cmp_eq_u32 s{sSec}, 2')
    I(f's_cbranch_scc1 {name}_e1v')
    sREC, sHS, sI0 = 54, 55, 56
    sBase = [58, 59]
    I(f's_lshl_b32 s{sT}, s{sG}, 8')
    I(f'v_lshlrev_b32 v{vT0}, 4, v{vHk}')
    I(f'v_add_u32 v{vT2}, s{sT}, v{vT0}')
    for rq in range(4):
        I(f'ds_read_b128 {vr(CSR+4*rq)}, v{vT2} offset:{CS_LDS+32*rq}')
    I(f's_cmp_eq_u32 s{sSec}, 1')
    I(f's_movk_i32 s{sREC}, {QREC}')
    I(f's_cselect_b32 s{sREC}, {KVREC}, s{sREC}')
    I(f's_cselect_b32 s{sT2}, {KV_OFF}, {QF_OFF}')
    I(f's_cselect_b32 s57, 1.0, 0x{f2u(QSCALE):08x}')
    I(f's_lshl_b32 s{sHS}, s{sREC}, 6')
    for t in range(2):
        I(f's_mul_i32 s{sBase[t]}, s{sGT[t]}, s{sREC}')
        I(f's_add_u32 s{sBase[t]}, s{sBase[t]}, s{sT2}')
    I(f's_lshl_b32 s{sI0}, s{sSub}, 4')
    I(f's_lshl_b32 s{sT}, s{sG}, 3')
    I(f's_add_u32 s{sI0}, s{sI0}, s{sT}')
    vFull, vSplit, vRS = 20, 21, [58, 58]
    I(f'v_mul_lo_u32 v{vT1}, v{vHk}, s{sREC}')
    I(f'v_lshl_add_u32 v{vFull}, v{vTok}, 4, v{vT1}')
    I(f'v_mul_lo_u32 v{vT1}, v{vHk}, s{sHS}')
    I(f'v_lshl_add_u32 v{vSplit}, v{vTok}, 3, v{vT1}')
    for i in range(2):
        I('s_waitcnt lgkmcnt(0)')
        for t in range(2):
            fix(Acc1(t, i), t, CSR)
        if i == 0:
            for rq in range(4):
                I(f'ds_read_b128 {vr(CSR+4*rq)}, v{vT2} offset:{CS_LDS+128+32*rq}')
        for t in range(2):
            I(f'v_mul_f32 v{vRS[t]}, s57, v{vR[t]}')
            A = Acc1(t, i)
            for r in range(0, 16, 2):
                I(f'v_pk_mul_f32 {vr(A+r,2)}, {vr(A+r,2)}, {vr(vRS[t],2)} op_sel_hi:[1,0]')
        A0, B0 = Acc1(0, i), Acc1(1, i)
        for rq in range(4):
            I(f'v_cvt_pk_bf16_f32 v{A0+4*rq}, v{A0+4*rq}, v{A0+4*rq+1}')
            I(f'v_cvt_pk_bf16_f32 v{A0+4*rq+1}, v{A0+4*rq+2}, v{A0+4*rq+3}')
            I(f'v_cvt_pk_bf16_f32 v{A0+4*rq+2}, v{B0+4*rq}, v{B0+4*rq+1}')
            I(f'v_cvt_pk_bf16_f32 v{A0+4*rq+3}, v{B0+4*rq+2}, v{B0+4*rq+3}')
        for rq in range(4):
            for t in range(2):
                I(f'v_dot2_f32_bf16 v{B0+2*rq+t}, v{A0+4*rq+2*t}, v{A0+4*rq+2*t}, 0')
        for rq in range(4):
            for t in range(2):
                I(f'v_dot2c_f32_bf16 v{B0+2*rq+t}, v{A0+4*rq+2*t+1}, v{A0+4*rq+2*t+1}')
        for rq in range(4):
            Q = A0 + 4 * rq
            L1, L2 = f'{name}_sp{i}{rq}', f'{name}_it{i}{rq}'
            I(f's_add_u32 s{sT}, s{sI0}, {4*i+rq}')
            I(f's_mul_i32 s{sT2}, s{sT}, 13108')
            I(f's_lshr_b32 s{sT2}, s{sT2}, 16')
            I(f's_mul_i32 s46, s{sT2}, 5')
            I(f's_sub_u32 s{sT}, s{sT}, s46')
            I(f's_lshl_b32 s{sT2}, s{sT2}, 1')
            I(f's_mul_i32 s46, s{sT2}, s{sHS}')
            I(f's_cmp_eq_u32 s{sT}, 2')
            I(f's_cbranch_scc1 {L1}')
            I(f'v_permlane32_swap_b32 v{Q}, v{Q+2}')
            I(f'v_permlane32_swap_b32 v{Q+1}, v{Q+3}')
            I(f's_sub_u32 s47, s{sHS}, 1536')
            I(f's_cmp_ge_u32 s{sT}, 3')
            I(f's_cselect_b32 s47, s47, 0')
            I(f's_lshl_b32 s{sT}, s{sT}, 9')
            I(f's_add_u32 s46, s46, s47')
            I(f's_add_u32 s46, s46, s{sT}')
            I(f's_add_u32 s46, s46, s{sBase[0]}')
            I(f'buffer_store_dwordx4 {vr(Q)}, v{vFull}, {srd(sWS)}, s46 offen{sc}')
            I(f's_branch {L2}')
            a.label(L1)
            for t in range(2):
                I(f's_add_u32 s47, s46, s{sBase[t]}')
                I(f'buffer_store_dwordx2 {vr(Q+2*t,2)}, v{vSplit}, {srd(sWS)}, s47 offen offset:1024{sc}')
            a.label(L2)
    I(f's_cmp_eq_u32 s{sSec}, 0')
    I(f's_cbranch_scc1 {name}_e1x')
    def KN(v): return Acc1(1, (v >> 2) & 1) + 2 * (v & 3) + (v >> 3)
    def K2(v): return KN(v) + 8
    I(f'v_and_b32 v{vT0}, 1, v0')
    I(f'v_cmp_eq_u32 s[46:47], 0, v{vT0}')
    I(f'v_and_b32 v{vT0}, 2, v0')
    I(f'v_cmp_eq_u32 s[48:49], 0, v{vT0}')
    for n, msk, dp in ((8, 's[46:47]', 'quad_perm:[1,0,3,2]'), (4, 's[48:49]', 'quad_perm:[2,3,0,1]')):
        for k in range(n):
            I(f'v_cndmask_b32 v{K2(k)}, v{KN(k)}, v{KN(k+n)}, {msk}')
            I(f'v_cndmask_b32 v{KN(k)}, v{KN(k+n)}, v{KN(k)}, {msk}')
        for k in range(n):
            I(f'v_max_f32_dpp v{KN(k)}, v{K2(k)}, v{KN(k)} {dp} row_mask:0xf bank_mask:0xf')
    for dp in ('row_ror:4', 'row_ror:8'):
        for k in range(4):
            I(f'v_max_f32_dpp v{KN(k)}, v{KN(k)}, v{KN(k)} {dp} row_mask:0xf bank_mask:0xf')
    for k in range(4):
        I(f'v_mov_b32 v{K2(k)}, v{KN(k)}')
    for k in range(4):
        I(f'v_permlane16_swap_b32 v{K2(k)}, v{KN(k)}')
    for k in range(4):
        I(f'v_max_f32 v{KN(k)}, v{KN(k)}, v{K2(k)}')
    I(f'v_lshrrev_b32 v{vT0}, 2, v{vTok}')
    for k in range(1, 4):
        I(f'v_cmp_eq_u32 vcc, {k}, v{vT0}')
        I(f'v_cndmask_b32 v{KN(0)}, v{KN(0)}, v{KN(k)}, vcc')
    I(f'v_bfe_u32 v{vT1}, v{vTok}, 1, 1')
    I(f'v_lshl_add_u32 v{vT0}, v{vT1}, 2, v{vT0}')
    I(f'v_add_u32 v{vT0}, s{sI0}, v{vT0}')
    I(f'v_lshl_add_u32 v{vT0}, v{vT0}, 1, v{vHk}')
    I(f'v_lshlrev_b32 v{vT0}, 8, v{vT0}')
    I(f'v_and_b32 v{vT1}, 1, v{vTok}')
    I(f'v_lshl_add_u32 v{vT0}, v{vT1}, 2, v{vT0}')
    I(f's_lshl_b32 s{sT}, s{sGT[0]}, 2')
    I(f's_add_u32 s{sT}, s{sT}, {KN_OFF}')
    I('s_mov_b32 exec_lo, 0xffff')
    I('s_mov_b32 exec_hi, 0xffff')
    I(f'buffer_store_dword v{KN(0)}, v{vT0}, {srd(sWS)}, s{sT} offen{sc}')
    I('s_mov_b64 exec, -1')
    I(f's_branch {name}_e1x')
    a.label(f'{name}_e1v')
    I(f's_lshl_b32 s{sT}, s{sG}, 8')
    I(f'v_add_u32 v{vT1}, s{sT}, v{vT1}')
    vCSV = [58, 60]
    for i in range(2):
        I(f'ds_read_b32 v{vCSV[i]}, v{vT1} offset:{CS_LDS+128*i}')
    I(f'v_lshlrev_b32 v{vT1}, 4, v{vHk}')
    I(f's_lshl_b32 s{sT}, s{sRP}, 8')
    I(f'v_add_u32 v{vT2}, s{sT}, v{vT1}')
    vVA = [20, 21]
    for i in range(2):
        I(f's_lshl_b32 s{sT}, s{sSub}, 7')
        I(f's_lshl_b32 s{sT2}, s{sG}, 6')
        I(f's_add_u32 s{sT}, s{sT}, s{sT2}')
        I(f's_add_u32 s{sT}, s{sT}, {32*i}')
        I(f'v_add_u32 v{vT0}, s{sT}, v{vTok}')
        I(f'v_mul_u32_u24 v{vT1}, 3277, v{vT0}')
        I(f'v_lshrrev_b32 v{vT1}, 16, v{vT1}')
        I(f'v_mul_u32_u24 v{vT3}, 20, v{vT1}')
        I(f'v_sub_u32 v{vT0}, v{vT0}, v{vT3}')
        I(f's_mov_b32 s{sT}, {NT*KVREC}')
        I(f'v_mul_lo_u32 v{vT1}, v{vT1}, s{sT}')
        I(f'v_mul_u32_u24 v{vT3}, 320, v{vHk}')
        I(f'v_lshl_add_u32 v{vT3}, v{vT0}, 4, v{vT3}')
        I(f'v_add_u32 v{vVA[i]}, v{vT3}, v{vT1}')
    for t in range(2):
        I(f's_mul_i32 s{58+t}, s{sGT[t]}, {KVREC}')
        I(f's_add_u32 s{58+t}, s{58+t}, {KV_OFF}')
    for t in range(2):
        for half, tab in ((0, NM_LDS), (1, RR_LDS)):
            for rq in range(4):
                I(f'ds_read_b128 {vr(CSR+4*rq)}, v{vT2} offset:{tab+128*t+32*rq}')
            I('s_waitcnt lgkmcnt(0)')
            for i in range(2):
                A = Acc1(t, i)
                for r in range(0, 16, 2):
                    if half == 0:
                        I(f'v_pk_fma_f32 {vr(A+r,2)}, {vr(CSR+r,2)}, {vr(vCSV[i],2)}, {vr(A+r,2)} op_sel_hi:[1,0,1]')
                    else:
                        I(f'v_pk_mul_f32 {vr(A+r,2)}, {vr(A+r,2)}, {vr(CSR+r,2)}')
        for i in range(2):
            A = Acc1(t, i)
            for r in range(8):
                I(f'v_cvt_pk_bf16_f32 v{A+r}, v{A+2*r}, v{A+2*r+1}')
            I(f'buffer_store_dwordx4 {vr(A)}, v{vVA[i]}, {srd(sWS)}, s{58+t} offen offset:1280{sc}')
            I(f'buffer_store_dwordx4 {vr(A+4)}, v{vVA[i]}, {srd(sWS)}, s{58+t} offen offset:1920{sc}')
    a.label(f'{name}_e1x')
    I('s_waitcnt lgkmcnt(0)')
    I(f'v_readfirstlane_b32 s{sTag}, v{vU}')
    I(f'v_readfirstlane_b32 s{sTag+1}, v{vU+1}')
    I(f's_mul_i32 s{sT}, s{sG}, 384')
    I(f'v_lshlrev_b32 v{vT0}, 4, v{vHk}')
    I(f'v_add_u32 v{vT2}, s{sT}, v{vT0}')
    CS2 = [34, 50, 66]
    for i in range(3):
        for rq in range(4):
            I(f'ds_read_b128 {vr(CS2[i]+4*rq)}, v{vT2} offset:{CS_LDS+512+128*i+32*rq}')
    for t in range(2):
        I(f's_mul_i32 s{58+t}, s{sGT[t]}, {AREC}')
    I(f's_mul_i32 s{sT}, s{sCG}, 6144')
    I(f's_mul_i32 s{sT2}, s{sG}, 3072')
    I(f's_add_u32 s{sT}, s{sT}, s{sT2}')
    I(f's_add_u32 s{sT}, s{sT}, {AF_OFF + 40*1024}')
    for t in range(2):
        I(f's_add_u32 s{58+t}, s{58+t}, s{sT}')
        I(f'v_mul_f32 v{vR[t]}, v{vR[t]}, v{vR[t]}')
    for i in range(3):
        I(f's_waitcnt lgkmcnt({8-4*i})')
        for t in range(2):
            A = Acc2(t, i)
            fix(A, t, CS2[i])
            for r in range(8):
                I(f'v_max_f32 v{A+r}, 0, v{A+r}')
            for r in range(0, 8, 2):
                I(f'v_pk_mul_f32 {vr(A+8+r,2)}, {vr(A+8+r,2)}, {vr(vR[t],2)} op_sel_hi:[1,0]')
            for r in range(0, 8, 2):
                I(f'v_pk_mul_f32 {vr(A+r,2)}, {vr(A+r,2)}, {vr(A+8+r,2)}')
            for r in range(4):
                I(f'v_cvt_pk_bf16_f32 v{HP(t,i)+r}, v{A+2*r}, v{A+2*r+1}')
    I(f's_mul_i32 s{sT}, s{sL}, 6144')
    I(f'v_add_u32 v{vT0}, s{sT}, v{vLane16}')
    for t in range(2):
        for i in range(3):
            I(f'ds_write_b128 v{vT0}, {vr(HP(t,i))} offset:{B_LDS + 3072*t + 1024*i}')
    if 'cdiag' in dbg: st.mark()
    I('s_waitcnt vmcnt(0) lgkmcnt(0)')
    if 'cdiag' in dbg: st.mark()
    I('s_barrier')
    I('s_barrier')
    if 'cdiag' in dbg:
        st.mark()
        st.end(sWave, 4, 5)
        st.on = False
    a.label(f'{name}_att')
    st.mark()
    I('s_setprio 0')
    bar = lambda: I('s_barrier')
    gen_attn(name + '_a', a=a, entry=False, stmod=stmod, ldmod=ldmod, endstamp=False, st=st, ids=False, NS=NS)
    I('s_barrier')
    gen_gemm3(name + '_o', a=a, fused=True, st=st, sTag=sTag, pre=pre)
    a.label(f'{name}_end')
    I('s_endpgm')
    return a
CODEKB = 20
```

```python
from asmlib import Asm
from layout import *
from stamp import Stamps
import struct

def f2u(f): return struct.unpack('<I', struct.pack('<f', f))[0]

def gen_attn(name, NS=4, stamps=False, kidx=1, a=None, entry=True, bar=False, stmod='', endstamp=True, pf=None, st=None, ldmod='', ids=True, trips=None, al=3, apad=0):
    if a is None:
        a = Asm()
    I = a.I
    own = st is None
    if own:
        st = Stamps(a, stamps, kidx)
    vLane16, vTok8, vV0, vV1, vTmp, vTmp2, vTok16 = 1, 2, 3, 4, 5, 6, 7
    vKb = 22
    QA = [8, 16]; QB = [12, 20]
    S_ = [24, 40]
    P_ = [56, 64]
    O_ = [72, 88]
    KV0 = 104
    def KA(s): return KV0 + 14 * s
    def V0(s): return KV0 + 14 * s + 4
    def V1(s): return KV0 + 14 * s + 8
    def KB(s): return KV0 + 14 * s + 12
    vEND = KV0 + 14 * NS
    vM = [vEND, vEND + 1]
    sWS = 8
    sHead, sQT, sKV, sCnt, sKV0, sKmax, sFlag, sT = 12, 13, 14, 16, 17, 18, 19, 20
    sLo = 24
    sQ = 26
    def vr(b, n=4): return f'v[{b}:{b+n-1}]'
    def mfma(d, x, y, c=None):
        cc = vr(d, 16) if c is None else c
        return f'v_mfma_f32_32x32x16_bf16 {vr(d,16)}, {vr(x)}, {vr(y)}, {cc}'
    def mfma8(d, x, y):
        return f'v_mfma_f32_32x32x8bf16_1k {vr(d,16)}, {vr(x,2)}, {vr(y,2)}, {vr(d,16)}'
    srd = f's[{sWS}:{sWS+3}]'
    sP = 28

    if entry:
        a.label(name)
        I('s_cmp_ge_u32 s2, 256')
        I(f's_cbranch_scc1 {name}_end')
    if own:
        st.start()
    I(f's_load_dwordx2 s[{sWS}:{sWS+1}], s[0:1], {KA_WS}')
    if ids:
        I(f'v_lshrrev_b32 v{vTmp}, 6, v0')
        I('v_and_b32 v0, 63, v0')
        I(f'v_readfirstlane_b32 s3, v{vTmp}')
    I(f's_and_b32 s6, s2, 7')
    I(f's_lshr_b32 s7, s2, 3')
    I(f's_lshr_b32 s{sHead}, s7, 3')
    I(f's_lshl_b32 s6, s6, 2')
    I(f's_add_u32 s{sHead}, s{sHead}, s6')
    I(f's_and_b32 s7, s7, 7')
    I(f's_lshl_b32 s{sQT}, s7, 3')
    I(f's_lshl_b32 s6, s3, 1')
    I(f's_add_u32 s{sQT}, s{sQT}, s6')
    I(f'v_lshlrev_b32 v{vLane16}, 4, v0')
    I(f'v_and_b32 v{vTmp}, 31, v0')
    I(f'v_lshlrev_b32 v{vTok8}, 3, v{vTmp}')
    I(f's_mul_i32 s{sKV0}, s{sHead}, {NT*KVREC}')
    I(f's_add_u32 s{sKV0}, s{sKV0}, {KV_OFF}')
    I(f's_lshl_b32 s{sQ}, s{sHead}, 6')
    I(f's_add_u32 s{sQ}, s{sQ}, s{sQT}')
    I(f's_mul_i32 s{sQ}, s{sQ}, {QREC}')
    I(f's_mul_i32 s{sT}, s{sHead}, {5*256}')
    I(f's_add_u32 s{sT}, s{sT}, {KN_OFF}')
    I(f'v_lshlrev_b32 v{vTmp2}, 2, v0')
    I(f's_mov_b32 s{sWS+2}, {WS_SIZE}')
    I(f's_mov_b32 s{sWS+3}, 0x20000')
    I(f'v_lshlrev_b32 v{vTok16}, 4, v{vTmp}')
    I('s_waitcnt lgkmcnt(0)')
    for q in range(2):
        I(f'buffer_load_dwordx4 {vr(QA[q])}, v{vLane16}, {srd}, s{sQ} offen offset:{q*QREC}{ldmod}')
        I(f'buffer_load_dwordx2 {vr(QB[q],2)}, v{vTok8}, {srd}, s{sQ} offen offset:{q*QREC+1024}{ldmod}')
    for g in range(5):
        I(f'buffer_load_dword v{S_[1]+g}, v{vTmp2}, {srd}, s{sT} offen offset:{g*256}{ldmod}')
    I(f'v_lshrrev_b32 v{vTmp2}, 5, v0')
    I(f'v_mul_u32_u24 v{vTmp2}, 320, v{vTmp2}')
    I(f'v_add_u32 v{vV0}, v{vTok16}, v{vTmp2}')
    I(f'v_and_b32 v{vTmp2}, 27, v0')
    I(f'v_cmp_eq_u32 vcc, 24, v{vTmp2}')
    I(f'v_mov_b32 v{vTmp2}, {1280+16}')
    I(f'v_mov_b32 v{vV1}, 1280')
    I(f'v_cndmask_b32 v{vTmp2}, v{vTmp2}, v{vV1}, vcc')
    I(f'v_cmp_gt_u32 vcc, 20, v{vTmp}')
    I(f'v_subrev_u32 v{vV1}, 640, v{vTmp2}')
    I(f'v_cndmask_b32 v{vV1}, v{vV1}, v{vV0}, vcc')
    I(f'v_cndmask_b32 v{vV0}, v{vTmp2}, v{vV0}, vcc')
    I(f's_mov_b32 s{sLo}, -1')
    I(f's_mov_b32 s{sLo+1}, 0')
    I(f's_mov_b32 s{sFlag}, 0')

    I(f'v_add_u32 v{vKb}, 1024, v{vTok8}')
    I(f'v_mov_b32 v{vTmp2}, 2560')
    I(f'v_cndmask_b32 v{vKb}, v{vTmp2}, v{vKb}, s[{sLo}:{sLo+1}]')
    sp = f's[{sP}:{sP+1}]'
    def ldKa(s, off): return f'global_load_dwordx4 {vr(KA(s))}, v{vLane16}, {sp} offset:{off}{ldmod}'
    def ldKb(s, off): return f'global_load_dwordx2 {vr(KB(s),2)}, v{vKb}, {sp if off == 0 else sp2}'
    def ldV0(s): return f'global_load_dwordx4 {vr(V0(s))}, v{vV0}, {sp} offset:1280{ldmod}'
    def ldV1(s): return f'global_load_dwordx4 {vr(V1(s))}, v{vV1}, {sp} offset:1920{ldmod}'
    sp2 = sp + f' offset:{KVREC - 1024}'
    I(f'v_subrev_u32 v{vKb}, 0, v{vKb}')
    def ldKb(s, off):
        return f'global_load_dwordx2 {vr(KB(s),2)}, v{vKb}, {sp} offset:{off}{ldmod}'
    adv = f's_add_u32 s{sP}, s{sP}, {KVREC}\ns_addc_u32 s{sP+1}, s{sP+1}, 0'
    setp = f's_add_u32 s{sP}, s{sWS}, s{sKV0}\ns_addc_u32 s{sP+1}, s{sWS+1}, 0'

    a.label(f'{name}_restart')
    I(setp)
    I(ldKa(0, 0)); I(ldKb(0, 0))
    for s in range(NS - 1):
        I(ldV0(s)); I(ldV1(s)); I(ldKa(s + 1, KVREC)); I(ldKb(s + 1, KVREC)); I(adv)
    nkv = 2 + 4 * (NS - 1)
    if pf:
        I(f's_cmp_lg_u32 s{sFlag}, 0')
        I(f's_cbranch_scc1 {name}_nopf')
        pf(a)
        a.label(f'{name}_nopf')
    for q in range(2):
        for r in range(16):
            I(f'v_mov_b32 v{O_[q]+r}, 0')
    I(f's_mov_b32 s{sCnt}, {NT // NS}')
    I(f's_cmp_lg_u32 s{sFlag}, 0')
    I(f's_cbranch_scc1 {name}_haveq')
    I(f's_waitcnt vmcnt({nkv})')
    kn = S_[1]
    I(f'v_add_f32 v{kn}, v{kn}, v{kn+1}')
    I(f'v_add_f32 v{kn+2}, v{kn+2}, v{kn+3}')
    I(f'v_add_f32 v{kn}, v{kn}, v{kn+4}')
    I(f'v_add_f32 v{kn}, v{kn}, v{kn+2}')
    T = [S_[0], S_[0] + 2]; U = [S_[0] + 1, S_[0] + 3]; W = [S_[0] + 4, S_[0] + 5]
    for q in range(2):
        I(f'v_mov_b32 v{T[q]}, 0')
        I(f'v_mov_b32 v{W[q]}, 0')
    dpps = ['quad_perm:[1,0,3,2]', 'quad_perm:[2,3,0,1]', 'row_half_mirror', 'row_mirror']
    for r in range(4):
        I(f'v_max_f32_dpp v{kn}, v{kn}, v{kn} {dpps[r]} row_mask:0xf bank_mask:0xf')
        for q in range(2):
            I(f'v_dot2c_f32_bf16 v{T[q]}, v{QA[q]+r}, v{QA[q]+r}')
    for r in range(2):
        for q in range(2):
            I(f'v_dot2c_f32_bf16 v{W[q]}, v{QB[q]+r}, v{QB[q]+r}')
    I(f'v_readlane_b32 s{sKmax}, v{kn}, 0')
    I(f'v_readlane_b32 s6, v{kn}, 16')
    I(f'v_readlane_b32 s7, v{kn}, 32')
    I(f'v_readlane_b32 s{sT}, v{kn}, 48')
    for q in range(2):
        I(f'v_mov_b32 v{U[q]}, v{T[q]}')
    I(f's_max_u32 s{sKmax}, s{sKmax}, s6')
    I(f's_max_u32 s7, s7, s{sT}')
    I(f's_max_u32 s{sKmax}, s{sKmax}, s7')
    for q in range(2):
        I(f'v_permlane32_swap_b32 v{U[q]}, v{T[q]}')
    for q in range(2):
        I(f'v_add_f32 v{T[q]}, v{T[q]}, v{U[q]}')
    for q in range(2):
        I(f'v_add_f32 v{T[q]}, v{T[q]}, v{W[q]}')
    for q in range(2):
        I(f'v_mul_f32 v{T[q]}, s{sKmax}, v{T[q]}')
    for q in range(2):
        I(f'v_sqrt_f32 v{T[q]}, v{T[q]}')
    for q in range(2):
        I(f'v_cndmask_b32 v{QB[q]+1}, 0, v{QB[q]+1}, s[{sLo}:{sLo+1}]')
    for q in range(2):
        I(f'v_mul_f32 v{T[q]}, 0x{f2u(-(1.0 + 2.0**-7)):08x}, v{T[q]}')
    for q in range(2):
        I(f'v_cvt_pk_bf16_f32 v{T[q]}, v{T[q]}, 0')
    for q in range(2):
        I(f'v_cndmask_b32 v{QB[q]}, v{T[q]}, v{QB[q]}, s[{sLo}:{sLo+1}]')
    a.label(f'{name}_haveq')
    I(f's_waitcnt vmcnt({nkv - 2})')
    I(mfma(S_[0], KA(0), QA[0], '0'))
    I(mfma8(S_[0], KB(0), QB[0]))
    if bar:
        I(f's_cmp_lg_u32 s{sFlag}, 0')
        I(f's_cbranch_scc1 {name}_nobar')
        I('s_barrier')
        a.label(f'{name}_nobar')
    st.mark()
    I('s_nop 9')
    I(f'v_exp_f32 v{S_[0]}, v{S_[0]}')
    I(f'v_exp_f32 v{S_[0]+1}, v{S_[0]+1}')
    a.I(f'.p2align {al}')
    for _ in range(apad):
        I('s_nop 0')
    a.label(f'{name}_loop')
    for trip, fn in (trips or {}).items():
        I(f's_lshl_b32 s6, s{sFlag}, 8')
        I(f's_add_u32 s6, s6, s{sCnt}')
        I(f's_cmp_lg_u32 s6, {NT // NS - trip}')
        I(f's_cbranch_scc1 {name}_nt{trip}')
        fn()
        a.label(f'{name}_nt{trip}')
    W1 = 4 * NS - 6
    for s in range(NS):
        for q in range(2):
            Sb, Pb = S_[q], P_[q]
            e = [f'v_exp_f32 v{Sb+r}, v{Sb+r}' for r in range(16)]
            c = [f'v_cvt_pk_bf16_f32 v{Pb+r}, v{Sb+2*r}, v{Sb+2*r+1}' for r in range(8)]
            nq = 1 - q
            ns = s if q == 0 else (s + 1) % NS
            M2 = mfma(S_[nq], KA(ns), QA[nq], '0')
            M3 = mfma8(S_[nq], KB(ns), QB[nq])
            M4 = mfma(O_[q], V0(s), Pb)
            M1n = mfma(O_[q], V1(s), Pb + 4)
            ps = (s - 1) % NS
            if q == 0:
                f1, f2, f3, f4 = ldV0(ps), ldV1(ps), f's_waitcnt vmcnt({W1})', None
            else:
                f1, f2, f3, f4 = ldKa(s, KVREC), ldKb(s, KVREC), None, adv
            if s == NS - 1 and q == 0:
                f4 = f's_sub_u32 s{sCnt}, s{sCnt}, 1'
            if s == NS - 1 and q == 1:
                f4 = adv + f'\ns_cmp_lg_u32 s{sCnt}, 0'
            if not (s == 0 and q == 0) or True:
                I(f1)
            for r in range(2, 6): I(e[r])
            I(M2); I(f2)
            I(e[6]); I(e[7])
            for r in range(4): I(c[r])
            I(M3)
            if f3: I(f3)
            for r in range(8, 12): I(e[r])
            I(M4)
            if f4: I(f4)
            for r in range(12, 16): I(e[r])
            for r in range(4, 8): I(c[r])
            I(f'v_exp_f32 v{S_[nq]}, v{S_[nq]}')
            I(f'v_exp_f32 v{S_[nq]+1}, v{S_[nq]+1}')
            I(M1n)
    I(f's_cbranch_scc1 {name}_loop')
    st.mark()
    I(f's_cmp_lg_u32 s{sFlag}, 0')
    I(f's_cbranch_scc1 {name}_store')
    I(f'v_mov_b32 v{vTmp}, 0x{f2u(2.0**-60):08x}')
    I(f'v_cmp_ge_f32 vcc, v{O_[0]+12}, v{vTmp}')
    I(f'v_cmp_ge_f32 s[6:7], v{O_[1]+12}, v{vTmp}')
    I('s_and_b64 s[6:7], s[6:7], vcc')
    I('s_cmp_eq_u64 s[6:7], -1')
    I(f's_cbranch_scc1 {name}_store')
    I('s_waitcnt vmcnt(0)')
    for q in range(2):
        I(f'v_cndmask_b32 v{QB[q]}, 0, v{QB[q]}, s[{sLo}:{sLo+1}]')
        I(f'v_cndmask_b32 v{QB[q]+1}, 0, v{QB[q]+1}, s[{sLo}:{sLo+1}]')
        I(f'v_mov_b32 v{vM[q]}, 0xff800000')
    I(setp)
    I(f's_mov_b32 s{sCnt}, {NT}')
    a.label(f'{name}_maxloop')
    I(ldKa(0, 0)); I(ldKb(0, 0)); I(adv)
    I('s_waitcnt vmcnt(0)')
    for q in range(2):
        I(mfma(S_[q], KA(0), QA[q], '0'))
        I(mfma8(S_[q], KB(0), QB[q]))
    for q in range(2):
        for r in range(0, 16, 2):
            I(f'v_max3_f32 v{vM[q]}, v{S_[q]+r}, v{S_[q]+r+1}, v{vM[q]}')
    I(f's_sub_u32 s{sCnt}, s{sCnt}, 1')
    I(f's_cmp_lg_u32 s{sCnt}, 0')
    I(f's_cbranch_scc1 {name}_maxloop')
    for q in range(2):
        m, t, u, w = vM[q], S_[0], S_[0] + 1, S_[0] + 2
        I(f'v_mov_b32 v{t}, v{m}')
        I(f'v_permlane32_swap_b32 v{t}, v{m}')
        I(f'v_max_f32 v{m}, v{m}, v{t}')
        I(f'v_sub_f32 v{m}, 0, v{m}')
        I(f'v_and_b32 v{t}, 0xffff0000, v{m}')
        I(f'v_sub_f32 v{m}, v{m}, v{t}')
        I(f'v_and_b32 v{u}, 0xffff0000, v{m}')
        I(f'v_sub_f32 v{m}, v{m}, v{u}')
        I(f'v_lshrrev_b32 v{t}, 16, v{t}')
        I(f'v_or_b32 v{t}, v{t}, v{u}')
        I(f'v_lshrrev_b32 v{w}, 16, v{m}')
        I(f'v_cndmask_b32 v{QB[q]}, v{t}, v{QB[q]}, s[{sLo}:{sLo+1}]')
        I(f'v_cndmask_b32 v{QB[q]+1}, v{w}, v{QB[q]+1}, s[{sLo}:{sLo+1}]')
    I(f's_mov_b32 s{sFlag}, 1')
    I(f's_branch {name}_restart')
    a.label(f'{name}_store')
    for q in range(2):
        I(f'v_rcp_f32 v{S_[1]+q}, v{O_[q]+12}')
    I(f's_lshr_b32 s6, s{sHead}, 2')
    I(f's_mul_i32 s6, s6, 5')
    I(f's_and_b32 s7, s{sHead}, 3')
    I(f's_add_u32 s{sT}, s6, s7')
    I(f's_lshl_b32 s{sT}, s{sT}, 10')
    I(f's_add_u32 s6, s6, 4')
    I(f's_lshl_b32 s6, s6, 10')
    I(f's_lshr_b32 s{sCnt}, s7, 1')
    I(f's_lshl_b32 s{sCnt}, s{sCnt}, 9')
    I(f's_add_u32 s6, s6, s{sCnt}')
    I(f's_and_b32 s7, s7, 1')
    I(f's_lshl_b32 s7, s7, 3')
    I(f's_add_u32 s6, s6, s7')
    I(f's_mul_i32 s7, s{sQT}, {AREC}')
    I(f's_add_u32 s7, s7, {AF_OFF}')
    I(f's_add_u32 s{sT}, s{sT}, s7')
    I(f's_add_u32 s6, s6, s7')
    I(f's_add_u32 s{sKmax}, s{sT}, {AREC}')
    I(f's_add_u32 s7, s6, {AREC}')
    for q in range(2):
        rl = S_[1] + q
        for r in range(12):
            I(f'v_mul_f32 v{O_[q]+r}, v{O_[q]+r}, v{rl}')
        for r in range(6):
            I(f'v_cvt_pk_bf16_f32 v{P_[q]+r}, v{O_[q]+2*r}, v{O_[q]+2*r+1}')
        I(f'buffer_store_dwordx4 {vr(P_[q])}, v{vLane16}, {srd}, s{sKmax if q else sT} offen{stmod}')
    I(f's_mov_b64 exec, s[{sLo}:{sLo+1}]')
    for q in range(2):
        I(f'buffer_store_dwordx2 {vr(P_[q]+4,2)}, v{vTok16}, {srd}, s{6+q} offen{stmod}')
    I('s_mov_b64 exec, -1')
    if endstamp:
        st.end(3, 4, 5)
    a.st = st
    if entry:
        a.label(f'{name}_end')
        I('s_endpgm')
    return a
```

```python
from asmlib import Asm
from layout import *
from stamp import Stamps
from common import *
from k_attn import gen_attn
from k_gemm3 import gen_gemm3
import struct
def f2u(f): return struct.unpack('<I', struct.pack('<f', f))[0]

BSLOT, XSLOT = 20512, 16384
GOFF, UOFF = 8192, 6144 + 32
NM_LDS = 0
RR_LDS = NM_LDS + 512
CS_LDS = RR_LDS + 512
TG_LDS = 2304
SY_LDS = 0
ST_LDS = 2320
CP_LDS = 2560
B_LDS = 8192
X_LDS = B_LDS + 4 * BSLOT
R_LDS = X_LDS + 2 * XSLOT
SYB = R_LDS + 16384
K1_LDS = SYB + 64

def gen_mega3(name, stamps=False, kidx=0, codepf=True, stmod=' sc1', prio=True, dbg='', warm=0, wj=0, lin=1, lin2=0, ldmod=' sc1', hdefer=True, lprio=2, ctr=False, repf=True, fsleep=4, t2=12, NS=4, pre=6, pth=1, gs=64, schedv=1, aprio=0, NR=3, f3w=True, al=3, apad=0, hth=True, hdel=0):
    a = Asm()
    I = a.I
    st = Stamps(a, stamps, kidx)
    def vr(b, n=4): return f'v[{b}:{b+n-1}]'
    vLane16, vT0, vT1, vT2, vT3, vTok, vHk = 1, 2, 3, 4, 5, 6, 7
    vU = 8
    vXB = [12, 13, 14, 15]
    vWB = [[16 + 3 * ss + i for i in range(3)] for ss in range(2)]
    WFR = [26, 46]
    XFR = [[66, 70], [74, 78 - 0]]
    XFR = [[66, 70], [74, 60 + 18]]
    ACC = 82
    vEP = 242
    def Acc(t, u): return ACC + 80 * t + 16 * u
    def Wf(s, u): return WFR[s] + 4 * u
    vD = [26, 27, 28, 29, 30]
    vDX = [31, 32, 33, 34]
    vSA = 36
    vSel = 40
    LW = 44
    LX = [64, 68]
    LCS = 72
    vPF = 248
    sWave, sRB, sCG, sG, sRP, sT, sT2, sL = 3, 28, 29, 30, 31, 33, 34, 32
    sX, sD0, sD1, sD2, sWS = 8, 12, 16, 20, 60
    sO0, sO2, sOX, sSt0, sCnt, sXi = 35, 37, 38, 39, 41, 42
    sLo = 44
    sMX = 47
    sType = 48
    sM = [36, 40, 46]
    def srd(s): return f's[{s}:{s+3}]'

    a.label(name)
    I('s_cmp_ge_u32 s2, 256')
    I(f's_cbranch_scc1 {name}_end')
    st.start()
    I(f's_load_dwordx4 s[4:7], s[0:1], {KA_X}')
    I(f's_load_dwordx4 s[52:55], s[0:1], {KA_WG}')
    I(f's_load_dwordx2 s[{sWS}:{sWS+1}], s[0:1], {KA_WS}')
    I(f's_load_dwordx2 s[24:25], s[0:1], {KA_DBG}')
    I(f'v_lshrrev_b32 v{vT0}, 6, v0')
    I(f'v_and_b32 v{vT3}, 255, v0')
    I('v_and_b32 v0, 63, v0')
    I(f'v_readfirstlane_b32 s{sWave}, v{vT0}')
    I(f'v_lshlrev_b32 v{vLane16}, 4, v0')
    I(f's_and_b32 s{sT}, s2, 7')
    I(f's_lshr_b32 s{sT2}, s2, 3')
    I(f's_and_b32 s{sRB}, s{sT}, 1')
    I(f's_lshl_b32 s{sRB}, s{sRB}, 3')
    I(f's_and_b32 s{sCG}, s{sT2}, 7')
    I(f's_add_u32 s{sRB}, s{sRB}, s{sCG}')
    I(f's_lshr_b32 s{sCG}, s{sT}, 1')
    I(f's_lshl_b32 s{sCG}, s{sCG}, 2')
    I(f's_lshr_b32 s{sT2}, s{sT2}, 3')
    I(f's_add_u32 s{sCG}, s{sCG}, s{sT2}')
    I(f's_and_b32 s{sL}, s{sWave}, 3')
    I(f's_lshr_b32 s{sG}, s{sL}, 1')
    I(f's_and_b32 s{sRP}, s{sL}, 1')
    I(f's_cmp_lt_u32 s{sWave}, 4')
    I(f's_cbranch_scc1 {name}_rd')
    I(f'v_lshrrev_b32 v{vT0}, 3, v0')
    I(f'v_lshrrev_b32 v{vT1}, 4, v0')
    I(f'v_xor_b32 v{vT1}, v{vT1}, v0')
    I(f'v_and_b32 v{vT1}, 7, v{vT1}')
    I(f'v_mul_u32_u24 v{vT0}, 1280, v{vT0}')
    I(f'v_lshl_add_u32 v{vDX[0]}, v{vT1}, 4, v{vT0}')
    I(f'v_xor_b32 v{vT1}, 4, v{vT1}')
    I(f'v_lshl_add_u32 v{vDX[1]}, v{vT1}, 4, v{vT0}')
    I(f'v_add_u32 v{vDX[2]}, {16*1280-2048}, v{vDX[0]}')
    I(f'v_add_u32 v{vDX[3]}, {24*1280-3072}, v{vDX[1]}')
    I(f'v_add_u32 v{vDX[1]}, {8*1280-1024}, v{vDX[1]}')
    I(f's_lshl_b32 s{sOX}, s{sRB}, 7')
    I(f's_lshl_b32 s{sT}, s{sL}, 5')
    I(f's_add_u32 s{sOX}, s{sOX}, s{sT}')
    I(f's_mul_i32 s{sOX}, s{sOX}, 1280')
    I(f's_lshl_b32 s{sMX}, s{sL}, 12')
    I(f's_add_u32 s{sMX}, s{sMX}, {X_LDS}')
    I(f's_mov_b32 s{sX+2}, {S*D*2}')
    for s in (sX, sD0, sD1, sD2):
        I(f's_mov_b32 s{s+3}, 0x20000')
    I(f's_mov_b32 s{sD2+2}, {D*3*D*2}')
    I(f's_mov_b32 s{sD0+2}, {D*F*2}')
    I(f's_mov_b32 s{sXi}, 0')
    I(f'v_lshrrev_b32 v{vT0}, 4, v0')
    I(f'v_lshlrev_b32 v{vT1}, 2, v{vT0}')
    I(f'v_xor_b32 v{vT1}, v{vT1}, v0')
    I(f'v_and_b32 v{vT1}, 15, v{vT1}')
    I(f'v_mul_u32_u24 v{vT0}, 3840, v{vT0}')
    I(f'v_lshl_add_u32 v{vD[0]}, v{vT1}, 4, v{vT0}')
    I(f'v_add_u32 v{vD[1]}, {4*3840-1024}, v{vD[0]}')
    for j in range(3):
        I(f'v_add_u32 v{vT0}, {64*j}, v0')
        I(f'v_mul_u32_u24 v{vT1}, 5462, v{vT0}')
        I(f'v_lshrrev_b32 v{vT1}, 16, v{vT1}')
        I(f'v_mul_u32_u24 v{vT1}, {3072-192}, v{vT1}')
        I(f'v_lshl_add_u32 v{vD[2+j]}, v{vT0}, 4, v{vT1}')
        if j:
            I(f'v_subrev_u32 v{vD[2+j]}, {1024*j}, v{vD[2+j]}')
    I(f's_mul_i32 s{sO2}, s{sL}, {8*3840}')
    I(f's_lshl_b32 s{sT}, s{sCG}, 8')
    I(f's_add_u32 s{sO2}, s{sO2}, s{sT}')
    I(f's_mul_i32 s{sO0}, s{sRP}, {16*3072}')
    I(f's_mul_i32 s{sT}, s{sCG}, 192')
    I(f's_add_u32 s{sO0}, s{sO0}, s{sT}')
    I(f's_lshl_b32 s{sM[0]}, s{sL}, 11')
    I(f's_mul_i32 s{sM[1]}, s{sRP}, 3072')
    I(f's_mul_i32 s{sT}, s{sG}, {UOFF}')
    I(f's_add_u32 s{sM[1]}, s{sM[1]}, s{sT}')
    I(f's_add_u32 s{sM[1]}, s{sM[1]}, {GOFF}')
    I(f's_cmp_eq_u32 s{sCG}, 15')
    I(f's_cselect_b32 s{sD2+2}, 0, s{sD2+2}')
    I('s_waitcnt lgkmcnt(0)')
    I(f's_cmp_eq_u32 s{sG}, 0')
    I(f's_cselect_b32 s{sD0}, s52, s54')
    I(f's_cselect_b32 s{sD0+1}, s53, s55')
    I(f's_mov_b32 s{sD2}, s6'); I(f's_mov_b32 s{sD2+1}, s7')
    I(f's_mov_b32 s{sX}, s4'); I(f's_mov_b32 s{sX+1}, s5')

    q = []
    def V(text, tag):
        I(text); q.append(tag)
    def wait_for(*tags, lgkm=False):
        last = max((i for i, t in enumerate(q) if t in tags), default=-1)
        n = len(q) - 1 - last
        if last >= 0:
            I(f's_waitcnt vmcnt({min(n, 63)})' + (' lgkmcnt(0)' if lgkm else ''))
            del q[:last + 1]
        elif lgkm:
            I('s_waitcnt lgkmcnt(0)')
    def IQ(x, tag):
        if x.startswith('buffer_load'): V(x, tag)
        else: I(x)
    def dmaB(j):
        slot = j & 3
        for x in [
            f's_add_u32 m0, s{sM[0]}, {B_LDS+slot*BSLOT}',
            f's_nop 0',
            f'buffer_load_dwordx4 v{vD[0]}, {srd(sD2)}, s{sO2} offen lds',
            f'buffer_load_dwordx4 v{vD[1]}, {srd(sD2)}, s{sO2} offen offset:1024 lds',
            f's_add_u32 m0, s{sM[1]}, {B_LDS+slot*BSLOT}',
            f's_add_u32 s{sO2}, s{sO2}, {32*3840}',
            f'buffer_load_dwordx4 v{vD[2]}, {srd(sD0)}, s{sO0} offen lds',
            f'buffer_load_dwordx4 v{vD[3]}, {srd(sD0)}, s{sO0} offen offset:1024 lds',
            f'buffer_load_dwordx4 v{vD[4]}, {srd(sD0)}, s{sO0} offen offset:2048 lds',
            f's_add_u32 s{sO0}, s{sO0}, {32*3072}']: IQ(x, f'B{j}')
    def dmaX(i):
        slot = i & 1
        for x in [
            f's_cmp_ge_u32 s{sXi}, 10',
            f's_cselect_b32 s{sX+2}, 0, s{sX+2}',
            f's_add_u32 m0, s{sMX}, {slot*XSLOT}',
            f's_add_u32 s{sXi}, s{sXi}, 1',
            f'buffer_load_dwordx4 v{vDX[0]}, {srd(sX)}, s{sOX} offen lds',
            f'buffer_load_dwordx4 v{vDX[1]}, {srd(sX)}, s{sOX} offen offset:1024 lds',
            f'buffer_load_dwordx4 v{vDX[2]}, {srd(sX)}, s{sOX} offen offset:2048 lds',
            f'buffer_load_dwordx4 v{vDX[3]}, {srd(sX)}, s{sOX} offen offset:3072 lds',
            f's_add_u32 s{sOX}, s{sOX}, 128']: IQ(x, f'X{i}')
    sRU, sRK, sRC = 64, 65, 66
    dmaX(0); dmaB(0)
    if 'fine' in dbg: st.mark()
    dmaB(1)
    if 'fine' in dbg: st.mark()
    a.label(f'{name}_rd')
    npf = 0
    sSec, sSub = 48, 39
    I(f's_mul_i32 s{sSec}, s{sCG}, 13108')
    I(f's_lshr_b32 s{sSec}, s{sSec}, 16')
    I(f's_mul_i32 s{sT}, s{sSec}, 5')
    I(f's_sub_u32 s{sSub}, s{sCG}, s{sT}')
    I(f's_cmp_ge_u32 s{sWave}, 4')
    I(f's_cbranch_scc1 {name}_nopf')
    vWA, vWI = 244, 246
    def touch(mask='s[64:65]'):
        for x in [f's_mov_b64 exec, {mask}',
                  f'global_load_dword v{vPF}, v[{vWA}:{vWA+1}], off',
                  's_mov_b64 exec, -1',
                  f'v_add_co_u32 v{vWA}, vcc, v{vWA}, v{vWI}',
                  f'v_addc_co_u32 v{vWA+1}, vcc, 0, v{vWA+1}, vcc']:
            I(x, tag='pf')
    if lin:
        I(f's_lshl_b32 s{sT}, s2, 2')
        I(f's_add_u32 s{sT}, s{sT}, s{sL}')
        I(f'v_lshrrev_b32 v{vT0}, 3, v0')
        I(f'v_and_b32 v{vT1}, 7, v0')
        I(f'v_cmp_gt_u32 vcc, 4, v{vT0}')
        I(f'v_cndmask_b32 v{vT1}, v{vT1}, v0, vcc')
        I(f'v_mov_b32 v{vT2}, 20')
        I(f'v_mov_b32 v{vWI}, {S*D*2}')
        I('s_waitcnt lgkmcnt(0)')
        I(f'v_mov_b32 v{vWA}, s4'); I(f'v_mov_b32 v{vWA+1}, s5')
        for grp, n, qq, p in ((4, 5, 160*3840, 6), (5, 4, 160*3072, 52), (6, 4, 160*3072, 54)):
            I(f'v_cmp_eq_u32 vcc, {grp}, v{vT0}')
            I(f'v_mov_b32 v{vU}, s{p}'); I(f'v_mov_b32 v{vU+1}, s{p+1}'); I(f'v_mov_b32 v{vU+2}, {qq}')
            I(f'v_cndmask_b32 v{vWA}, v{vWA}, v{vU}, vcc')
            I(f'v_cndmask_b32 v{vWA+1}, v{vWA+1}, v{vU+1}, vcc')
            I(f'v_cndmask_b32 v{vWI}, v{vWI}, v{vU+2}, vcc')
            I(f'v_mov_b32 v{vU}, {n}')
            I(f'v_cndmask_b32 v{vT2}, v{vT2}, v{vU}, vcc')
        I(f'v_mul_lo_u32 v{vT2}, v{vT2}, s{sT}')
        I(f'v_add_u32 v{vT2}, v{vT2}, v{vT1}')
        I(f'v_lshlrev_b32 v{vT2}, 7, v{vT2}')
        I(f'v_subrev_u32 v{vT1}, 128, v{vWI}')
        I(f'v_min_u32 v{vT2}, v{vT2}, v{vT1}')
        I(f'v_add_co_u32 v{vWA}, vcc, v{vWA}, v{vT2}')
        I(f'v_addc_co_u32 v{vWA+1}, vcc, 0, v{vWA+1}, vcc')
        I(f's_mov_b32 s64, 0')
        I(f's_mov_b32 s65, 0x000f0f1f')
        I(f's_mov_b32 s66, 0x000fffff')
        I(f's_mov_b32 s67, 0x000f0f1f')
        touch('s[66:67]')
        for i in range(lin - 1):
            touch()
    if codepf and schedv != 2:
        code_prefetch(a, f'{name}_nopf', f'{name}_end', sL, 4, vLane16, vPF, 56, sT, 32)
    a.label(f'{name}_nopf')
    I(f'v_and_b32 v{vTok}, 31, v0')
    I(f'v_lshrrev_b32 v{vHk}, 5, v0')
    I(f's_lshl_b32 s{sT}, s{sRP}, 1')
    I(f's_cmp_ge_u32 s{sWave}, 4')
    I(f's_cselect_b32 s{sT}, s{sL}, s{sT}')
    I(f's_cselect_b32 s{sT2}, s{sRP}, 0')
    I(f's_lshl_b32 s{sT}, s{sT}, 12')
    I(f's_add_u32 s{sT}, s{sT}, {X_LDS}')
    I(f'v_bfe_u32 v{vT1}, v0, 1, 3')
    I(f'v_xor_b32 v{vT1}, v{vT1}, v{vHk}')
    I(f'v_lshlrev_b32 v{vT0}, 7, v{vTok}')
    I(f'v_add_u32 v{vT0}, s{sT}, v{vT0}')
    for ks in range(4):
        I(f'v_xor_b32 v{vU}, {2*ks}, v{vT1}')
        I(f'v_lshl_add_u32 v{vXB[ks]}, v{vU}, 4, v{vT0}')
    I(f'v_bfe_u32 v{vT0}, v0, 2, 2')
    I(f'v_lshl_add_u32 v{vT1}, v{vHk}, 3, v{vT0}')
    I(f's_lshl_b32 s{sT2}, s{sT2}, 4')
    I(f'v_add_u32 v{vT1}, s{sT2}, v{vT1}')
    I(f'v_and_b32 v{vT2}, 3, v0')
    I(f'v_lshlrev_b32 v{vT2}, 3, v{vT2}')
    I(f'v_add_u32 v{vT2}, {B_LDS}, v{vT2}')
    vG16 = vU
    I(f'v_bfe_u32 v{vG16}, v0, 4, 1')
    W0 = vWB[0]
    I(f'v_lshlrev_b32 v{vU+1}, 8, v{vT1}')
    I(f'v_lshl_add_u32 v{vU+1}, v{vG16}, 5, v{vU+1}')
    I(f'v_add_u32 v{vU+1}, v{vU+1}, v{vT2}')
    I(f's_lshl_b32 s{sT}, s{sG}, 1')
    I(f'v_xor_b32 v{vU+2}, s{sT}, v{vT0}')
    I(f'v_lshl_add_u32 v{W0[0]}, v{vU+2}, 6, v{vU+1}')
    I(f'v_xor_b32 v{vU+2}, 1, v{vU+2}')
    I(f'v_lshl_add_u32 v{W0[1]}, v{vU+2}, 6, v{vU+1}')
    I(f'v_mul_u32_u24 v{W0[2]}, 192, v{vT1}')
    I(f'v_mul_u32_u24 v{vU+1}, {UOFF}, v{vG16}')
    I(f'v_add3_u32 v{W0[2]}, v{W0[2]}, v{vU+1}, v{vT2}')
    I(f's_mul_i32 s{sT}, s{sG}, 96')
    I(f's_add_u32 s{sT}, s{sT}, {GOFF}')
    I(f'v_add_u32 v{W0[2]}, s{sT}, v{W0[2]}')
    for i in range(3):
        I(f'v_add_u32 v{vWB[1][i]}, {2*BSLOT}, v{W0[i]}')
    I(f's_mov_b32 s{sCnt}, 5')
    I(f's_cmp_lt_u32 s{sWave}, 4')
    I(f's_cbranch_scc1 {name}_comp')
    I(f's_setprio {lprio}')
    I(f's_mov_b32 s{sLo}, -1')
    I(f's_mov_b32 s{sLo+1}, 0')
    sDb, sTag = 24, 50
    vXS, vLA, vWS, vWSH, vCA, vS, vP, vTg, vFO = 84, 94, 96, 100, 140, 148, 176, 216, 218
    I(f's_mov_b32 s{sDb+2}, 256'); I(f's_mov_b32 s{sDb+3}, 0x20000')
    I(f's_mov_b32 s{sWS+2}, {WS_END}'); I(f's_mov_b32 s{sWS+3}, 0x20000')
    I(f's_or_b32 s{sT}, s2, s{sL}')
    I(f's_cmp_lg_u32 s{sT}, 0')
    I(f's_cbranch_scc1 {name}_notag')
    tag_publish(a, sDb, sTag, vTg, vT0)
    a.label(f'{name}_notag')
    I(f'v_mov_b32 v{vFO+1}, {SYB}')
    I(f'v_mov_b32 v{vP}, 0'); I(f'v_mov_b32 v{vP+1}, 0')
    I(f'ds_write_b64 v{vFO+1}, {vr(vP,2)}')
    I(f'ds_write_b64 v{vFO+1}, {vr(vP,2)} offset:8')
    wait_for('X0', 'B0', lgkm=True)
    I('s_barrier')
    st.mark()
    dmaB(2); dmaX(1); dmaB(3)
    vXA = vT3
    def share_setup():
        I(f's_lshl_b32 s{sT}, s{sRB}, 7')
        I(f's_lshl_b32 s{sT2}, s{sCG}, 3')
        I(f's_add_u32 s{sT}, s{sT}, s{sT2}')
        I(f's_lshl_b32 s{sT2}, s{sL}, 1')
        I(f's_add_u32 s{sT}, s{sT}, s{sT2}')
        I(f's_mul_i32 s43, s{sT}, 1280')
        I(f'v_mul_u32_u24 v{vXA}, 1280, v{vHk}')
        I(f'v_lshl_add_u32 v{vXA}, v{vTok}, 3, v{vXA}')
        for j in range(5):
            V(f'buffer_load_dwordx2 {vr(vXS+2*j,2)}, v{vXA}, {srd(sX)}, s43 offen offset:{256*j}', 'xs')
        I(f's_min_u32 s{sT}, s{sCG}, 14')
        I(f's_lshl_b32 s{sT}, s{sT}, 8')
        I(f'v_add_u32 v{vT0}, s{sT}, v{vLane16}')
        I(f's_mul_i32 s{sT}, s{sCG}, 192')
        I(f's_sub_u32 s{sT2}, s{sT}, {16*16}')
        I(f'v_add_u32 v{vT1}, s{sT2}, v{vLane16}')
        I(f's_sub_u32 s{sT2}, s{sT}, {28*16}')
        I(f'v_add_u32 v{vT2}, s{sT2}, v{vLane16}')
        I(f'v_mov_b32 v{vLA}, s54'); I(f'v_mov_b32 v{vLA+1}, s55'); I(f'v_mov_b32 v{vWS}, 3072')
        I(f'v_cmp_gt_u32 vcc, 28, v0')
        I(f'v_mov_b32 v{vU}, s52'); I(f'v_mov_b32 v{vU+1}, s53')
        I(f'v_cndmask_b32 v{vT2}, v{vT2}, v{vT1}, vcc')
        I(f'v_cndmask_b32 v{vLA}, v{vLA}, v{vU}, vcc')
        I(f'v_cndmask_b32 v{vLA+1}, v{vLA+1}, v{vU+1}, vcc')
        I(f'v_cmp_gt_u32 vcc, 16, v0')
        I(f'v_mov_b32 v{vU}, s6'); I(f'v_mov_b32 v{vU+1}, s7'); I(f'v_mov_b32 v{vU+2}, 3840')
        I(f'v_cndmask_b32 v{vT2}, v{vT2}, v{vT0}, vcc')
        I(f'v_cndmask_b32 v{vLA}, v{vLA}, v{vU}, vcc')
        I(f'v_cndmask_b32 v{vLA+1}, v{vLA+1}, v{vU+1}, vcc')
        I(f'v_cndmask_b32 v{vWS}, v{vWS}, v{vU+2}, vcc')
        I(f's_mul_i32 s{sT}, s{sRB}, 40')
        I(f's_mul_i32 s{sT2}, s{sL}, 10')
        I(f's_add_u32 s{sT}, s{sT}, s{sT2}')
        I(f'v_mul_lo_u32 v{vT0}, v{vWS}, s{sT}')
        I(f'v_add_u32 v{vT2}, v{vT2}, v{vT0}')
        I(f'v_add_co_u32 v{vLA}, vcc, v{vLA}, v{vT2}')
        I(f'v_addc_co_u32 v{vLA+1}, vcc, 0, v{vLA+1}, vcc')
    sc = stmod
    def w_share_issue(i0=0, i1=10):
        I('s_mov_b32 exec_hi, 0xff')
        for i in range(i0, i1):
            V(f'global_load_dwordx4 {vr(vWSH+4*i)}, v[{vLA}:{vLA+1}], off', 'ws')
            if i < 9:
                I(f'v_add_co_u32 v{vLA}, vcc, v{vLA}, v{vWS}')
                I(f'v_addc_co_u32 v{vLA+1}, vcc, 0, v{vLA+1}, vcc')
        I('s_mov_b64 exec, -1')
    def red32(r, t):
        for d in ('quad_perm:[1,0,3,2]', 'quad_perm:[2,3,0,1]', 'row_half_mirror', 'row_mirror'):
            I(f'v_add_f32_dpp v{r}, v{r}, v{r} {d} row_mask:0xf bank_mask:0xf')
        I(f'v_mov_b32 v{t}, v{r}')
        I(f'v_permlane16_swap_b32 v{t}, v{r}')
        I(f'v_add_f32 v{r}, v{r}, v{t}')
    def capture(fn):
        keep = a.ins
        a.ins = []
        fn()
        got, a.ins = a.ins, keep
        return got
    def x_stats():
        m, t = vS + 20, vS + 21
        v2, t2 = vS + 22, vS + 23
        for k in range(10):
            I(f'v_lshlrev_b32 v{vS+2*k}, 16, v{vXS+k}')
            I(f'v_and_b32 v{vS+2*k+1}, 0xffff0000, v{vXS+k}')
        I(f'v_add_f32 v{m}, v{vS}, v{vS+1}')
        I(f'v_add_f32 v{t}, v{vS+2}, v{vS+3}')
        for k in range(4, 20, 2):
            I(f'v_add_f32 v{m}, v{m}, v{vS+k}')
            I(f'v_add_f32 v{t}, v{t}, v{vS+k+1}')
        I(f'v_add_f32 v{m}, v{m}, v{t}')
        red32(m, t)
        I(f'v_mul_f32 v{m}, 0x{f2u(-1.0/640):08x}, v{m}')
        for k in range(20):
            I(f'v_add_f32 v{vS+k}, v{m}, v{vS+k}')
        I(f'v_mul_f32 v{v2}, v{vS}, v{vS}')
        I(f'v_mul_f32 v{t2}, v{vS+1}, v{vS+1}')
        for k in range(2, 20, 2):
            I(f'v_fmac_f32 v{v2}, v{vS+k}, v{vS+k}')
            I(f'v_fmac_f32 v{t2}, v{vS+k+1}, v{vS+k+1}')
        I(f'v_add_f32 v{v2}, v{v2}, v{t2}')
        red32(v2, t2)
        I(f'v_mul_f32 v{v2}, 0x{f2u(1.0/640):08x}, v{v2}')
        I(f'v_cvt_pk_bf16_f32 v{t}, v{v2}, v{m}')
        I(f'v_and_b32 v{m}, 0xffff0000, v{t}')
        I(f'v_lshlrev_b32 v{t}, 16, v{t}')
        I(f'v_add_f32 v{t}, 0x{f2u(1e-5):08x}, v{t}')
        I(f'v_cvt_pk_bf16_f32 v{t}, v{t}, v{t}')
        I(f'v_lshlrev_b32 v{t}, 16, v{t}')
        I(f'v_sqrt_f32 v{t}, v{t}')
        I(f'v_cvt_pk_bf16_f32 v{t}, v{t}, v{t}')
        I(f'v_lshlrev_b32 v{t}, 16, v{t}')
        I(f'v_rcp_f32 v{t}, v{t}')
        I(f'v_lshlrev_b32 v{v2}, 3, v{vHk}')
        I(f'v_add_u32 v{v2}, s49, v{v2}')
        I(f'ds_write_b64 v{v2}, {vr(m,2)} offset:{ST_LDS}')
    vCI = vS + 24
    def w_sum():
        for i in range(10):
            for d in range(4):
                src = vWSH + 4 * i + d
                if i == 0:
                    I(f'v_lshlrev_b32 v{vCA+2*d}, 16, v{src}')
                    I(f'v_and_b32 v{vCA+2*d+1}, 0xffff0000, v{src}')
                else:
                    t = vS + 2 * d
                    I(f'v_lshlrev_b32 v{t}, 16, v{src}')
                    I(f'v_and_b32 v{t+1}, 0xffff0000, v{src}')
                    I(f'v_add_f32 v{vCA+2*d}, v{vCA+2*d}, v{t}')
                    I(f'v_add_f32 v{vCA+2*d+1}, v{vCA+2*d+1}, v{t+1}')
    def w_index():
        I(f'v_subrev_u32 v{vT0}, 16, v0')
        I(f'v_subrev_u32 v{vT1}, 28, v0')
        I(f'v_cmp_gt_u32 vcc, 28, v0')
        I(f'v_cndmask_b32 v{vT0}, v{vT1}, v{vT0}, vcc')
        I(f'v_cndmask_b32 v{vT2}, 16, 0, vcc')
        I(f'v_lshrrev_b32 v{vT1}, 1, v{vT0}')
        I(f'v_lshl_add_u32 v{vT2}, v{vT1}, 5, v{vT2}')
        I(f'v_and_b32 v{vT0}, 1, v{vT0}')
        I(f'v_lshl_add_u32 v{vT2}, v{vT0}, 3, v{vT2}')
        I(f'v_add_u32 v{vT2}, 128, v{vT2}')
        I(f'v_lshlrev_b32 v{vT0}, 3, v0')
        I(f'v_cmp_gt_u32 vcc, 16, v0')
        I(f'v_cndmask_b32 v{vT2}, v{vT2}, v{vT0}, vcc')
        I(f'v_lshlrev_b32 v{vT2}, 2, v{vT2}')
        I(f's_mul_i32 s{sT}, s{sL}, 1280')
        I(f'v_add_u32 v{vCI}, s{sT}, v{vT2}')
        I(f's_lshl_b32 s49, s{sL}, 4')
    def w_write():
        I('s_mov_b32 exec_hi, 0xff')
        I(f'ds_write_b128 v{vCI}, {vr(vCA)} offset:{CP_LDS}')
        I(f'ds_write_b128 v{vCI}, {vr(vCA+4)} offset:{CP_LDS+16}')
        I('s_mov_b64 exec, -1')
    xs_l, ws_l = capture(x_stats), capture(w_sum)
    def sl(lst, k, n, w=None):
        def g():
            if w: wait_for(w)
            a.ins.extend(lst[len(lst) * k // n: len(lst) * (k + 1) // n])
        return g
    def only0(fn, lab):
        I(f's_cmp_lg_u32 s{sL}, 0')
        I(f's_cbranch_scc1 {lab}')
        n0 = len(q)
        fn()
        del q[n0:]
        a.label(lab)
    def publish_store():
        for h, (n, off) in enumerate(((64, 0), (16, 1024))):
            for w in range(4):
                I(f'ds_read_b128 {vr(vP+16*h+4*w)}, v{vLane16} offset:{CP_LDS+1280*w+off}')
        I(f'ds_read_b128 {vr(vP+32)}, v{vLane16} offset:{ST_LDS}')
        I(f's_lshl_b32 s{sT}, s{sCG}, 4')
        I(f's_add_u32 s{sT}, s{sT}, s{sRB}')
        I(f's_mul_i32 s{sT}, s{sT}, 1280')
        I(f's_add_u32 s{sT}, s{sT}, {CSQ_OFF}')
        I(f's_lshl_b32 s{sT2}, s{sRB}, 10')
        I(f's_lshl_b32 s43, s{sCG}, 6')
        I(f's_add_u32 s{sT2}, s{sT2}, s43')
        I(f's_add_u32 s{sT2}, s{sT2}, {RSQ_OFF}')
        I('s_waitcnt lgkmcnt(0)')
        for h in range(2):
            b = vP + 16 * h
            for r in range(0, 4, 2):
                I(f'v_pk_add_f32 {vr(b+r,2)}, {vr(b+r,2)}, {vr(b+4+r,2)}')
                I(f'v_pk_add_f32 {vr(b+8+r,2)}, {vr(b+8+r,2)}, {vr(b+12+r,2)}')
                I(f'v_pk_add_f32 {vr(b+r,2)}, {vr(b+r,2)}, {vr(b+8+r,2)}')
        V(f'buffer_store_dwordx4 {vr(vP)}, v{vLane16}, {srd(sWS)}, s{sT} offen{sc}', 'pub')
        I('s_mov_b64 exec, 0xffff')
        V(f'buffer_store_dwordx4 {vr(vP+16)}, v{vLane16}, {srd(sWS)}, s{sT} offen offset:1024{sc}', 'pub')
        I('s_mov_b64 exec, 0xf')
        V(f'buffer_store_dwordx4 {vr(vP+32)}, v{vLane16}, {srd(sWS)}, s{sT2} offen{sc}', 'pub')
        I('s_mov_b64 exec, -1')
    def tag_issue():
        I(f'v_mov_b32 v{vT0}, 0')
        V(f'buffer_load_dwordx2 {vr(vTg,2)}, v{vT0}, {srd(sDb)}, 0 offen sc1', 'tag')
    def tag_check():
        wait_for('tag')
        I(f'v_readfirstlane_b32 s{sTag}, v{vTg}')
        I(f'v_readfirstlane_b32 s{sTag+1}, v{vTg+1}')
        I(f's_cmp_lg_u32 s{sTag}, 0')
        I(f's_cbranch_scc1 {name}_tagok')
        tag_get(a, f'{name}_tg', sDb, sTag, vTg, vT0, sT)
        a.label(f'{name}_tagok')
        I(f'v_mov_b32 v{vTg}, s{sTag}')
        I(f'v_mov_b32 v{vTg+1}, s{sTag+1}')
        I(f'v_mov_b32 v{vT0}, 0')
        I(f'ds_write_b64 v{vT0}, {vr(vTg,2)} offset:{TG_LDS}')
    sIdx = 49
    def setflag(kind):
        I(f's_lshl_b32 s{sIdx}, s{sRB}, 4')
        I(f's_add_u32 s{sIdx}, s{sIdx}, s{sCG}')
        flag_set(a, sWS, sTag, kind, sIdx, vTg, vT0, sT)
    def poll_issue():
        I(f'v_and_b32 v{vT0}, 15, v0')
        I(f'v_lshlrev_b32 v{vT1}, 4, v{vT0}')
        I(f'v_add_u32 v{vT1}, s{sCG}, v{vT1}')
        I(f's_lshl_b32 s{sT}, s{sRB}, 4')
        I(f'v_add_u32 v{vT0}, s{sT}, v{vT0}')
        I(f'v_and_b32 v{vT2}, 16, v0')
        I(f'v_cmp_eq_u32 vcc, 0, v{vT2}')
        I(f'v_cndmask_b32 v{vFO}, v{vT0}, v{vT1}, vcc')
        I(f'v_lshlrev_b32 v{vFO}, 7, v{vFO}')
        I(f's_mov_b32 s{sT}, {FL_OFF}')
        V(f'buffer_load_dwordx2 {vr(vP,2)}, v{vFO}, {srd(sWS)}, s{sT} offen sc1', 'poll')
    def poll_check_and_load():
        wait_for('poll')
        I(f'v_xor_b32 v{vP}, s{sTag}, v{vP}')
        I(f'v_xor_b32 v{vP+1}, s{sTag+1}, v{vP+1}')
        I(f'v_or_b32 v{vP}, v{vP}, v{vP+1}')
        I(f'v_cmp_ne_u32 vcc, 0, v{vP}')
        I(f's_cbranch_vccz {name}_stok')
        flag_wait(a, f'{name}_stw', sWS, sTag, 0, 1, vFO, vP, sT2, sT)
        a.label(f'{name}_stok')
        I(f'v_lshrrev_b32 v{vT0}, 4, v0')
        I(f'v_mul_u32_u24 v{vT0}, {1280-256}, v{vT0}')
        I(f'v_add_u32 v{vT0}, v{vT0}, v{vLane16}')
        I(f's_mul_i32 s{sT}, s{sCG}, {16*1280}')
        I(f's_add_u32 s{sT}, s{sT}, {CSQ_OFF}')
        I(f's_lshl_b32 s{sT2}, s{sL}, 8')
        I(f's_add_u32 s{sT2}, s{sT2}, s{sT}')
        for i in range(4):
            V(f'buffer_load_dwordx4 {vr(vP+4*i)}, v{vT0}, {srd(sWS)}, s{sT2} offen sc1', 'cs')
            V(f'buffer_load_dwordx4 {vr(vP+16+4*i)}, v{vT0}, {srd(sWS)}, s{sT} offen offset:1024 sc1', 'cs')
            if i < 3:
                I(f's_add_u32 s{sT}, s{sT}, {4*1280}')
                I(f's_add_u32 s{sT2}, s{sT2}, {4*1280}')
        I(f's_lshl_b32 s{sT}, s{sRB}, 10')
        I(f's_add_u32 s{sT}, s{sT}, {RSQ_OFF}')
        V(f'buffer_load_dwordx4 {vr(vP+32)}, v{vLane16}, {srd(sWS)}, s{sT} offen sc1', 'cs')
    def tables():
        wait_for('cs')
        for h in range(2):
            b = vP + 16 * h
            for r in range(0, 4, 2):
                I(f'v_pk_add_f32 {vr(b+r,2)}, {vr(b+r,2)}, {vr(b+4+r,2)}')
                I(f'v_pk_add_f32 {vr(b+8+r,2)}, {vr(b+8+r,2)}, {vr(b+12+r,2)}')
                I(f'v_pk_add_f32 {vr(b+r,2)}, {vr(b+r,2)}, {vr(b+8+r,2)}')
        for sw in ('v_permlane16_swap_b32', 'v_permlane32_swap_b32'):
            for h in range(2):
                for r in range(4):
                    I(f'v_mov_b32 v{vP+16*h+4+r}, v{vP+16*h+r}')
            for h in range(2):
                for r in range(4):
                    I(f'{sw} v{vP+16*h+4+r}, v{vP+16*h+r}')
            for h in range(2):
                for r in range(4):
                    I(f'v_add_f32 v{vP+16*h+r}, v{vP+16*h+r}, v{vP+16*h+4+r}')
        I(f'v_and_b32 v{vT0}, 15, v0')
        I(f'v_lshlrev_b32 v{vT0}, 4, v{vT0}')
        I(f's_lshl_b32 s{sT}, s{sL}, 8')
        I(f'v_add_u32 v{vT1}, s{sT}, v{vT0}')
        I(f'ds_write_b128 v{vT1}, {vr(vP)} offset:{CS_LDS}')
        I(f'ds_write_b128 v{vT0}, {vr(vP+16)} offset:{CS_LDS+1024}')
        I(f'v_lshlrev_b32 v{vT0}, 3, v0')
        I(f'v_mov_b32 v{vP+36}, v{vP+33}')
        I(f'v_mov_b32 v{vP+33}, v{vP+34}')
        I(f'v_mov_b32 v{vP+37}, v{vP+35}')
        I(f'ds_write_b64 v{vT0}, {vr(vP+32,2)} offset:{NM_LDS}')
        I(f'ds_write_b64 v{vT0}, {vr(vP+36,2)} offset:{RR_LDS}')
    def wf_issue():
        I(f's_load_dwordx2 s[68:69], s[0:1], {KA_WO}')
        I(f's_load_dwordx2 s[72:73], s[0:1], {KA_WD}')
        I(f's_lshl_b32 s{sRU}, s2, 2')
        I(f's_add_u32 s{sRU}, s{sRU}, s{sL}')
        I(f's_mul_i32 s{sRK}, s{sRU}, 13108')
        I(f's_lshr_b32 s{sRK}, s{sRK}, 16')
        I(f's_mul_i32 s{sT}, s{sRK}, 5')
        I(f's_sub_u32 s{sRC}, s{sRU}, s{sT}')
        I(f'v_lshrrev_b32 v{vT0}, 4, v0')
        I(f'v_mul_u32_u24 v{vT0}, {1280-256}, v{vT0}')
        I(f'v_add_u32 v{vT0}, v{vT0}, v{vLane16}')
        I(f's_mul_i32 s{sT}, s{sRK}, 13108')
        I(f's_lshr_b32 s{sT}, s{sT}, 16')
        I(f's_mul_i32 s{sT2}, s{sT}, 5')
        I(f's_sub_u32 s{sT2}, s{sRK}, s{sT2}')
        I(f's_mul_i32 s{sT}, s{sT}, 80')
        I(f's_mul_i32 s74, s{sT2}, 20')
        I(f's_add_u32 s74, s74, s{sT}')
        I(f's_add_u32 s{sT}, s{sT}, 16')
        I(f's_cmp_eq_u32 s{sT2}, 4')
        I(f's_cselect_b32 s74, s{sT}, s74')
        I(f's_cselect_b32 s43, 1, 0')
        I(f's_sub_u32 s{sT}, s{sRK}, 40')
        I(f's_lshl_b32 s{sT}, s{sT}, 4')
        I(f's_mov_b32 s70, {D*D*2}')
        I(f's_mov_b32 s71, 0x20000')
        I('s_waitcnt lgkmcnt(0)')
        I(f's_cmp_ge_u32 s{sRK}, 40')
        I(f's_cselect_b32 s68, s72, s68')
        I(f's_cselect_b32 s69, s73, s69')
        I(f's_cselect_b32 s70, {F*D*2}, s70')
        I(f's_cselect_b32 s74, s{sT}, s74')
        I(f's_cselect_b32 s43, 0, s43')
        I(f's_cmp_ge_u32 s{sRU}, 680')
        I(f's_cselect_b32 s70, 0, s70')
        I(f's_mul_i32 s74, s74, 1280')
        I(f's_lshl_b32 s{sT2}, s{sRC}, 8')
        I(f's_add_u32 s74, s74, s{sT2}')
        I(f's_lshl_b32 s67, s{sL}, 12')
        I(f's_add_u32 s67, s67, {R_LDS}')
        for j in range(4):
            I(f's_mov_b32 s{sT}, {4*j*1280}')
            I(f's_cmp_eq_u32 s43, 1')
            I(f's_cselect_b32 s{sT}, {20*[0,2,1,3][j]*1280}, s{sT}')
            I(f's_add_u32 s{sT}, s{sT}, s74')
            I(f's_add_u32 m0, s67, {1024*j}')
            I(f's_nop 0')
            V(f'buffer_load_dwordx4 v{vT0}, s[68:71], s{sT} offen lds', 'wf')
    def wf_store():
        wait_for('wf')
        I(f'v_bfe_u32 v{vT0}, v0, 2, 2')
        I(f'v_lshl_add_u32 v{vT0}, v{vHk}, 2, v{vT0}')
        I(f'v_lshlrev_b32 v{vT0}, 8, v{vT0}')
        I(f'v_bfe_u32 v{vT1}, v0, 4, 1')
        I(f'v_lshl_add_u32 v{vT0}, v{vT1}, 5, v{vT0}')
        I(f'v_and_b32 v{vT1}, 3, v0')
        I(f'v_lshl_add_u32 v{vT0}, v{vT1}, 3, v{vT0}')
        I(f'v_add_u32 v{vT0}, s67, v{vT0}')
        for j in range(4):
            I(f'ds_read_b64_tr_b16 {vr(vWSH+4*j,2)}, v{vT0} offset:{64*j}')
            I(f'ds_read_b64_tr_b16 {vr(vWSH+4*j+2,2)}, v{vT0} offset:{64*j+2048}')
        I(f's_mul_i32 s{sT}, s{sRC}, {4*AREC}')
        I(f's_lshl_b32 s{sT2}, s{sRK}, 10')
        I(f's_add_u32 s{sT}, s{sT}, s{sT2}')
        I(f's_add_u32 s{sT}, s{sT}, {WF_OFF}')
        I(f's_cmp_ge_u32 s{sRU}, 680')
        I(f's_cselect_b32 s{sWS+2}, 0, s{sWS+2}')
        for j in range(4):
            I(f's_waitcnt lgkmcnt({6-2*j})')
            V(f'buffer_store_dwordx4 {vr(vWSH+4*j)}, v{vLane16}, {srd(sWS)}, s{sT} offen{sc}', 'wfs')
            I(f's_add_u32 s{sT}, s{sT}, {AREC}')
        I(f's_mov_b32 s{sWS+2}, {WS_END}')
    def const_lines():
        I(f's_cmp_lg_u32 s{sL}, 1')
        I(f's_cbranch_scc1 {name}_ncl')
        I(f'v_lshrrev_b32 v{vT0}, 3, v0')
        I(f'v_mul_u32_u24 v{vT0}, {KVREC-128}, v{vT0}')
        I(f'v_add_u32 v{vT0}, v{vT0}, v{vLane16}')
        I(f'v_and_b32 v{vT1}, 7, v0')
        I(f'v_cmp_eq_u32 vcc, 0, v{vT1}')
        I(f'v_mov_b32 v{vT1}, 0x3f803f80')
        for r in range(4):
            I(f'v_cndmask_b32 v{vP+r}, 0, v{vT1}, vcc')
        I(f's_mul_i32 s{sT}, s2, {8*KVREC}')
        I(f's_add_u32 s{sT}, s{sT}, {KV_OFF + 2560}')
        I(f'buffer_store_dwordx4 {vr(vP)}, v{vT0}, {srd(sWS)}, s{sT} offen{sc}')
        a.label(f'{name}_ncl')
    def pubflag():
        I('s_waitcnt vmcnt(9)')
        setflag(0)
    if schedv == 2:
      sched = {0: [tag_issue], 1: [lambda: only0(publish_store, f'{name}_o1'), const_lines], 3: [tag_check],
               4: [lambda: only0(pubflag, f'{name}_o2')], 5: [wf_issue], 16: [wf_store, poll_issue], 18: [poll_check_and_load]}
    else:
      sched = {
        1: [share_setup, tag_issue, w_share_issue, w_index], 4: [sl(xs_l, 0, 1, 'xs'), tag_check, sl(ws_l, 0, 1, 'ws'), w_write],
        5: [lambda: only0(publish_store, f'{name}_o1'), const_lines, wf_issue],
        8: [lambda: only0(pubflag, f'{name}_o2')], 16: [wf_store, poll_issue], 18: [poll_check_and_load]}
    def trace(idx, v=250):
        if 'trace' not in dbg: return
        I('s_memtime s[76:77]')
        I(f's_lshl_b32 s78, s2, 3')
        I(f's_add_u32 s78, s78, s{sWave}')
        I(f's_lshl_b32 s78, s78, 8')
        I(f's_add_u32 s78, s78, {STAMP_OFF + 0x200000 + 4*idx}')
        I(f's_mov_b32 s{sWS+2}, 0x10000000')
        I('s_waitcnt lgkmcnt(0)')
        I(f's_sub_u32 s76, s76, s82')
        I(f'v_mov_b32 v{v}, s76')
        I(f'v_mov_b32 v{v+1}, 0')
        I('s_mov_b64 exec, 1')
        V(f'buffer_store_dword v{v}, v{v+1}, {srd(sWS)}, s78 offen', 'tr')
        I('s_mov_b64 exec, -1')
        I(f's_mov_b32 s{sWS+2}, {WS_END}')
    for j in range(20):
        for fn in sched.get(j, []):
            fn()
        wait_for(f'B{j+1}', f'X{(j+1)//2}', lgkm=True)
        I('s_barrier')
        trace(3 * j + 2)
        if j & 1 and (j + 3) // 2 < 10:
            dmaX((j + 3) // 2)
        if j + 4 < 20:
            dmaB(j + 4)
    st.mark()
    tables()
    I('s_waitcnt vmcnt(0) lgkmcnt(0)')
    I('s_barrier')
    I(f'v_lshlrev_b32 v{vFO}, 7, v0')
    I('s_barrier')
    I(f's_cmp_lg_u32 s{sL}, 0')
    I(f's_cbranch_scc1 {name}_nq')
    setflag(1)
    flag_wait(a, f'{name}_qw', sWS, sTag, 1, 4, vFO, vP, sT2, sT, sleep=fsleep)
    a.label(f'{name}_nq')
    I('s_barrier')
    I('s_setprio 0')
    if hdel: I(f's_sleep {hdel}')
    I(f's_lshl_b32 s{sT}, s{sRB}, 2')
    I(f's_lshl_b32 s{sT2}, s{sRP}, 1')
    I(f's_add_u32 s{sT}, s{sT}, s{sT2}')
    I(f's_mul_i32 s{sT}, s{sT}, {AREC}')
    I(f's_mul_i32 s{sT2}, s{sCG}, 6144')
    I(f's_add_u32 s{sT}, s{sT}, s{sT2}')
    I(f's_mul_i32 s{sT2}, s{sG}, 3072')
    I(f's_add_u32 s{sT}, s{sT}, s{sT2}')
    I(f's_add_u32 s{sT}, s{sT}, {AF_OFF + 40*1024}')
    I(f's_add_u32 s43, s{sT}, {AREC}')
    I(f's_mul_i32 s{sT2}, s{sL}, 6144')
    I(f'v_add_u32 v{vT0}, s{sT2}, v{vLane16}')
    for k in range(6):
        I(f'ds_read_b128 {vr(vWSH+4*k)}, v{vT0} offset:{B_LDS + 1024*k}')
    for k in range(6):
        t, i = divmod(k, 3)
        I(f's_waitcnt lgkmcnt({5-k})')
        I(f'buffer_store_dwordx4 {vr(vWSH+4*k)}, v{vLane16}, {srd(sWS)}, s{43 if t else sT} offen offset:{1024*i}{sc}')
        if hth: I('s_waitcnt vmcnt(0)')
    I('s_waitcnt vmcnt(0)')
    def lwait(lab, off, val, sleep):
        I(f's_branch {lab}_f')
        a.label(lab)
        I(f's_sleep {sleep}')
        a.label(lab + '_f')
        I(f'ds_read_b32 v{vP}, v{vFO+1} offset:{off}')
        I('s_waitcnt lgkmcnt(0)')
        I(f'v_readfirstlane_b32 s{sT}, v{vP}')
        I(f's_cmp_lt_u32 s{sT}, {val}')
        I(f's_cbranch_scc1 {lab}')
    I(f'v_mov_b32 v{vP}, 1')
    I('s_mov_b64 exec, 1')
    I(f'ds_add_u32 v{vFO+1}, v{vP} offset:{SY_LDS}')
    I('s_mov_b64 exec, -1')
    I(f's_cmp_lg_u32 s{sL}, 0')
    I(f's_cbranch_scc1 {name}_nh')
    lwait(f'{name}_hc', SY_LDS, 4, 16)
    setflag(2)
    flag_wait(a, f'{name}_hw', sWS, sTag, 2, 4, vFO, vP, sT2, sT, sleep=gs)
    I(f'v_mov_b32 v{vP}, 1')
    I(f'ds_write_b32 v{vFO+1}, v{vP} offset:{SY_LDS+4}')
    a.label(f'{name}_nh')
    lwait(f'{name}_go', SY_LDS + 4, 1, gs)
    if pre:
        I('s_and_b32 s6, s2, 7')
        I('s_lshr_b32 s7, s2, 3')
        I(f's_lshr_b32 s{sT}, s7, 3')
        I('s_and_b32 s4, s6, 1')
        I('s_lshl_b32 s4, s4, 2')
        I(f's_add_u32 s{sT}, s{sT}, s4')
        I(f's_cmp_ge_u32 s{sT}, 7')
        I(f's_cbranch_scc1 {name}_nopre')
        I('s_lshr_b32 s6, s6, 1')
        I('s_lshl_b32 s6, s6, 3')
        I('s_and_b32 s7, s7, 7')
        I('s_add_u32 s6, s6, s7')
        I(f's_mul_i32 s6, s6, {2*AREC}')
        I(f's_add_u32 s6, s6, {AF_OFF + 40*1024}')
        I(f's_mul_i32 s7, s{sT}, {3*AREC}')
        I(f's_add_u32 s7, s7, {WF_OFF + 40*1024}')
        I(f's_mov_b32 s{sWS+2}, {WF_END}')
        I(f's_lshl_b32 s4, s{sL}, 10')
        I(f'v_add_u32 v{vT1}, s4, v{vLane16}')
        I('s_mov_b32 s5, 0')
        a.label(f'{name}_pst')
        I(f's_cmp_lt_u32 s5, 2')
        I(f's_cselect_b32 s{sT2}, s6, s7')
        I(f's_cselect_b32 s6, s7, s6') if False else None
        for gidx in range(pre):
            I(f's_add_u32 m0, s4, {4096*gidx}')
            I(f's_add_u32 s{sT}, s{sT2}, {4096*gidx}')
            I(f'buffer_load_dwordx4 v{vT1}, {srd(sWS)}, s{sT} offen sc1 lds')
            I(f's_waitcnt vmcnt({pth})')
        I(f's_cmp_lt_u32 s5, 2')
        I(f's_cselect_b32 s{sT}, {AREC}, 0')
        I(f's_add_u32 s6, s6, s{sT}')
        I(f's_cmp_lt_u32 s5, 2')
        I(f's_cselect_b32 s{sT}, 0, {AREC}')
        I(f's_add_u32 s7, s7, s{sT}')
        I(f's_add_u32 s4, s4, {4096*pre}')
        I('s_add_u32 s5, s5, 1')
        I('s_cmp_lt_u32 s5, 5')
        I(f's_cbranch_scc1 {name}_pst')
        I('s_waitcnt vmcnt(0)')
        a.label(f'{name}_nopre')
    if f3w:
        I(f'v_mov_b32 v{vP}, 1')
        I('s_mov_b64 exec, 1')
        I(f'ds_add_u32 v{vFO+1}, v{vP} offset:{SY_LDS+8}')
        I('s_mov_b64 exec, -1')
        I('s_waitcnt lgkmcnt(0)')
    else:
        I('s_barrier')
    I(f's_branch {name}_end')
    a.label(f'{name}_comp')
    st.n = 0
    if 'fine' in dbg:
        for i in range(3): st.mark()
    if prio:
        I('s_setprio 1')
    I(f's_mov_b32 s{sWS+2}, {WS_END}')
    I(f's_mov_b32 s{sWS+3}, 0x20000')
    I(f's_mov_b32 s{sLo}, -1')
    I(f's_mov_b32 s{sLo+1}, 0')
    I('s_waitcnt lgkmcnt(0)')
    if schedv == 2:
        I(f's_mov_b32 s{sX}, s4'); I(f's_mov_b32 s{sX+1}, s5'); I(f's_mov_b32 s{sX+2}, {S*D*2}'); I(f's_mov_b32 s{sX+3}, 0x20000')
        q.clear()
        share_setup(); w_share_issue(); w_index()
        if codepf:
            code_prefetch(a, f'{name}_nopf', f'{name}_end', sL, 4, vLane16, vPF, 56, sT, 32)
        wait_for('xs')
        a.ins.extend(capture(x_stats))
        I('s_waitcnt vmcnt(0)')
        a.ins.extend(capture(w_sum))
        w_write()
    for r in range(160):
        I(f'v_mov_b32 v{ACC+r}, 0')
    I('s_waitcnt lgkmcnt(0)')
    if warm:
        I(f'v_mul_u32_u24 v{vT0}, 13108, v0')
        I(f'v_lshrrev_b32 v{vT0}, 16, v{vT0}')
        I(f'v_mul_u32_u24 v{vT1}, 5, v{vT0}')
        I(f'v_sub_u32 v{vT1}, v0, v{vT1}')
        I(f's_and_b32 s{sT}, s{sRB}, 7')
        I(f's_lshl_b32 s{sT}, s{sT}, 2')
        I(f's_lshl_b32 s{sT2}, s{sL}, 5')
        I(f's_add_u32 s{sT}, s{sT}, s{sT2}')
        I(f's_add_u32 s{sT}, s{sT}, 128')
        I(f'v_add_u32 v{vT0}, s{sT}, v{vT0}')
        I(f'v_mov_b32 v{vWA}, s6')
        I(f'v_mov_b32 v{vWA+1}, s7')
        I(f'v_mov_b32 v{vT2}, 3840')
        I(f's_cmp_ge_u32 s{sType}, 2')
        I(f's_cbranch_scc1 {name}_warm_qk')
        I(f's_min_u32 s{sT}, s{sCG}, 9')
        I(f's_lshl_b32 s{sT}, s{sT}, 7')
        I(f's_add_u32 s{sT}, s{sT}, 2560')
        I(f'v_mov_b32 v{vT3}, s{sT}')
        I(f's_lshl_b32 s{sT}, s{sCG}, 8')
        I(f'v_and_b32 v{26}, 1, v{vT1}')
        I(f'v_lshlrev_b32 v{26}, 7, v{26}')
        I(f'v_add_u32 v{26}, s{sT}, v{26}')
        I(f'v_cmp_gt_u32 vcc, 4, v{vT1}')
        I(f'v_mov_b32 v{27}, 3072')
        I(f'v_cndmask_b32 v{vT2}, v{vT2}, v{27}, vcc')
        I(f'v_cndmask_b32 v{vT3}, v{vT3}, v{26}, vcc')
        I(f'v_mov_b32 v{26}, s54'); I(f'v_mov_b32 v{27}, s55')
        I(f'v_cndmask_b32 v{vWA}, v{vWA}, v{26}, vcc')
        I(f'v_cndmask_b32 v{vWA+1}, v{vWA+1}, v{27}, vcc')
        I(f'v_cmp_gt_u32 vcc, 2, v{vT1}')
        I(f'v_mov_b32 v{26}, s52'); I(f'v_mov_b32 v{27}, s53')
        I(f'v_cndmask_b32 v{vWA}, v{vWA}, v{26}, vcc')
        I(f'v_cndmask_b32 v{vWA+1}, v{vWA+1}, v{27}, vcc')
        I(f's_branch {name}_warm_done')
        a.label(f'{name}_warm_qk')
        I(f's_sub_u32 s{sT}, s{sCG}, 12')
        I(f's_mul_i32 s{sT}, s{sT}, 640')
        I(f'v_lshlrev_b32 v{vT3}, 7, v{vT1}')
        I(f'v_add_u32 v{vT3}, s{sT}, v{vT3}')
        a.label(f'{name}_warm_done')
        I(f'v_mul_u32_u24 v{vT0}, v{vT0}, v{vT2}')
        I(f'v_add_u32 v{vT3}, v{vT3}, v{vT0}')
        I(f'v_lshlrev_b32 v{vWI}, 7, v{vT2}')
        I(f's_lshl_b32 s{sT}, s{sRB}, 7')
        I(f's_and_b32 s{sT2}, s{sCG}, 3')
        I(f's_lshl_b32 s{sT2}, s{sT2}, 5')
        I(f's_add_u32 s{sT}, s{sT}, s{sT2}')
        I(f's_lshl_b32 s{sT2}, s{sRP}, 4')
        I(f's_add_u32 s{sT}, s{sT}, s{sT2}')
        I(f's_mul_i32 s{sT}, s{sT}, 1280')
        I(f's_lshl_b32 s{sT2}, s{sG}, 7')
        I(f's_add_u32 s{sT}, s{sT}, s{sT2}')
        I(f's_add_u32 s{sT}, s{sT}, 256')
        I(f'v_and_b32 v{vT0}, 15, v0')
        I(f'v_mul_u32_u24 v{vT0}, 1280, v{vT0}')
        I(f'v_add_u32 v{vT0}, s{sT}, v{vT0}')
        I(f'v_mov_b32 v{26}, s4'); I(f'v_mov_b32 v{27}, s5'); I(f'v_mov_b32 v{28}, 256')
        I(f'v_cndmask_b32 v{vT3}, v{vT0}, v{vT3}, s[{sLo}:{sLo+1}]')
        I(f'v_cndmask_b32 v{vWA}, v{26}, v{vWA}, s[{sLo}:{sLo+1}]')
        I(f'v_cndmask_b32 v{vWA+1}, v{27}, v{vWA+1}, s[{sLo}:{sLo+1}]')
        I(f'v_cndmask_b32 v{vWI}, v{28}, v{vWI}, s[{sLo}:{sLo+1}]')
        I(f'v_add_co_u32 v{vWA}, vcc, v{vWA}, v{vT3}')
        I(f'v_addc_co_u32 v{vWA+1}, vcc, 0, v{vWA+1}, vcc')
        I(f's_mov_b32 s64, 0x000fffff')
        I(f's_mov_b32 s65, 0x0000ffff')
    for i in range(lin2):
        touch()
    if warm:
        for i in range(warm):
            touch()
    if 'fine' in dbg: st.mark()
    I('s_barrier')
    st.mark()

    def loop(typ):
        def rdW(fset, u, slot, sp):
            b = vWB[slot >> 1][min(u, 2)]
            rs = 256 if u < 2 else 192
            o = (slot & 1) * BSLOT + 16 * sp * rs + (32 * (u - 2) if u >= 2 else 0)
            return [f'ds_read_b64_tr_b16 {vr(Wf(fset,u),2)}, v{b} offset:{o}',
                    f'ds_read_b64_tr_b16 {vr(Wf(fset,u)+2,2)}, v{b} offset:{o+4*rs}']
        def rdX(fset, j, sp):
            return [f'ds_read_b128 {vr(XFR[fset][t])}, v{vXB[2*(j&1)+sp]} offset:{((j >> 1) & 1) * XSLOT + 4096 * t}' for t in range(2)]
        def mf(fset, u, t):
            acc = vr(Acc(t, u), 16)
            if typ == 'A' and u < 2:
                return f'v_mfma_f32_32x32x16_bf16 {acc}, {vr(XFR[fset][t])}, {vr(Wf(fset,u))}, {acc}'
            return f'v_mfma_f32_32x32x16_bf16 {acc}, {vr(Wf(fset,u))}, {vr(XFR[fset][t])}, {acc}'
        def emit_phase(mf_list, lst, f1, tail=()):
            for k in range(len(mf_list)):
                I(mf_list[k])
                if k < f1:
                    lo, hi = len(lst) * k // f1, len(lst) * (k + 1) // f1
                    for x in lst[lo:hi]:
                        if 'nord' not in dbg: I(x)
                if k == len(mf_list) - 2:
                    for x in tail: I(x)
        L = f'{name}_loop{typ}'
        for x in rdX(0, 0, 0): I(x)
        for u in range(5):
            for x in rdW(0, u, 0, 0): I(x)
        I('s_waitcnt lgkmcnt(0)')
        a.I('.p2align 3')
        a.label(L)
        order = [(u, t) for u in range(5) for t in range(2)]
        for j in range(4):
            if repf and j == 2:
                I(f's_cmp_lg_u32 s{sCnt}, 2')
                I(f's_cbranch_scc1 {L}_np')
                code_prefetch(a, f'{name}_post', f'{name}_end', sL, 4, vLane16, vPF, 56, sT, 24)
                a.label(f'{L}_np')
            if (warm or lin) and j == wj and (warm or lin + lin2 < 4):
                I(f's_cmp_le_u32 s{sCnt}, {1 + (warm if warm else lin + lin2)}')
                I(f's_cbranch_scc1 {L}_nt')
                touch()
                a.label(f'{L}_nt')
            lds = rdX(1, j, 1)
            for u in range(5):
                lds += rdW(1, u, j, 1)
            emit_phase([mf(0, u, t) for u, t in order], lds, 6, ['s_waitcnt lgkmcnt(0)'])
            I('s_barrier')
            jn = (j + 1) & 3
            lds = rdX(0, jn, 0)
            for u in range(5):
                lds += rdW(0, u, jn, 0)
            tail = ['s_waitcnt lgkmcnt(0)']
            if j == 3:
                tail += [f's_sub_u32 s{sCnt}, s{sCnt}, 1', f's_cmp_lg_u32 s{sCnt}, 0']
            emit_phase([mf(1, u, t) for u, t in order], lds, 6, tail)
        I(f's_cbranch_scc1 {L}')
    I(f's_cmp_lg_u32 s{sSec}, 2')
    I(f's_cbranch_scc1 {name}_mainQ')
    loop('A')
    I(f's_branch {name}_post')
    a.label(f'{name}_mainQ')
    loop('Q')
    a.label(f'{name}_post')
    st.mark()
    vE = 26
    sc = stmod
    def Acc1(t, i): return Acc(t, i)
    def Acc2(t, i): return Acc(t, 2 + i)
    def HP(t, i): return 164 + 12 * t + 4 * i
    vNM, vR = [vE, vE + 2], [vE + 4, vE + 6]
    CSR = vE + 8
    sGT = [52, 53]
    def common_tables():
        I(f'v_lshlrev_b32 v{vT1}, 2, v{vTok}')
        I(f's_lshl_b32 s{sT}, s{sRP}, 8')
        I(f'v_add_u32 v{vT3}, s{sT}, v{vT1}')
        for t in range(2):
            I(f'ds_read_b32 v{vNM[t]}, v{vT3} offset:{NM_LDS+128*t}')
            I(f'ds_read_b32 v{vR[t]}, v{vT3} offset:{RR_LDS+128*t}')
        I(f's_lshl_b32 s{sT}, s{sRB}, 2')
        I(f's_lshl_b32 s{sGT[0]}, s{sRP}, 1')
        I(f's_add_u32 s{sGT[0]}, s{sGT[0]}, s{sT}')
        I(f's_add_u32 s{sGT[1]}, s{sGT[0]}, 1')
    def fix(A, t, cs):
        for r in range(0, 16, 2):
            I(f'v_pk_fma_f32 {vr(A+r,2)}, {vr(cs+r,2)}, {vr(vNM[t],2)}, {vr(A+r,2)} op_sel_hi:[1,0,1]')
    I('s_barrier')
    if 'cdiag' in dbg: st.mark()
    common_tables()
    I(f'v_mov_b32 v{vT0}, 0')
    I(f'ds_read_b64 {vr(vU,2)}, v{vT0} offset:{TG_LDS}')
    I(f's_cmp_eq_u32 s{sSec}, 3')
    I(f's_cbranch_scc1 {name}_e1x')
    I(f's_cmp_eq_u32 s{sSec}, 2')
    I(f's_cbranch_scc1 {name}_e1v')
    sREC, sHS, sI0 = 54, 55, 56
    sBase = [58, 59]
    I(f's_lshl_b32 s{sT}, s{sG}, 8')
    I(f'v_lshlrev_b32 v{vT0}, 4, v{vHk}')
    I(f'v_add_u32 v{vT2}, s{sT}, v{vT0}')
    for rq in range(4):
        I(f'ds_read_b128 {vr(CSR+4*rq)}, v{vT2} offset:{CS_LDS+32*rq}')
    I(f's_cmp_eq_u32 s{sSec}, 1')
    I(f's_movk_i32 s{sREC}, {QREC}')
    I(f's_cselect_b32 s{sREC}, {KVREC}, s{sREC}')
    I(f's_cselect_b32 s{sT2}, {KV_OFF}, {QF_OFF}')
    I(f's_cselect_b32 s57, 1.0, 0x{f2u(QSCALE):08x}')
    I(f's_lshl_b32 s{sHS}, s{sREC}, 6')
    for t in range(2):
        I(f's_mul_i32 s{sBase[t]}, s{sGT[t]}, s{sREC}')
        I(f's_add_u32 s{sBase[t]}, s{sBase[t]}, s{sT2}')
    I(f's_lshl_b32 s{sI0}, s{sSub}, 4')
    I(f's_lshl_b32 s{sT}, s{sG}, 3')
    I(f's_add_u32 s{sI0}, s{sI0}, s{sT}')
    vFull, vSplit, vRS = 20, 21, [58, 58]
    I(f'v_mul_lo_u32 v{vT1}, v{vHk}, s{sREC}')
    I(f'v_lshl_add_u32 v{vFull}, v{vTok}, 4, v{vT1}')
    I(f'v_mul_lo_u32 v{vT1}, v{vHk}, s{sHS}')
    I(f'v_lshl_add_u32 v{vSplit}, v{vTok}, 3, v{vT1}')
    for i in range(2):
        I('s_waitcnt lgkmcnt(0)')
        for t in range(2):
            fix(Acc1(t, i), t, CSR)
        if i == 0:
            for rq in range(4):
                I(f'ds_read_b128 {vr(CSR+4*rq)}, v{vT2} offset:{CS_LDS+128+32*rq}')
        for t in range(2):
            I(f'v_mul_f32 v{vRS[t]}, s57, v{vR[t]}')
            A = Acc1(t, i)
            for r in range(0, 16, 2):
                I(f'v_pk_mul_f32 {vr(A+r,2)}, {vr(A+r,2)}, {vr(vRS[t],2)} op_sel_hi:[1,0]')
        A0, B0 = Acc1(0, i), Acc1(1, i)
        for rq in range(4):
            I(f'v_cvt_pk_bf16_f32 v{A0+4*rq}, v{A0+4*rq}, v{A0+4*rq+1}')
            I(f'v_cvt_pk_bf16_f32 v{A0+4*rq+1}, v{A0+4*rq+2}, v{A0+4*rq+3}')
            I(f'v_cvt_pk_bf16_f32 v{A0+4*rq+2}, v{B0+4*rq}, v{B0+4*rq+1}')
            I(f'v_cvt_pk_bf16_f32 v{A0+4*rq+3}, v{B0+4*rq+2}, v{B0+4*rq+3}')
        for rq in range(4):
            for t in range(2):
                I(f'v_dot2_f32_bf16 v{B0+2*rq+t}, v{A0+4*rq+2*t}, v{A0+4*rq+2*t}, 0')
        for rq in range(4):
            for t in range(2):
                I(f'v_dot2c_f32_bf16 v{B0+2*rq+t}, v{A0+4*rq+2*t+1}, v{A0+4*rq+2*t+1}')
        for rq in range(4):
            Q = A0 + 4 * rq
            L1, L2 = f'{name}_sp{i}{rq}', f'{name}_it{i}{rq}'
            I(f's_add_u32 s{sT}, s{sI0}, {4*i+rq}')
            I(f's_mul_i32 s{sT2}, s{sT}, 13108')
            I(f's_lshr_b32 s{sT2}, s{sT2}, 16')
            I(f's_mul_i32 s46, s{sT2}, 5')
            I(f's_sub_u32 s{sT}, s{sT}, s46')
            I(f's_lshl_b32 s{sT2}, s{sT2}, 1')
            I(f's_mul_i32 s46, s{sT2}, s{sHS}')
            I(f's_cmp_eq_u32 s{sT}, 2')
            I(f's_cbranch_scc1 {L1}')
            I(f'v_permlane32_swap_b32 v{Q}, v{Q+2}')
            I(f'v_permlane32_swap_b32 v{Q+1}, v{Q+3}')
            I(f's_sub_u32 s47, s{sHS}, 1536')
            I(f's_cmp_ge_u32 s{sT}, 3')
            I(f's_cselect_b32 s47, s47, 0')
            I(f's_lshl_b32 s{sT}, s{sT}, 9')
            I(f's_add_u32 s46, s46, s47')
            I(f's_add_u32 s46, s46, s{sT}')
            I(f's_add_u32 s46, s46, s{sBase[0]}')
            I(f'buffer_store_dwordx4 {vr(Q)}, v{vFull}, {srd(sWS)}, s46 offen{sc}')
            I(f's_branch {L2}')
            a.label(L1)
            for t in range(2):
                I(f's_add_u32 s47, s46, s{sBase[t]}')
                I(f'buffer_store_dwordx2 {vr(Q+2*t,2)}, v{vSplit}, {srd(sWS)}, s47 offen offset:1024{sc}')
            a.label(L2)
    I(f's_cmp_eq_u32 s{sSec}, 0')
    I(f's_cbranch_scc1 {name}_e1x')
    def KN(v): return Acc1(1, (v >> 2) & 1) + 2 * (v & 3) + (v >> 3)
    def K2(v): return KN(v) + 8
    I(f'v_and_b32 v{vT0}, 1, v0')
    I(f'v_cmp_eq_u32 s[46:47], 0, v{vT0}')
    I(f'v_and_b32 v{vT0}, 2, v0')
    I(f'v_cmp_eq_u32 s[48:49], 0, v{vT0}')
    for n, msk, dp in ((8, 's[46:47]', 'quad_perm:[1,0,3,2]'), (4, 's[48:49]', 'quad_perm:[2,3,0,1]')):
        for k in range(n):
            I(f'v_cndmask_b32 v{K2(k)}, v{KN(k)}, v{KN(k+n)}, {msk}')
            I(f'v_cndmask_b32 v{KN(k)}, v{KN(k+n)}, v{KN(k)}, {msk}')
        for k in range(n):
            I(f'v_max_f32_dpp v{KN(k)}, v{K2(k)}, v{KN(k)} {dp} row_mask:0xf bank_mask:0xf')
    for dp in ('row_ror:4', 'row_ror:8'):
        for k in range(4):
            I(f'v_max_f32_dpp v{KN(k)}, v{KN(k)}, v{KN(k)} {dp} row_mask:0xf bank_mask:0xf')
    for k in range(4):
        I(f'v_mov_b32 v{K2(k)}, v{KN(k)}')
    for k in range(4):
        I(f'v_permlane16_swap_b32 v{K2(k)}, v{KN(k)}')
    for k in range(4):
        I(f'v_max_f32 v{KN(k)}, v{KN(k)}, v{K2(k)}')
    I(f'v_lshrrev_b32 v{vT0}, 2, v{vTok}')
    for k in range(1, 4):
        I(f'v_cmp_eq_u32 vcc, {k}, v{vT0}')
        I(f'v_cndmask_b32 v{KN(0)}, v{KN(0)}, v{KN(k)}, vcc')
    I(f'v_bfe_u32 v{vT1}, v{vTok}, 1, 1')
    I(f'v_lshl_add_u32 v{vT0}, v{vT1}, 2, v{vT0}')
    I(f'v_add_u32 v{vT0}, s{sI0}, v{vT0}')
    I(f'v_lshl_add_u32 v{vT0}, v{vT0}, 1, v{vHk}')
    I(f'v_lshlrev_b32 v{vT0}, 8, v{vT0}')
    I(f'v_and_b32 v{vT1}, 1, v{vTok}')
    I(f'v_lshl_add_u32 v{vT0}, v{vT1}, 2, v{vT0}')
    I(f's_lshl_b32 s{sT}, s{sGT[0]}, 2')
    I(f's_add_u32 s{sT}, s{sT}, {KN_OFF}')
    I('s_mov_b32 exec_lo, 0xffff')
    I('s_mov_b32 exec_hi, 0xffff')
    I(f'buffer_store_dword v{KN(0)}, v{vT0}, {srd(sWS)}, s{sT} offen{sc}')
    I('s_mov_b64 exec, -1')
    I(f's_branch {name}_e1x')
    a.label(f'{name}_e1v')
    I(f's_lshl_b32 s{sT}, s{sG}, 8')
    I(f'v_add_u32 v{vT1}, s{sT}, v{vT1}')
    vCSV = [58, 60]
    for i in range(2):
        I(f'ds_read_b32 v{vCSV[i]}, v{vT1} offset:{CS_LDS+128*i}')
    I(f'v_lshlrev_b32 v{vT1}, 4, v{vHk}')
    I(f's_lshl_b32 s{sT}, s{sRP}, 8')
    I(f'v_add_u32 v{vT2}, s{sT}, v{vT1}')
    vVA = [20, 21]
    for i in range(2):
        I(f's_lshl_b32 s{sT}, s{sSub}, 7')
        I(f's_lshl_b32 s{sT2}, s{sG}, 6')
        I(f's_add_u32 s{sT}, s{sT}, s{sT2}')
        I(f's_add_u32 s{sT}, s{sT}, {32*i}')
        I(f'v_add_u32 v{vT0}, s{sT}, v{vTok}')
        I(f'v_mul_u32_u24 v{vT1}, 3277, v{vT0}')
        I(f'v_lshrrev_b32 v{vT1}, 16, v{vT1}')
        I(f'v_mul_u32_u24 v{vT3}, 20, v{vT1}')
        I(f'v_sub_u32 v{vT0}, v{vT0}, v{vT3}')
        I(f's_mov_b32 s{sT}, {NT*KVREC}')
        I(f'v_mul_lo_u32 v{vT1}, v{vT1}, s{sT}')
        I(f'v_mul_u32_u24 v{vT3}, 320, v{vHk}')
        I(f'v_lshl_add_u32 v{vT3}, v{vT0}, 4, v{vT3}')
        I(f'v_add_u32 v{vVA[i]}, v{vT3}, v{vT1}')
    for t in range(2):
        I(f's_mul_i32 s{58+t}, s{sGT[t]}, {KVREC}')
        I(f's_add_u32 s{58+t}, s{58+t}, {KV_OFF}')
    for t in range(2):
        for half, tab in ((0, NM_LDS), (1, RR_LDS)):
            for rq in range(4):
                I(f'ds_read_b128 {vr(CSR+4*rq)}, v{vT2} offset:{tab+128*t+32*rq}')
            I('s_waitcnt lgkmcnt(0)')
            for i in range(2):
                A = Acc1(t, i)
                for r in range(0, 16, 2):
                    if half == 0:
                        I(f'v_pk_fma_f32 {vr(A+r,2)}, {vr(CSR+r,2)}, {vr(vCSV[i],2)}, {vr(A+r,2)} op_sel_hi:[1,0,1]')
                    else:
                        I(f'v_pk_mul_f32 {vr(A+r,2)}, {vr(A+r,2)}, {vr(CSR+r,2)}')
        for i in range(2):
            A = Acc1(t, i)
            for r in range(8):
                I(f'v_cvt_pk_bf16_f32 v{A+r}, v{A+2*r}, v{A+2*r+1}')
            I(f'buffer_store_dwordx4 {vr(A)}, v{vVA[i]}, {srd(sWS)}, s{58+t} offen offset:1280{sc}')
            I(f'buffer_store_dwordx4 {vr(A+4)}, v{vVA[i]}, {srd(sWS)}, s{58+t} offen offset:1920{sc}')
    a.label(f'{name}_e1x')
    I('s_waitcnt lgkmcnt(0)')
    I(f'v_readfirstlane_b32 s{sTag}, v{vU}')
    I(f'v_readfirstlane_b32 s{sTag+1}, v{vU+1}')
    I(f's_mul_i32 s{sT}, s{sG}, 384')
    I(f'v_lshlrev_b32 v{vT0}, 4, v{vHk}')
    I(f'v_add_u32 v{vT2}, s{sT}, v{vT0}')
    CS2 = [34, 50, 66]
    for i in range(3):
        for rq in range(4):
            I(f'ds_read_b128 {vr(CS2[i]+4*rq)}, v{vT2} offset:{CS_LDS+512+128*i+32*rq}')
    for t in range(2):
        I(f's_mul_i32 s{58+t}, s{sGT[t]}, {AREC}')
    I(f's_mul_i32 s{sT}, s{sCG}, 6144')
    I(f's_mul_i32 s{sT2}, s{sG}, 3072')
    I(f's_add_u32 s{sT}, s{sT}, s{sT2}')
    I(f's_add_u32 s{sT}, s{sT}, {AF_OFF + 40*1024}')
    for t in range(2):
        I(f's_add_u32 s{58+t}, s{58+t}, s{sT}')
        I(f'v_mul_f32 v{vR[t]}, v{vR[t]}, v{vR[t]}')
    for i in range(3):
        I(f's_waitcnt lgkmcnt({8-4*i})')
        for t in range(2):
            A = Acc2(t, i)
            fix(A, t, CS2[i])
            for r in range(8):
                I(f'v_max_f32 v{A+r}, 0, v{A+r}')
            for r in range(0, 8, 2):
                I(f'v_pk_mul_f32 {vr(A+8+r,2)}, {vr(A+8+r,2)}, {vr(vR[t],2)} op_sel_hi:[1,0]')
            for r in range(0, 8, 2):
                I(f'v_pk_mul_f32 {vr(A+r,2)}, {vr(A+r,2)}, {vr(A+8+r,2)}')
            for r in range(4):
                I(f'v_cvt_pk_bf16_f32 v{HP(t,i)+r}, v{A+2*r}, v{A+2*r+1}')
    I(f's_mul_i32 s{sT}, s{sL}, 6144')
    I(f'v_add_u32 v{vT0}, s{sT}, v{vLane16}')
    for t in range(2):
        for i in range(3):
            I(f'ds_write_b128 v{vT0}, {vr(HP(t,i))} offset:{B_LDS + 3072*t + 1024*i}')
    if 'cdiag' in dbg: st.mark()
    I('s_waitcnt vmcnt(0) lgkmcnt(0)')
    if 'cdiag' in dbg: st.mark()
    I('s_barrier')
    I('s_barrier')
    if 'cdiag' in dbg:
        st.mark()
        st.end(sWave, 4, 5)
        st.on = False
    a.label(f'{name}_att')
    st.mark()
    I(f's_setprio {aprio}')
    bar = lambda: I('s_barrier')
    gen_attn(name + '_a', a=a, entry=False, stmod=stmod, ldmod=ldmod, endstamp=False, st=st, ids=False, NS=NS, al=al, apad=apad)
    if f3w:
        I(f'v_mov_b32 v240, {SYB}')
        a.label(f'{name}_f3')
        I(f'ds_read_b32 v241, v240 offset:{SY_LDS+8}')
        I('s_waitcnt lgkmcnt(0)')
        I('v_readfirstlane_b32 s4, v241')
        I('s_cmp_lt_u32 s4, 4')
        I(f's_cbranch_scc1 {name}_f3')
    else:
        I('s_barrier')
    gen_gemm3(name + '_o', a=a, fused=True, st=st, sTag=sTag, pre=pre, NR=NR)
    a.label(f'{name}_end')
    I('s_endpgm')
    return a
CODEKB = 20
```

```python
from build import assemble
from k_mega3 import gen_mega3, K1_LDS
N='parallel_sum__softmax_full_mha__glu_gated_reglu__prompt_kernel'
assemble([(N, gen_mega3(N), 256, 512, K1_LDS)], 'v_a.s', plain=True)
assemble([(N, gen_mega3(N, ldmod=''), 256, 512, K1_LDS)], 'v_b.s', plain=True)
assemble([(N, gen_mega3(N, pre=0), 256, 512, K1_LDS)], 'v_c.s', plain=True)
```

```python
from asmlib import Asm
from layout import *
from stamp import Stamps
from common import *
from k_attn import gen_attn
from k_gemm3 import gen_gemm3
import struct
def f2u(f): return struct.unpack('<I', struct.pack('<f', f))[0]

BSLOT, XSLOT = 20512, 16384
GOFF, UOFF = 8192, 6144 + 32
NM_LDS = 0
RR_LDS = NM_LDS + 512
CS_LDS = RR_LDS + 512
TG_LDS = 2304
SY_LDS = 0
ST_LDS = 2320
CP_LDS = 2560
B_LDS = 8192
X_LDS = B_LDS + 4 * BSLOT
R_LDS = X_LDS + 2 * XSLOT
SYB = R_LDS + 16384
K1_LDS = SYB + 64

def gen_mega3(name, stamps=False, kidx=0, codepf=True, stmod=' sc1', prio=True, dbg='', warm=0, wj=0, lin=0, lin2=0, ldmod='', hdefer=True, lprio=0, ctr=False, repf=True, fsleep=4, t2=12, NS=4, pre=6, pth=2, gs=64, schedv=1, aprio=3, NR=3, f3w=True, al=3, apad=0, hth=True, hdel=0, gmod=' sc1', f0early=True, inv=False, dot=True):
    a = Asm()
    I = a.I
    st = Stamps(a, stamps, kidx)
    def vr(b, n=4): return f'v[{b}:{b+n-1}]'
    vLane16, vT0, vT1, vT2, vT3, vTok, vHk = 1, 2, 3, 4, 5, 6, 7
    vU = 8
    vXB = [12, 13, 14, 15]
    vWB = [[16 + 3 * ss + i for i in range(3)] for ss in range(2)]
    WFR = [26, 46]
    XFR = [[66, 70], [74, 78 - 0]]
    XFR = [[66, 70], [74, 60 + 18]]
    ACC = 82
    vEP = 242
    def Acc(t, u): return ACC + 80 * t + 16 * u
    def Wf(s, u): return WFR[s] + 4 * u
    vD = [26, 27, 28, 29, 30]
    vDX = [31, 32, 33, 34]
    vSA = 36
    vSel = 40
    LW = 44
    LX = [64, 68]
    LCS = 72
    vPF = 248
    sWave, sRB, sCG, sG, sRP, sT, sT2, sL = 3, 28, 29, 30, 31, 33, 34, 32
    sX, sD0, sD1, sD2, sWS = 8, 12, 16, 20, 60
    sO0, sO2, sOX, sSt0, sCnt, sXi = 35, 37, 38, 39, 41, 42
    sLo = 44
    sMX = 47
    sType = 48
    sM = [36, 40, 46]
    def srd(s): return f's[{s}:{s+3}]'

    a.label(name)
    I('s_cmp_ge_u32 s2, 256')
    I(f's_cbranch_scc1 {name}_end')
    st.start()
    I(f's_load_dwordx4 s[4:7], s[0:1], {KA_X}')
    I(f's_load_dwordx4 s[52:55], s[0:1], {KA_WG}')
    I(f's_load_dwordx2 s[{sWS}:{sWS+1}], s[0:1], {KA_WS}')
    I(f's_load_dwordx2 s[24:25], s[0:1], {KA_DBG}')
    I(f'v_lshrrev_b32 v{vT0}, 6, v0')
    I(f'v_and_b32 v{vT3}, 255, v0')
    I('v_and_b32 v0, 63, v0')
    I(f'v_readfirstlane_b32 s{sWave}, v{vT0}')
    I(f'v_lshlrev_b32 v{vLane16}, 4, v0')
    I(f's_and_b32 s{sT}, s2, 7')
    I(f's_lshr_b32 s{sT2}, s2, 3')
    I(f's_and_b32 s{sRB}, s{sT}, 1')
    I(f's_lshl_b32 s{sRB}, s{sRB}, 3')
    I(f's_and_b32 s{sCG}, s{sT2}, 7')
    I(f's_add_u32 s{sRB}, s{sRB}, s{sCG}')
    I(f's_lshr_b32 s{sCG}, s{sT}, 1')
    I(f's_lshl_b32 s{sCG}, s{sCG}, 2')
    I(f's_lshr_b32 s{sT2}, s{sT2}, 3')
    I(f's_add_u32 s{sCG}, s{sCG}, s{sT2}')
    I(f's_and_b32 s{sL}, s{sWave}, 3')
    I(f's_lshr_b32 s{sG}, s{sL}, 1')
    I(f's_and_b32 s{sRP}, s{sL}, 1')
    I(f's_cmp_lt_u32 s{sWave}, 4')
    I(f's_cbranch_scc1 {name}_rd')
    I(f'v_lshrrev_b32 v{vT0}, 3, v0')
    I(f'v_lshrrev_b32 v{vT1}, 4, v0')
    I(f'v_xor_b32 v{vT1}, v{vT1}, v0')
    I(f'v_and_b32 v{vT1}, 7, v{vT1}')
    I(f'v_mul_u32_u24 v{vT0}, 1280, v{vT0}')
    I(f'v_lshl_add_u32 v{vDX[0]}, v{vT1}, 4, v{vT0}')
    I(f'v_xor_b32 v{vT1}, 4, v{vT1}')
    I(f'v_lshl_add_u32 v{vDX[1]}, v{vT1}, 4, v{vT0}')
    I(f'v_add_u32 v{vDX[2]}, {16*1280-2048}, v{vDX[0]}')
    I(f'v_add_u32 v{vDX[3]}, {24*1280-3072}, v{vDX[1]}')
    I(f'v_add_u32 v{vDX[1]}, {8*1280-1024}, v{vDX[1]}')
    I(f's_lshl_b32 s{sOX}, s{sRB}, 7')
    I(f's_lshl_b32 s{sT}, s{sL}, 5')
    I(f's_add_u32 s{sOX}, s{sOX}, s{sT}')
    I(f's_mul_i32 s{sOX}, s{sOX}, 1280')
    I(f's_lshl_b32 s{sMX}, s{sL}, 12')
    I(f's_add_u32 s{sMX}, s{sMX}, {X_LDS}')
    I(f's_mov_b32 s{sX+2}, {S*D*2}')
    for s in (sX, sD0, sD1, sD2):
        I(f's_mov_b32 s{s+3}, 0x20000')
    I(f's_mov_b32 s{sD2+2}, {D*3*D*2}')
    I(f's_mov_b32 s{sD0+2}, {D*F*2}')
    I(f's_mov_b32 s{sXi}, 0')
    I(f'v_lshrrev_b32 v{vT0}, 4, v0')
    I(f'v_lshlrev_b32 v{vT1}, 2, v{vT0}')
    I(f'v_xor_b32 v{vT1}, v{vT1}, v0')
    I(f'v_and_b32 v{vT1}, 15, v{vT1}')
    I(f'v_mul_u32_u24 v{vT0}, 3840, v{vT0}')
    I(f'v_lshl_add_u32 v{vD[0]}, v{vT1}, 4, v{vT0}')
    I(f'v_add_u32 v{vD[1]}, {4*3840-1024}, v{vD[0]}')
    for j in range(3):
        I(f'v_add_u32 v{vT0}, {64*j}, v0')
        I(f'v_mul_u32_u24 v{vT1}, 5462, v{vT0}')
        I(f'v_lshrrev_b32 v{vT1}, 16, v{vT1}')
        I(f'v_mul_u32_u24 v{vT1}, {3072-192}, v{vT1}')
        I(f'v_lshl_add_u32 v{vD[2+j]}, v{vT0}, 4, v{vT1}')
        if j:
            I(f'v_subrev_u32 v{vD[2+j]}, {1024*j}, v{vD[2+j]}')
    I(f's_mul_i32 s{sO2}, s{sL}, {8*3840}')
    I(f's_lshl_b32 s{sT}, s{sCG}, 8')
    I(f's_add_u32 s{sO2}, s{sO2}, s{sT}')
    I(f's_mul_i32 s{sO0}, s{sRP}, {16*3072}')
    I(f's_mul_i32 s{sT}, s{sCG}, 192')
    I(f's_add_u32 s{sO0}, s{sO0}, s{sT}')
    I(f's_lshl_b32 s{sM[0]}, s{sL}, 11')
    I(f's_mul_i32 s{sM[1]}, s{sRP}, 3072')
    I(f's_mul_i32 s{sT}, s{sG}, {UOFF}')
    I(f's_add_u32 s{sM[1]}, s{sM[1]}, s{sT}')
    I(f's_add_u32 s{sM[1]}, s{sM[1]}, {GOFF}')
    I(f's_cmp_eq_u32 s{sCG}, 15')
    I(f's_cselect_b32 s{sD2+2}, 0, s{sD2+2}')
    I('s_waitcnt lgkmcnt(0)')
    I(f's_cmp_eq_u32 s{sG}, 0')
    I(f's_cselect_b32 s{sD0}, s52, s54')
    I(f's_cselect_b32 s{sD0+1}, s53, s55')
    I(f's_mov_b32 s{sD2}, s6'); I(f's_mov_b32 s{sD2+1}, s7')
    I(f's_mov_b32 s{sX}, s4'); I(f's_mov_b32 s{sX+1}, s5')

    q = []
    def V(text, tag):
        I(text); q.append(tag)
    def wait_for(*tags, lgkm=False):
        last = max((i for i, t in enumerate(q) if t in tags), default=-1)
        n = len(q) - 1 - last
        if last >= 0:
            I(f's_waitcnt vmcnt({min(n, 63)})' + (' lgkmcnt(0)' if lgkm else ''))
            del q[:last + 1]
        elif lgkm:
            I('s_waitcnt lgkmcnt(0)')
    def IQ(x, tag):
        if x.startswith('buffer_load'): V(x, tag)
        else: I(x)
    def dmaB(j):
        slot = j & 3
        for x in [
            f's_add_u32 m0, s{sM[0]}, {B_LDS+slot*BSLOT}',
            f's_nop 0',
            f'buffer_load_dwordx4 v{vD[0]}, {srd(sD2)}, s{sO2} offen lds',
            f'buffer_load_dwordx4 v{vD[1]}, {srd(sD2)}, s{sO2} offen offset:1024 lds',
            f's_add_u32 m0, s{sM[1]}, {B_LDS+slot*BSLOT}',
            f's_add_u32 s{sO2}, s{sO2}, {32*3840}',
            f'buffer_load_dwordx4 v{vD[2]}, {srd(sD0)}, s{sO0} offen lds',
            f'buffer_load_dwordx4 v{vD[3]}, {srd(sD0)}, s{sO0} offen offset:1024 lds',
            f'buffer_load_dwordx4 v{vD[4]}, {srd(sD0)}, s{sO0} offen offset:2048 lds',
            f's_add_u32 s{sO0}, s{sO0}, {32*3072}']: IQ(x, f'B{j}')
    def dmaX(i):
        slot = i & 1
        for x in [
            f's_cmp_ge_u32 s{sXi}, 10',
            f's_cselect_b32 s{sX+2}, 0, s{sX+2}',
            f's_add_u32 m0, s{sMX}, {slot*XSLOT}',
            f's_add_u32 s{sXi}, s{sXi}, 1',
            f'buffer_load_dwordx4 v{vDX[0]}, {srd(sX)}, s{sOX} offen lds',
            f'buffer_load_dwordx4 v{vDX[1]}, {srd(sX)}, s{sOX} offen offset:1024 lds',
            f'buffer_load_dwordx4 v{vDX[2]}, {srd(sX)}, s{sOX} offen offset:2048 lds',
            f'buffer_load_dwordx4 v{vDX[3]}, {srd(sX)}, s{sOX} offen offset:3072 lds',
            f's_add_u32 s{sOX}, s{sOX}, 128']: IQ(x, f'X{i}')
    sRU, sRK, sRC = 64, 65, 66
    dmaX(0); dmaB(0)
    if 'fine' in dbg: st.mark()
    dmaB(1)
    if 'fine' in dbg: st.mark()
    a.label(f'{name}_rd')
    npf = 0
    sSec, sSub = 48, 39
    I(f's_mul_i32 s{sSec}, s{sCG}, 13108')
    I(f's_lshr_b32 s{sSec}, s{sSec}, 16')
    I(f's_mul_i32 s{sT}, s{sSec}, 5')
    I(f's_sub_u32 s{sSub}, s{sCG}, s{sT}')
    I(f's_cmp_ge_u32 s{sWave}, 4')
    I(f's_cbranch_scc1 {name}_nopf')
    vWA, vWI = 244, 246
    def touch(mask='s[64:65]'):
        for x in [f's_mov_b64 exec, {mask}',
                  f'global_load_dword v{vPF}, v[{vWA}:{vWA+1}], off',
                  's_mov_b64 exec, -1',
                  f'v_add_co_u32 v{vWA}, vcc, v{vWA}, v{vWI}',
                  f'v_addc_co_u32 v{vWA+1}, vcc, 0, v{vWA+1}, vcc']:
            I(x, tag='pf')
    if lin:
        I(f's_lshl_b32 s{sT}, s2, 2')
        I(f's_add_u32 s{sT}, s{sT}, s{sL}')
        I(f'v_lshrrev_b32 v{vT0}, 3, v0')
        I(f'v_and_b32 v{vT1}, 7, v0')
        I(f'v_cmp_gt_u32 vcc, 4, v{vT0}')
        I(f'v_cndmask_b32 v{vT1}, v{vT1}, v0, vcc')
        I(f'v_mov_b32 v{vT2}, 20')
        I(f'v_mov_b32 v{vWI}, {S*D*2}')
        I('s_waitcnt lgkmcnt(0)')
        I(f'v_mov_b32 v{vWA}, s4'); I(f'v_mov_b32 v{vWA+1}, s5')
        for grp, n, qq, p in ((4, 5, 160*3840, 6), (5, 4, 160*3072, 52), (6, 4, 160*3072, 54)):
            I(f'v_cmp_eq_u32 vcc, {grp}, v{vT0}')
            I(f'v_mov_b32 v{vU}, s{p}'); I(f'v_mov_b32 v{vU+1}, s{p+1}'); I(f'v_mov_b32 v{vU+2}, {qq}')
            I(f'v_cndmask_b32 v{vWA}, v{vWA}, v{vU}, vcc')
            I(f'v_cndmask_b32 v{vWA+1}, v{vWA+1}, v{vU+1}, vcc')
            I(f'v_cndmask_b32 v{vWI}, v{vWI}, v{vU+2}, vcc')
            I(f'v_mov_b32 v{vU}, {n}')
            I(f'v_cndmask_b32 v{vT2}, v{vT2}, v{vU}, vcc')
        I(f'v_mul_lo_u32 v{vT2}, v{vT2}, s{sT}')
        I(f'v_add_u32 v{vT2}, v{vT2}, v{vT1}')
        I(f'v_lshlrev_b32 v{vT2}, 7, v{vT2}')
        I(f'v_subrev_u32 v{vT1}, 128, v{vWI}')
        I(f'v_min_u32 v{vT2}, v{vT2}, v{vT1}')
        I(f'v_add_co_u32 v{vWA}, vcc, v{vWA}, v{vT2}')
        I(f'v_addc_co_u32 v{vWA+1}, vcc, 0, v{vWA+1}, vcc')
        I(f's_mov_b32 s64, 0')
        I(f's_mov_b32 s65, 0x000f0f1f')
        I(f's_mov_b32 s66, 0x000fffff')
        I(f's_mov_b32 s67, 0x000f0f1f')
        touch('s[66:67]')
        for i in range(lin - 1):
            touch()
    if codepf and schedv != 2:
        code_prefetch(a, f'{name}_nopf', f'{name}_end', sL, 4, vLane16, vPF, 56, sT, 32)
    a.label(f'{name}_nopf')
    I(f'v_and_b32 v{vTok}, 31, v0')
    I(f'v_lshrrev_b32 v{vHk}, 5, v0')
    I(f's_lshl_b32 s{sT}, s{sRP}, 1')
    I(f's_cmp_ge_u32 s{sWave}, 4')
    I(f's_cselect_b32 s{sT}, s{sL}, s{sT}')
    I(f's_cselect_b32 s{sT2}, s{sRP}, 0')
    I(f's_lshl_b32 s{sT}, s{sT}, 12')
    I(f's_add_u32 s{sT}, s{sT}, {X_LDS}')
    I(f'v_bfe_u32 v{vT1}, v0, 1, 3')
    I(f'v_xor_b32 v{vT1}, v{vT1}, v{vHk}')
    I(f'v_lshlrev_b32 v{vT0}, 7, v{vTok}')
    I(f'v_add_u32 v{vT0}, s{sT}, v{vT0}')
    for ks in range(4):
        I(f'v_xor_b32 v{vU}, {2*ks}, v{vT1}')
        I(f'v_lshl_add_u32 v{vXB[ks]}, v{vU}, 4, v{vT0}')
    I(f'v_bfe_u32 v{vT0}, v0, 2, 2')
    I(f'v_lshl_add_u32 v{vT1}, v{vHk}, 3, v{vT0}')
    I(f's_lshl_b32 s{sT2}, s{sT2}, 4')
    I(f'v_add_u32 v{vT1}, s{sT2}, v{vT1}')
    I(f'v_and_b32 v{vT2}, 3, v0')
    I(f'v_lshlrev_b32 v{vT2}, 3, v{vT2}')
    I(f'v_add_u32 v{vT2}, {B_LDS}, v{vT2}')
    vG16 = vU
    I(f'v_bfe_u32 v{vG16}, v0, 4, 1')
    W0 = vWB[0]
    I(f'v_lshlrev_b32 v{vU+1}, 8, v{vT1}')
    I(f'v_lshl_add_u32 v{vU+1}, v{vG16}, 5, v{vU+1}')
    I(f'v_add_u32 v{vU+1}, v{vU+1}, v{vT2}')
    I(f's_lshl_b32 s{sT}, s{sG}, 1')
    I(f'v_xor_b32 v{vU+2}, s{sT}, v{vT0}')
    I(f'v_lshl_add_u32 v{W0[0]}, v{vU+2}, 6, v{vU+1}')
    I(f'v_xor_b32 v{vU+2}, 1, v{vU+2}')
    I(f'v_lshl_add_u32 v{W0[1]}, v{vU+2}, 6, v{vU+1}')
    I(f'v_mul_u32_u24 v{W0[2]}, 192, v{vT1}')
    I(f'v_mul_u32_u24 v{vU+1}, {UOFF}, v{vG16}')
    I(f'v_add3_u32 v{W0[2]}, v{W0[2]}, v{vU+1}, v{vT2}')
    I(f's_mul_i32 s{sT}, s{sG}, 96')
    I(f's_add_u32 s{sT}, s{sT}, {GOFF}')
    I(f'v_add_u32 v{W0[2]}, s{sT}, v{W0[2]}')
    for i in range(3):
        I(f'v_add_u32 v{vWB[1][i]}, {2*BSLOT}, v{W0[i]}')
    I(f's_mov_b32 s{sCnt}, 5')
    I(f's_cmp_lt_u32 s{sWave}, 4')
    I(f's_cbranch_scc1 {name}_comp')
    I(f's_setprio {lprio}')
    I(f's_mov_b32 s{sLo}, -1')
    I(f's_mov_b32 s{sLo+1}, 0')
    sDb, sTag = 24, 50
    vXS, vLA, vWS, vWSH, vCA, vS, vP, vTg, vFO = 84, 94, 96, 100, 140, 148, 176, 216, 218
    I(f's_mov_b32 s{sDb+2}, 256'); I(f's_mov_b32 s{sDb+3}, 0x20000')
    I(f's_mov_b32 s{sWS+2}, {WS_END}'); I(f's_mov_b32 s{sWS+3}, 0x20000')
    I(f's_or_b32 s{sT}, s2, s{sL}')
    I(f's_cmp_lg_u32 s{sT}, 0')
    I(f's_cbranch_scc1 {name}_notag')
    tag_publish(a, sDb, sTag, vTg, vT0)
    a.label(f'{name}_notag')
    I(f'v_mov_b32 v{vFO+1}, {SYB}')
    I(f'v_mov_b32 v{vP}, 0'); I(f'v_mov_b32 v{vP+1}, 0')
    I(f'ds_write_b64 v{vFO+1}, {vr(vP,2)}')
    I(f'ds_write_b64 v{vFO+1}, {vr(vP,2)} offset:8')
    wait_for('X0', 'B0', lgkm=True)
    I('s_barrier')
    st.mark()
    dmaB(2); dmaX(1); dmaB(3)
    vXA = vT3
    def share_setup():
        I(f's_lshl_b32 s{sT}, s{sRB}, 7')
        I(f's_lshl_b32 s{sT2}, s{sCG}, 3')
        I(f's_add_u32 s{sT}, s{sT}, s{sT2}')
        I(f's_lshl_b32 s{sT2}, s{sL}, 1')
        I(f's_add_u32 s{sT}, s{sT}, s{sT2}')
        I(f's_mul_i32 s43, s{sT}, 1280')
        I(f'v_mul_u32_u24 v{vXA}, 1280, v{vHk}')
        I(f'v_lshl_add_u32 v{vXA}, v{vTok}, 3, v{vXA}')
        for j in range(5):
            V(f'buffer_load_dwordx2 {vr(vXS+2*j,2)}, v{vXA}, {srd(sX)}, s43 offen offset:{256*j}', 'xs')
        I(f's_min_u32 s{sT}, s{sCG}, 14')
        I(f's_lshl_b32 s{sT}, s{sT}, 8')
        I(f'v_add_u32 v{vT0}, s{sT}, v{vLane16}')
        I(f's_mul_i32 s{sT}, s{sCG}, 192')
        I(f's_sub_u32 s{sT2}, s{sT}, {16*16}')
        I(f'v_add_u32 v{vT1}, s{sT2}, v{vLane16}')
        I(f's_sub_u32 s{sT2}, s{sT}, {28*16}')
        I(f'v_add_u32 v{vT2}, s{sT2}, v{vLane16}')
        I(f'v_mov_b32 v{vLA}, s54'); I(f'v_mov_b32 v{vLA+1}, s55'); I(f'v_mov_b32 v{vWS}, 3072')
        I(f'v_cmp_gt_u32 vcc, 28, v0')
        I(f'v_mov_b32 v{vU}, s52'); I(f'v_mov_b32 v{vU+1}, s53')
        I(f'v_cndmask_b32 v{vT2}, v{vT2}, v{vT1}, vcc')
        I(f'v_cndmask_b32 v{vLA}, v{vLA}, v{vU}, vcc')
        I(f'v_cndmask_b32 v{vLA+1}, v{vLA+1}, v{vU+1}, vcc')
        I(f'v_cmp_gt_u32 vcc, 16, v0')
        I(f'v_mov_b32 v{vU}, s6'); I(f'v_mov_b32 v{vU+1}, s7'); I(f'v_mov_b32 v{vU+2}, 3840')
        I(f'v_cndmask_b32 v{vT2}, v{vT2}, v{vT0}, vcc')
        I(f'v_cndmask_b32 v{vLA}, v{vLA}, v{vU}, vcc')
        I(f'v_cndmask_b32 v{vLA+1}, v{vLA+1}, v{vU+1}, vcc')
        I(f'v_cndmask_b32 v{vWS}, v{vWS}, v{vU+2}, vcc')
        I(f's_mul_i32 s{sT}, s{sRB}, 40')
        I(f's_mul_i32 s{sT2}, s{sL}, 10')
        I(f's_add_u32 s{sT}, s{sT}, s{sT2}')
        I(f'v_mul_lo_u32 v{vT0}, v{vWS}, s{sT}')
        I(f'v_add_u32 v{vT2}, v{vT2}, v{vT0}')
        I(f'v_add_co_u32 v{vLA}, vcc, v{vLA}, v{vT2}')
        I(f'v_addc_co_u32 v{vLA+1}, vcc, 0, v{vLA+1}, vcc')
    sc = stmod
    def w_share_issue(i0=0, i1=10):
        I('s_mov_b32 exec_hi, 0xff')
        for i in range(i0, i1):
            V(f'global_load_dwordx4 {vr(vWSH+4*i)}, v[{vLA}:{vLA+1}], off', 'ws')
            if i < 9:
                I(f'v_add_co_u32 v{vLA}, vcc, v{vLA}, v{vWS}')
                I(f'v_addc_co_u32 v{vLA+1}, vcc, 0, v{vLA+1}, vcc')
        I('s_mov_b64 exec, -1')
    def red32(r, t):
        for d in ('quad_perm:[1,0,3,2]', 'quad_perm:[2,3,0,1]', 'row_half_mirror', 'row_mirror'):
            I(f'v_add_f32_dpp v{r}, v{r}, v{r} {d} row_mask:0xf bank_mask:0xf')
        I(f'v_mov_b32 v{t}, v{r}')
        I(f'v_permlane16_swap_b32 v{t}, v{r}')
        I(f'v_add_f32 v{r}, v{r}, v{t}')
    def capture(fn):
        keep = a.ins
        a.ins = []
        fn()
        got, a.ins = a.ins, keep
        return got
    def x_stats():
        m, t = vS + 20, vS + 21
        v2, t2 = vS + 22, vS + 23
        for k in range(10):
            I(f'v_lshlrev_b32 v{vS+2*k}, 16, v{vXS+k}')
            I(f'v_and_b32 v{vS+2*k+1}, 0xffff0000, v{vXS+k}')
        I(f'v_add_f32 v{m}, v{vS}, v{vS+1}')
        I(f'v_add_f32 v{t}, v{vS+2}, v{vS+3}')
        for k in range(4, 20, 2):
            I(f'v_add_f32 v{m}, v{m}, v{vS+k}')
            I(f'v_add_f32 v{t}, v{t}, v{vS+k+1}')
        I(f'v_add_f32 v{m}, v{m}, v{t}')
        red32(m, t)
        I(f'v_mul_f32 v{m}, 0x{f2u(-1.0/640):08x}, v{m}')
        for k in range(20):
            I(f'v_add_f32 v{vS+k}, v{m}, v{vS+k}')
        I(f'v_mul_f32 v{v2}, v{vS}, v{vS}')
        I(f'v_mul_f32 v{t2}, v{vS+1}, v{vS+1}')
        for k in range(2, 20, 2):
            I(f'v_fmac_f32 v{v2}, v{vS+k}, v{vS+k}')
            I(f'v_fmac_f32 v{t2}, v{vS+k+1}, v{vS+k+1}')
        I(f'v_add_f32 v{v2}, v{v2}, v{t2}')
        red32(v2, t2)
        I(f'v_mul_f32 v{v2}, 0x{f2u(1.0/640):08x}, v{v2}')
        I(f'v_cvt_pk_bf16_f32 v{t}, v{v2}, v{m}')
        I(f'v_and_b32 v{m}, 0xffff0000, v{t}')
        I(f'v_lshlrev_b32 v{t}, 16, v{t}')
        I(f'v_add_f32 v{t}, 0x{f2u(1e-5):08x}, v{t}')
        I(f'v_cvt_pk_bf16_f32 v{t}, v{t}, v{t}')
        I(f'v_lshlrev_b32 v{t}, 16, v{t}')
        I(f'v_sqrt_f32 v{t}, v{t}')
        I(f'v_cvt_pk_bf16_f32 v{t}, v{t}, v{t}')
        I(f'v_lshlrev_b32 v{t}, 16, v{t}')
        I(f'v_rcp_f32 v{t}, v{t}')
        I(f'v_lshlrev_b32 v{v2}, 3, v{vHk}')
        I(f'v_add_u32 v{v2}, s49, v{v2}')
        I(f'ds_write_b64 v{v2}, {vr(m,2)} offset:{ST_LDS}')
    vCI = vS + 24
    def w_sum_dot():
        I(f'v_mov_b32 v{vS}, 0x00003f80')
        I(f'v_mov_b32 v{vS+1}, 0x3f800000')
        for d in range(8):
            I(f'v_mov_b32 v{vCA+d}, 0')
        for i in range(10):
            for d in range(4):
                src = vWSH + 4 * i + d
                I(f'v_dot2c_f32_bf16 v{vCA+2*d}, v{src}, v{vS}')
                I(f'v_dot2c_f32_bf16 v{vCA+2*d+1}, v{src}, v{vS+1}')
    def w_sum():
        for i in range(10):
            for d in range(4):
                src = vWSH + 4 * i + d
                if i == 0:
                    I(f'v_lshlrev_b32 v{vCA+2*d}, 16, v{src}')
                    I(f'v_and_b32 v{vCA+2*d+1}, 0xffff0000, v{src}')
                else:
                    t = vS + 2 * d
                    I(f'v_lshlrev_b32 v{t}, 16, v{src}')
                    I(f'v_and_b32 v{t+1}, 0xffff0000, v{src}')
                    I(f'v_add_f32 v{vCA+2*d}, v{vCA+2*d}, v{t}')
                    I(f'v_add_f32 v{vCA+2*d+1}, v{vCA+2*d+1}, v{t+1}')
    def w_index():
        I(f'v_subrev_u32 v{vT0}, 16, v0')
        I(f'v_subrev_u32 v{vT1}, 28, v0')
        I(f'v_cmp_gt_u32 vcc, 28, v0')
        I(f'v_cndmask_b32 v{vT0}, v{vT1}, v{vT0}, vcc')
        I(f'v_cndmask_b32 v{vT2}, 16, 0, vcc')
        I(f'v_lshrrev_b32 v{vT1}, 1, v{vT0}')
        I(f'v_lshl_add_u32 v{vT2}, v{vT1}, 5, v{vT2}')
        I(f'v_and_b32 v{vT0}, 1, v{vT0}')
        I(f'v_lshl_add_u32 v{vT2}, v{vT0}, 3, v{vT2}')
        I(f'v_add_u32 v{vT2}, 128, v{vT2}')
        I(f'v_lshlrev_b32 v{vT0}, 3, v0')
        I(f'v_cmp_gt_u32 vcc, 16, v0')
        I(f'v_cndmask_b32 v{vT2}, v{vT2}, v{vT0}, vcc')
        I(f'v_lshlrev_b32 v{vT2}, 2, v{vT2}')
        I(f's_mul_i32 s{sT}, s{sL}, 1280')
        I(f'v_add_u32 v{vCI}, s{sT}, v{vT2}')
        I(f's_lshl_b32 s49, s{sL}, 4')
    def w_write():
        I('s_mov_b32 exec_hi, 0xff')
        I(f'ds_write_b128 v{vCI}, {vr(vCA)} offset:{CP_LDS}')
        I(f'ds_write_b128 v{vCI}, {vr(vCA+4)} offset:{CP_LDS+16}')
        I('s_mov_b64 exec, -1')
    xs_l, ws_l = capture(x_stats), capture(w_sum_dot if dot else w_sum)
    def sl(lst, k, n, w=None):
        def g():
            if w: wait_for(w)
            a.ins.extend(lst[len(lst) * k // n: len(lst) * (k + 1) // n])
        return g
    def only0(fn, lab):
        I(f's_cmp_lg_u32 s{sL}, 0')
        I(f's_cbranch_scc1 {lab}')
        n0 = len(q)
        fn()
        del q[n0:]
        a.label(lab)
    def publish_store():
        for h, (n, off) in enumerate(((64, 0), (16, 1024))):
            for w in range(4):
                I(f'ds_read_b128 {vr(vP+16*h+4*w)}, v{vLane16} offset:{CP_LDS+1280*w+off}')
        I(f'ds_read_b128 {vr(vP+32)}, v{vLane16} offset:{ST_LDS}')
        I(f's_lshl_b32 s{sT}, s{sCG}, 4')
        I(f's_add_u32 s{sT}, s{sT}, s{sRB}')
        I(f's_mul_i32 s{sT}, s{sT}, 1280')
        I(f's_add_u32 s{sT}, s{sT}, {CSQ_OFF}')
        I(f's_lshl_b32 s{sT2}, s{sRB}, 10')
        I(f's_lshl_b32 s43, s{sCG}, 6')
        I(f's_add_u32 s{sT2}, s{sT2}, s43')
        I(f's_add_u32 s{sT2}, s{sT2}, {RSQ_OFF}')
        I('s_waitcnt lgkmcnt(0)')
        for h in range(2):
            b = vP + 16 * h
            for r in range(0, 4, 2):
                I(f'v_pk_add_f32 {vr(b+r,2)}, {vr(b+r,2)}, {vr(b+4+r,2)}')
                I(f'v_pk_add_f32 {vr(b+8+r,2)}, {vr(b+8+r,2)}, {vr(b+12+r,2)}')
                I(f'v_pk_add_f32 {vr(b+r,2)}, {vr(b+r,2)}, {vr(b+8+r,2)}')
        V(f'buffer_store_dwordx4 {vr(vP)}, v{vLane16}, {srd(sWS)}, s{sT} offen{sc}', 'pub')
        I('s_mov_b64 exec, 0xffff')
        V(f'buffer_store_dwordx4 {vr(vP+16)}, v{vLane16}, {srd(sWS)}, s{sT} offen offset:1024{sc}', 'pub')
        I('s_mov_b64 exec, 0xf')
        V(f'buffer_store_dwordx4 {vr(vP+32)}, v{vLane16}, {srd(sWS)}, s{sT2} offen{sc}', 'pub')
        I('s_mov_b64 exec, -1')
    def tag_issue():
        I(f'v_mov_b32 v{vT0}, 0')
        V(f'buffer_load_dwordx2 {vr(vTg,2)}, v{vT0}, {srd(sDb)}, 0 offen sc1', 'tag')
    def tag_check():
        wait_for('tag')
        I(f'v_readfirstlane_b32 s{sTag}, v{vTg}')
        I(f'v_readfirstlane_b32 s{sTag+1}, v{vTg+1}')
        I(f's_cmp_lg_u32 s{sTag}, 0')
        I(f's_cbranch_scc1 {name}_tagok')
        tag_get(a, f'{name}_tg', sDb, sTag, vTg, vT0, sT)
        a.label(f'{name}_tagok')
        I(f'v_mov_b32 v{vTg}, s{sTag}')
        I(f'v_mov_b32 v{vTg+1}, s{sTag+1}')
        I(f'v_mov_b32 v{vT0}, 0')
        I(f'ds_write_b64 v{vT0}, {vr(vTg,2)} offset:{TG_LDS}')
    sIdx = 49
    def setflag(kind):
        I(f's_lshl_b32 s{sIdx}, s{sRB}, 4')
        I(f's_add_u32 s{sIdx}, s{sIdx}, s{sCG}')
        flag_set(a, sWS, sTag, kind, sIdx, vTg, vT0, sT)
    def poll_issue():
        I(f'v_and_b32 v{vT0}, 15, v0')
        I(f'v_lshlrev_b32 v{vT1}, 4, v{vT0}')
        I(f'v_add_u32 v{vT1}, s{sCG}, v{vT1}')
        I(f's_lshl_b32 s{sT}, s{sRB}, 4')
        I(f'v_add_u32 v{vT0}, s{sT}, v{vT0}')
        I(f'v_and_b32 v{vT2}, 16, v0')
        I(f'v_cmp_eq_u32 vcc, 0, v{vT2}')
        I(f'v_cndmask_b32 v{vFO}, v{vT0}, v{vT1}, vcc')
        I(f'v_lshlrev_b32 v{vFO}, 7, v{vFO}')
        I(f's_mov_b32 s{sT}, {FL_OFF}')
        V(f'buffer_load_dwordx2 {vr(vP,2)}, v{vFO}, {srd(sWS)}, s{sT} offen sc1', 'poll')
    def poll_check_and_load():
        wait_for('poll')
        I(f'v_xor_b32 v{vP}, s{sTag}, v{vP}')
        I(f'v_xor_b32 v{vP+1}, s{sTag+1}, v{vP+1}')
        I(f'v_or_b32 v{vP}, v{vP}, v{vP+1}')
        I(f'v_cmp_ne_u32 vcc, 0, v{vP}')
        I(f's_cbranch_vccz {name}_stok')
        flag_wait(a, f'{name}_stw', sWS, sTag, 0, 1, vFO, vP, sT2, sT)
        a.label(f'{name}_stok')
        I(f'v_lshrrev_b32 v{vT0}, 4, v0')
        I(f'v_mul_u32_u24 v{vT0}, {1280-256}, v{vT0}')
        I(f'v_add_u32 v{vT0}, v{vT0}, v{vLane16}')
        I(f's_mul_i32 s{sT}, s{sCG}, {16*1280}')
        I(f's_add_u32 s{sT}, s{sT}, {CSQ_OFF}')
        I(f's_lshl_b32 s{sT2}, s{sL}, 8')
        I(f's_add_u32 s{sT2}, s{sT2}, s{sT}')
        for i in range(4):
            V(f'buffer_load_dwordx4 {vr(vP+4*i)}, v{vT0}, {srd(sWS)}, s{sT2} offen sc1', 'cs')
            V(f'buffer_load_dwordx4 {vr(vP+16+4*i)}, v{vT0}, {srd(sWS)}, s{sT} offen offset:1024 sc1', 'cs')
            if i < 3:
                I(f's_add_u32 s{sT}, s{sT}, {4*1280}')
                I(f's_add_u32 s{sT2}, s{sT2}, {4*1280}')
        I(f's_lshl_b32 s{sT}, s{sRB}, 10')
        I(f's_add_u32 s{sT}, s{sT}, {RSQ_OFF}')
        V(f'buffer_load_dwordx4 {vr(vP+32)}, v{vLane16}, {srd(sWS)}, s{sT} offen sc1', 'cs')
    def tables():
        wait_for('cs')
        for h in range(2):
            b = vP + 16 * h
            for r in range(0, 4, 2):
                I(f'v_pk_add_f32 {vr(b+r,2)}, {vr(b+r,2)}, {vr(b+4+r,2)}')
                I(f'v_pk_add_f32 {vr(b+8+r,2)}, {vr(b+8+r,2)}, {vr(b+12+r,2)}')
                I(f'v_pk_add_f32 {vr(b+r,2)}, {vr(b+r,2)}, {vr(b+8+r,2)}')
        for sw in ('v_permlane16_swap_b32', 'v_permlane32_swap_b32'):
            for h in range(2):
                for r in range(4):
                    I(f'v_mov_b32 v{vP+16*h+4+r}, v{vP+16*h+r}')
            for h in range(2):
                for r in range(4):
                    I(f'{sw} v{vP+16*h+4+r}, v{vP+16*h+r}')
            for h in range(2):
                for r in range(4):
                    I(f'v_add_f32 v{vP+16*h+r}, v{vP+16*h+r}, v{vP+16*h+4+r}')
        I(f'v_and_b32 v{vT0}, 15, v0')
        I(f'v_lshlrev_b32 v{vT0}, 4, v{vT0}')
        I(f's_lshl_b32 s{sT}, s{sL}, 8')
        I(f'v_add_u32 v{vT1}, s{sT}, v{vT0}')
        I(f'ds_write_b128 v{vT1}, {vr(vP)} offset:{CS_LDS}')
        I(f'ds_write_b128 v{vT0}, {vr(vP+16)} offset:{CS_LDS+1024}')
        I(f'v_lshlrev_b32 v{vT0}, 3, v0')
        I(f'v_mov_b32 v{vP+36}, v{vP+33}')
        I(f'v_mov_b32 v{vP+33}, v{vP+34}')
        I(f'v_mov_b32 v{vP+37}, v{vP+35}')
        I(f'ds_write_b64 v{vT0}, {vr(vP+32,2)} offset:{NM_LDS}')
        I(f'ds_write_b64 v{vT0}, {vr(vP+36,2)} offset:{RR_LDS}')
    def wf_issue():
        I(f's_load_dwordx2 s[68:69], s[0:1], {KA_WO}')
        I(f's_load_dwordx2 s[72:73], s[0:1], {KA_WD}')
        I(f's_lshl_b32 s{sRU}, s2, 2')
        I(f's_add_u32 s{sRU}, s{sRU}, s{sL}')
        I(f's_mul_i32 s{sRK}, s{sRU}, 13108')
        I(f's_lshr_b32 s{sRK}, s{sRK}, 16')
        I(f's_mul_i32 s{sT}, s{sRK}, 5')
        I(f's_sub_u32 s{sRC}, s{sRU}, s{sT}')
        I(f'v_lshrrev_b32 v{vT0}, 4, v0')
        I(f'v_mul_u32_u24 v{vT0}, {1280-256}, v{vT0}')
        I(f'v_add_u32 v{vT0}, v{vT0}, v{vLane16}')
        I(f's_mul_i32 s{sT}, s{sRK}, 13108')
        I(f's_lshr_b32 s{sT}, s{sT}, 16')
        I(f's_mul_i32 s{sT2}, s{sT}, 5')
        I(f's_sub_u32 s{sT2}, s{sRK}, s{sT2}')
        I(f's_mul_i32 s{sT}, s{sT}, 80')
        I(f's_mul_i32 s74, s{sT2}, 20')
        I(f's_add_u32 s74, s74, s{sT}')
        I(f's_add_u32 s{sT}, s{sT}, 16')
        I(f's_cmp_eq_u32 s{sT2}, 4')
        I(f's_cselect_b32 s74, s{sT}, s74')
        I(f's_cselect_b32 s43, 1, 0')
        I(f's_sub_u32 s{sT}, s{sRK}, 40')
        I(f's_lshl_b32 s{sT}, s{sT}, 4')
        I(f's_mov_b32 s70, {D*D*2}')
        I(f's_mov_b32 s71, 0x20000')
        I('s_waitcnt lgkmcnt(0)')
        I(f's_cmp_ge_u32 s{sRK}, 40')
        I(f's_cselect_b32 s68, s72, s68')
        I(f's_cselect_b32 s69, s73, s69')
        I(f's_cselect_b32 s70, {F*D*2}, s70')
        I(f's_cselect_b32 s74, s{sT}, s74')
        I(f's_cselect_b32 s43, 0, s43')
        I(f's_cmp_ge_u32 s{sRU}, 680')
        I(f's_cselect_b32 s70, 0, s70')
        I(f's_mul_i32 s74, s74, 1280')
        I(f's_lshl_b32 s{sT2}, s{sRC}, 8')
        I(f's_add_u32 s74, s74, s{sT2}')
        I(f's_lshl_b32 s67, s{sL}, 12')
        I(f's_add_u32 s67, s67, {R_LDS}')
        for j in range(4):
            I(f's_mov_b32 s{sT}, {4*j*1280}')
            I(f's_cmp_eq_u32 s43, 1')
            I(f's_cselect_b32 s{sT}, {20*[0,2,1,3][j]*1280}, s{sT}')
            I(f's_add_u32 s{sT}, s{sT}, s74')
            I(f's_add_u32 m0, s67, {1024*j}')
            I(f's_nop 0')
            V(f'buffer_load_dwordx4 v{vT0}, s[68:71], s{sT} offen lds', 'wf')
    def wf_store():
        wait_for('wf')
        I(f'v_bfe_u32 v{vT0}, v0, 2, 2')
        I(f'v_lshl_add_u32 v{vT0}, v{vHk}, 2, v{vT0}')
        I(f'v_lshlrev_b32 v{vT0}, 8, v{vT0}')
        I(f'v_bfe_u32 v{vT1}, v0, 4, 1')
        I(f'v_lshl_add_u32 v{vT0}, v{vT1}, 5, v{vT0}')
        I(f'v_and_b32 v{vT1}, 3, v0')
        I(f'v_lshl_add_u32 v{vT0}, v{vT1}, 3, v{vT0}')
        I(f'v_add_u32 v{vT0}, s67, v{vT0}')
        for j in range(4):
            I(f'ds_read_b64_tr_b16 {vr(vWSH+4*j,2)}, v{vT0} offset:{64*j}')
            I(f'ds_read_b64_tr_b16 {vr(vWSH+4*j+2,2)}, v{vT0} offset:{64*j+2048}')
        I(f's_mul_i32 s{sT}, s{sRC}, {4*AREC}')
        I(f's_lshl_b32 s{sT2}, s{sRK}, 10')
        I(f's_add_u32 s{sT}, s{sT}, s{sT2}')
        I(f's_add_u32 s{sT}, s{sT}, {WF_OFF}')
        I(f's_cmp_ge_u32 s{sRU}, 680')
        I(f's_cselect_b32 s{sWS+2}, 0, s{sWS+2}')
        for j in range(4):
            I(f's_waitcnt lgkmcnt({6-2*j})')
            V(f'buffer_store_dwordx4 {vr(vWSH+4*j)}, v{vLane16}, {srd(sWS)}, s{sT} offen{sc}', 'wfs')
            I(f's_add_u32 s{sT}, s{sT}, {AREC}')
        I(f's_mov_b32 s{sWS+2}, {WS_END}')
    def const_lines():
        I(f's_cmp_lg_u32 s{sL}, 1')
        I(f's_cbranch_scc1 {name}_ncl')
        I(f'v_lshrrev_b32 v{vT0}, 3, v0')
        I(f'v_mul_u32_u24 v{vT0}, {KVREC-128}, v{vT0}')
        I(f'v_add_u32 v{vT0}, v{vT0}, v{vLane16}')
        I(f'v_and_b32 v{vT1}, 7, v0')
        I(f'v_cmp_eq_u32 vcc, 0, v{vT1}')
        I(f'v_mov_b32 v{vT1}, 0x3f803f80')
        for r in range(4):
            I(f'v_cndmask_b32 v{vP+r}, 0, v{vT1}, vcc')
        I(f's_mul_i32 s{sT}, s2, {8*KVREC}')
        I(f's_add_u32 s{sT}, s{sT}, {KV_OFF + 2560}')
        I(f'buffer_store_dwordx4 {vr(vP)}, v{vT0}, {srd(sWS)}, s{sT} offen{sc}')
        a.label(f'{name}_ncl')
    def pubflag():
        I('s_waitcnt vmcnt(9)')
        setflag(0)
    if schedv == 2:
      sched = {0: [tag_issue], 1: [lambda: only0(publish_store, f'{name}_o1'), const_lines], 3: [tag_check],
               4: [lambda: only0(pubflag, f'{name}_o2')], 5: [wf_issue], 16: [wf_store, poll_issue], 18: [poll_check_and_load]}
    else:
      sched = {
        1: [share_setup, tag_issue, w_share_issue, w_index], 4: [sl(xs_l, 0, 1, 'xs'), tag_check, sl(ws_l, 0, 1, 'ws'), w_write],
        5: [lambda: only0(publish_store, f'{name}_o1'), const_lines, wf_issue],
        8: [lambda: only0(pubflag, f'{name}_o2')], 16: [wf_store, poll_issue], 18: [poll_check_and_load]}
    if schedv == 3:
      sched = {
        1: [share_setup, tag_issue, w_share_issue, w_index], 3: [sl(xs_l, 0, 1, 'xs'), tag_check], 5: [sl(ws_l, 0, 1, 'ws'), w_write],
        7: [lambda: only0(publish_store, f'{name}_o1'), const_lines, wf_issue],
        11: [lambda: only0(pubflag, f'{name}_o2')], 17: [wf_store, poll_issue], 19: [poll_check_and_load]}
    if schedv == 4:
      sched = {
        0: [share_setup, tag_issue, w_share_issue, w_index], 2: [sl(xs_l, 0, 1, 'xs'), tag_check, sl(ws_l, 0, 1, 'ws'), w_write],
        3: [lambda: only0(publish_store, f'{name}_o1'), const_lines],
        7: [lambda: only0(pubflag, f'{name}_o2')], 16: [wf_issue], 17: [poll_issue], 18: [wf_store], 19: [poll_check_and_load]}
    def trace(idx, v=250):
        if 'trace' not in dbg: return
        I('s_memtime s[76:77]')
        I(f's_lshl_b32 s78, s2, 3')
        I(f's_add_u32 s78, s78, s{sWave}')
        I(f's_lshl_b32 s78, s78, 8')
        I(f's_add_u32 s78, s78, {STAMP_OFF + 0x200000 + 4*idx}')
        I(f's_mov_b32 s{sWS+2}, 0x10000000')
        I('s_waitcnt lgkmcnt(0)')
        I(f's_sub_u32 s76, s76, s82')
        I(f'v_mov_b32 v{v}, s76')
        I(f'v_mov_b32 v{v+1}, 0')
        I('s_mov_b64 exec, 1')
        V(f'buffer_store_dword v{v}, v{v+1}, {srd(sWS)}, s78 offen', 'tr')
        I('s_mov_b64 exec, -1')
        I(f's_mov_b32 s{sWS+2}, {WS_END}')
    for j in range(20):
        for fn in sched.get(j, []):
            fn()
        wait_for(f'B{j+1}', f'X{(j+1)//2}', lgkm=True)
        I('s_barrier')
        trace(3 * j + 2)
        if j & 1 and (j + 3) // 2 < 10:
            dmaX((j + 3) // 2)
        if j + 4 < 20:
            dmaB(j + 4)
    st.mark()
    tables()
    I('s_waitcnt vmcnt(0) lgkmcnt(0)')
    I('s_barrier')
    I(f'v_lshlrev_b32 v{vFO}, 7, v0')
    I('s_barrier')
    I(f's_cmp_lg_u32 s{sL}, 0')
    I(f's_cbranch_scc1 {name}_nq')
    setflag(1)
    flag_wait(a, f'{name}_qw', sWS, sTag, 1, 4, vFO, vP, sT2, sT, sleep=fsleep)
    a.label(f'{name}_nq')
    I('s_barrier')
    I('s_setprio 0')
    if hdel: I(f's_sleep {hdel}')
    I(f's_lshl_b32 s{sT}, s{sRB}, 2')
    I(f's_lshl_b32 s{sT2}, s{sRP}, 1')
    I(f's_add_u32 s{sT}, s{sT}, s{sT2}')
    I(f's_mul_i32 s{sT}, s{sT}, {AREC}')
    I(f's_mul_i32 s{sT2}, s{sCG}, 6144')
    I(f's_add_u32 s{sT}, s{sT}, s{sT2}')
    I(f's_mul_i32 s{sT2}, s{sG}, 3072')
    I(f's_add_u32 s{sT}, s{sT}, s{sT2}')
    I(f's_add_u32 s{sT}, s{sT}, {AF_OFF + 40*1024}')
    I(f's_add_u32 s43, s{sT}, {AREC}')
    I(f's_mul_i32 s{sT2}, s{sL}, 6144')
    I(f'v_add_u32 v{vT0}, s{sT2}, v{vLane16}')
    for k in range(6):
        I(f'ds_read_b128 {vr(vWSH+4*k)}, v{vT0} offset:{B_LDS + 1024*k}')
    for k in range(6):
        t, i = divmod(k, 3)
        I(f's_waitcnt lgkmcnt({5-k})')
        I(f'buffer_store_dwordx4 {vr(vWSH+4*k)}, v{vLane16}, {srd(sWS)}, s{43 if t else sT} offen offset:{1024*i}{sc}')
        if hth: I('s_waitcnt vmcnt(0)')
    I('s_waitcnt vmcnt(0)')
    def lwait(lab, off, val, sleep):
        I(f's_branch {lab}_f')
        a.label(lab)
        I(f's_sleep {sleep}')
        a.label(lab + '_f')
        I(f'ds_read_b32 v{vP}, v{vFO+1} offset:{off}')
        I('s_waitcnt lgkmcnt(0)')
        I(f'v_readfirstlane_b32 s{sT}, v{vP}')
        I(f's_cmp_lt_u32 s{sT}, {val}')
        I(f's_cbranch_scc1 {lab}')
    I(f'v_mov_b32 v{vP}, 1')
    I('s_mov_b64 exec, 1')
    I(f'ds_add_u32 v{vFO+1}, v{vP} offset:{SY_LDS}')
    I('s_mov_b64 exec, -1')
    I(f's_cmp_lg_u32 s{sL}, 0')
    I(f's_cbranch_scc1 {name}_nh')
    lwait(f'{name}_hc', SY_LDS, 4, 16)
    setflag(2)
    flag_wait(a, f'{name}_hw', sWS, sTag, 2, 4, vFO, vP, sT2, sT, sleep=gs)
    I(f'v_mov_b32 v{vP}, 1')
    I(f'ds_write_b32 v{vFO+1}, v{vP} offset:{SY_LDS+4}')
    a.label(f'{name}_nh')
    lwait(f'{name}_go', SY_LDS + 4, 1, gs)
    if pre:
        I('s_and_b32 s6, s2, 7')
        I('s_lshr_b32 s7, s2, 3')
        I(f's_lshr_b32 s{sT}, s7, 3')
        I('s_and_b32 s4, s6, 1')
        I('s_lshl_b32 s4, s4, 2')
        I(f's_add_u32 s{sT}, s{sT}, s4')
        I(f's_cmp_ge_u32 s{sT}, 7')
        I(f's_cbranch_scc1 {name}_nopre')
        I('s_lshr_b32 s6, s6, 1')
        I('s_lshl_b32 s6, s6, 3')
        I('s_and_b32 s7, s7, 7')
        I('s_add_u32 s6, s6, s7')
        I(f's_mul_i32 s6, s6, {2*AREC}')
        I(f's_add_u32 s6, s6, {AF_OFF + 40*1024}')
        I(f's_mul_i32 s7, s{sT}, {3*AREC}')
        I(f's_add_u32 s7, s7, {WF_OFF + 40*1024}')
        I(f's_mov_b32 s{sWS+2}, {WF_END}')
        I(f's_lshl_b32 s4, s{sL}, 10')
        I(f'v_add_u32 v{vT1}, s4, v{vLane16}')
        I('s_mov_b32 s5, 0')
        a.label(f'{name}_pst')
        I(f's_cmp_lt_u32 s5, 2')
        I(f's_cselect_b32 s{sT2}, s6, s7')
        I(f's_cselect_b32 s6, s7, s6') if False else None
        for gidx in range(pre):
            I(f's_add_u32 m0, s4, {4096*gidx}')
            I(f's_add_u32 s{sT}, s{sT2}, {4096*gidx}')
            I(f'buffer_load_dwordx4 v{vT1}, {srd(sWS)}, s{sT} offen sc1 lds')
            I(f's_waitcnt vmcnt({pth})')
        I(f's_cmp_lt_u32 s5, 2')
        I(f's_cselect_b32 s{sT}, {AREC}, 0')
        I(f's_add_u32 s6, s6, s{sT}')
        I(f's_cmp_lt_u32 s5, 2')
        I(f's_cselect_b32 s{sT}, 0, {AREC}')
        I(f's_add_u32 s7, s7, s{sT}')
        I(f's_add_u32 s4, s4, {4096*pre}')
        I('s_add_u32 s5, s5, 1')
        I('s_cmp_lt_u32 s5, 5')
        I(f's_cbranch_scc1 {name}_pst')
        I('s_waitcnt vmcnt(0)')
        a.label(f'{name}_nopre')
    if f3w:
        I(f'v_mov_b32 v{vP}, 1')
        I('s_mov_b64 exec, 1')
        I(f'ds_add_u32 v{vFO+1}, v{vP} offset:{SY_LDS+8}')
        I('s_mov_b64 exec, -1')
        I('s_waitcnt lgkmcnt(0)')
    else:
        I('s_barrier')
    I(f's_branch {name}_end')
    a.label(f'{name}_comp')
    st.n = 0
    if 'fine' in dbg:
        for i in range(3): st.mark()
    if prio:
        I('s_setprio 1')
    I(f's_mov_b32 s{sWS+2}, {WS_END}')
    I(f's_mov_b32 s{sWS+3}, 0x20000')
    I(f's_mov_b32 s{sLo}, -1')
    I(f's_mov_b32 s{sLo+1}, 0')
    I('s_waitcnt lgkmcnt(0)')
    if schedv == 2:
        I(f's_mov_b32 s{sX}, s4'); I(f's_mov_b32 s{sX+1}, s5'); I(f's_mov_b32 s{sX+2}, {S*D*2}'); I(f's_mov_b32 s{sX+3}, 0x20000')
        q.clear()
        share_setup(); w_share_issue(); w_index()
        if codepf:
            code_prefetch(a, f'{name}_nopf', f'{name}_end', sL, 4, vLane16, vPF, 56, sT, 32)
        wait_for('xs')
        a.ins.extend(capture(x_stats))
        I('s_waitcnt vmcnt(0)')
        a.ins.extend(capture(w_sum))
        w_write()
    for r in range(160):
        I(f'v_mov_b32 v{ACC+r}, 0')
    I('s_waitcnt lgkmcnt(0)')
    if warm:
        I(f'v_mul_u32_u24 v{vT0}, 13108, v0')
        I(f'v_lshrrev_b32 v{vT0}, 16, v{vT0}')
        I(f'v_mul_u32_u24 v{vT1}, 5, v{vT0}')
        I(f'v_sub_u32 v{vT1}, v0, v{vT1}')
        I(f's_and_b32 s{sT}, s{sRB}, 7')
        I(f's_lshl_b32 s{sT}, s{sT}, 2')
        I(f's_lshl_b32 s{sT2}, s{sL}, 5')
        I(f's_add_u32 s{sT}, s{sT}, s{sT2}')
        I(f's_add_u32 s{sT}, s{sT}, 128')
        I(f'v_add_u32 v{vT0}, s{sT}, v{vT0}')
        I(f'v_mov_b32 v{vWA}, s6')
        I(f'v_mov_b32 v{vWA+1}, s7')
        I(f'v_mov_b32 v{vT2}, 3840')
        I(f's_cmp_ge_u32 s{sType}, 2')
        I(f's_cbranch_scc1 {name}_warm_qk')
        I(f's_min_u32 s{sT}, s{sCG}, 9')
        I(f's_lshl_b32 s{sT}, s{sT}, 7')
        I(f's_add_u32 s{sT}, s{sT}, 2560')
        I(f'v_mov_b32 v{vT3}, s{sT}')
        I(f's_lshl_b32 s{sT}, s{sCG}, 8')
        I(f'v_and_b32 v{26}, 1, v{vT1}')
        I(f'v_lshlrev_b32 v{26}, 7, v{26}')
        I(f'v_add_u32 v{26}, s{sT}, v{26}')
        I(f'v_cmp_gt_u32 vcc, 4, v{vT1}')
        I(f'v_mov_b32 v{27}, 3072')
        I(f'v_cndmask_b32 v{vT2}, v{vT2}, v{27}, vcc')
        I(f'v_cndmask_b32 v{vT3}, v{vT3}, v{26}, vcc')
        I(f'v_mov_b32 v{26}, s54'); I(f'v_mov_b32 v{27}, s55')
        I(f'v_cndmask_b32 v{vWA}, v{vWA}, v{26}, vcc')
        I(f'v_cndmask_b32 v{vWA+1}, v{vWA+1}, v{27}, vcc')
        I(f'v_cmp_gt_u32 vcc, 2, v{vT1}')
        I(f'v_mov_b32 v{26}, s52'); I(f'v_mov_b32 v{27}, s53')
        I(f'v_cndmask_b32 v{vWA}, v{vWA}, v{26}, vcc')
        I(f'v_cndmask_b32 v{vWA+1}, v{vWA+1}, v{27}, vcc')
        I(f's_branch {name}_warm_done')
        a.label(f'{name}_warm_qk')
        I(f's_sub_u32 s{sT}, s{sCG}, 12')
        I(f's_mul_i32 s{sT}, s{sT}, 640')
        I(f'v_lshlrev_b32 v{vT3}, 7, v{vT1}')
        I(f'v_add_u32 v{vT3}, s{sT}, v{vT3}')
        a.label(f'{name}_warm_done')
        I(f'v_mul_u32_u24 v{vT0}, v{vT0}, v{vT2}')
        I(f'v_add_u32 v{vT3}, v{vT3}, v{vT0}')
        I(f'v_lshlrev_b32 v{vWI}, 7, v{vT2}')
        I(f's_lshl_b32 s{sT}, s{sRB}, 7')
        I(f's_and_b32 s{sT2}, s{sCG}, 3')
        I(f's_lshl_b32 s{sT2}, s{sT2}, 5')
        I(f's_add_u32 s{sT}, s{sT}, s{sT2}')
        I(f's_lshl_b32 s{sT2}, s{sRP}, 4')
        I(f's_add_u32 s{sT}, s{sT}, s{sT2}')
        I(f's_mul_i32 s{sT}, s{sT}, 1280')
        I(f's_lshl_b32 s{sT2}, s{sG}, 7')
        I(f's_add_u32 s{sT}, s{sT}, s{sT2}')
        I(f's_add_u32 s{sT}, s{sT}, 256')
        I(f'v_and_b32 v{vT0}, 15, v0')
        I(f'v_mul_u32_u24 v{vT0}, 1280, v{vT0}')
        I(f'v_add_u32 v{vT0}, s{sT}, v{vT0}')
        I(f'v_mov_b32 v{26}, s4'); I(f'v_mov_b32 v{27}, s5'); I(f'v_mov_b32 v{28}, 256')
        I(f'v_cndmask_b32 v{vT3}, v{vT0}, v{vT3}, s[{sLo}:{sLo+1}]')
        I(f'v_cndmask_b32 v{vWA}, v{26}, v{vWA}, s[{sLo}:{sLo+1}]')
        I(f'v_cndmask_b32 v{vWA+1}, v{27}, v{vWA+1}, s[{sLo}:{sLo+1}]')
        I(f'v_cndmask_b32 v{vWI}, v{28}, v{vWI}, s[{sLo}:{sLo+1}]')
        I(f'v_add_co_u32 v{vWA}, vcc, v{vWA}, v{vT3}')
        I(f'v_addc_co_u32 v{vWA+1}, vcc, 0, v{vWA+1}, vcc')
        I(f's_mov_b32 s64, 0x000fffff')
        I(f's_mov_b32 s65, 0x0000ffff')
    for i in range(lin2):
        touch()
    if warm:
        for i in range(warm):
            touch()
    if 'fine' in dbg: st.mark()
    I('s_barrier')
    st.mark()

    def loop(typ):
        def rdW(fset, u, slot, sp):
            b = vWB[slot >> 1][min(u, 2)]
            rs = 256 if u < 2 else 192
            o = (slot & 1) * BSLOT + 16 * sp * rs + (32 * (u - 2) if u >= 2 else 0)
            return [f'ds_read_b64_tr_b16 {vr(Wf(fset,u),2)}, v{b} offset:{o}',
                    f'ds_read_b64_tr_b16 {vr(Wf(fset,u)+2,2)}, v{b} offset:{o+4*rs}']
        def rdX(fset, j, sp):
            return [f'ds_read_b128 {vr(XFR[fset][t])}, v{vXB[2*(j&1)+sp]} offset:{((j >> 1) & 1) * XSLOT + 4096 * t}' for t in range(2)]
        def mf(fset, u, t):
            acc = vr(Acc(t, u), 16)
            if typ == 'A' and u < 2:
                return f'v_mfma_f32_32x32x16_bf16 {acc}, {vr(XFR[fset][t])}, {vr(Wf(fset,u))}, {acc}'
            return f'v_mfma_f32_32x32x16_bf16 {acc}, {vr(Wf(fset,u))}, {vr(XFR[fset][t])}, {acc}'
        def emit_phase(mf_list, lst, f1, tail=()):
            for k in range(len(mf_list)):
                I(mf_list[k])
                if k < f1:
                    lo, hi = len(lst) * k // f1, len(lst) * (k + 1) // f1
                    for x in lst[lo:hi]:
                        if 'nord' not in dbg: I(x)
                if k == len(mf_list) - 2:
                    for x in tail: I(x)
        L = f'{name}_loop{typ}'
        for x in rdX(0, 0, 0): I(x)
        for u in range(5):
            for x in rdW(0, u, 0, 0): I(x)
        I('s_waitcnt lgkmcnt(0)')
        a.I('.p2align 3')
        a.label(L)
        order = [(u, t) for u in range(5) for t in range(2)]
        for j in range(4):
            if repf and j == 2:
                I(f's_cmp_lg_u32 s{sCnt}, 2')
                I(f's_cbranch_scc1 {L}_np')
                code_prefetch(a, f'{name}_post', f'{name}_end', sL, 4, vLane16, vPF, 56, sT, 24)
                a.label(f'{L}_np')
            if (warm or lin) and j == wj and (warm or lin + lin2 < 4):
                I(f's_cmp_le_u32 s{sCnt}, {1 + (warm if warm else lin + lin2)}')
                I(f's_cbranch_scc1 {L}_nt')
                touch()
                a.label(f'{L}_nt')
            lds = rdX(1, j, 1)
            for u in range(5):
                lds += rdW(1, u, j, 1)
            emit_phase([mf(0, u, t) for u, t in order], lds, 6, ['s_waitcnt lgkmcnt(0)'])
            I('s_barrier')
            jn = (j + 1) & 3
            lds = rdX(0, jn, 0)
            for u in range(5):
                lds += rdW(0, u, jn, 0)
            tail = ['s_waitcnt lgkmcnt(0)']
            if j == 3:
                tail += [f's_sub_u32 s{sCnt}, s{sCnt}, 1', f's_cmp_lg_u32 s{sCnt}, 0']
            emit_phase([mf(1, u, t) for u, t in order], lds, 6, tail)
        I(f's_cbranch_scc1 {L}')
    I(f's_cmp_lg_u32 s{sSec}, 2')
    I(f's_cbranch_scc1 {name}_mainQ')
    loop('A')
    I(f's_branch {name}_post')
    a.label(f'{name}_mainQ')
    loop('Q')
    a.label(f'{name}_post')
    st.mark()
    vE = 26
    sc = stmod
    def Acc1(t, i): return Acc(t, i)
    def Acc2(t, i): return Acc(t, 2 + i)
    def HP(t, i): return 164 + 12 * t + 4 * i
    vNM, vR = [vE, vE + 2], [vE + 4, vE + 6]
    CSR = vE + 8
    sGT = [52, 53]
    def common_tables():
        I(f'v_lshlrev_b32 v{vT1}, 2, v{vTok}')
        I(f's_lshl_b32 s{sT}, s{sRP}, 8')
        I(f'v_add_u32 v{vT3}, s{sT}, v{vT1}')
        for t in range(2):
            I(f'ds_read_b32 v{vNM[t]}, v{vT3} offset:{NM_LDS+128*t}')
            I(f'ds_read_b32 v{vR[t]}, v{vT3} offset:{RR_LDS+128*t}')
        I(f's_lshl_b32 s{sT}, s{sRB}, 2')
        I(f's_lshl_b32 s{sGT[0]}, s{sRP}, 1')
        I(f's_add_u32 s{sGT[0]}, s{sGT[0]}, s{sT}')
        I(f's_add_u32 s{sGT[1]}, s{sGT[0]}, 1')
    def fix(A, t, cs):
        for r in range(0, 16, 2):
            I(f'v_pk_fma_f32 {vr(A+r,2)}, {vr(cs+r,2)}, {vr(vNM[t],2)}, {vr(A+r,2)} op_sel_hi:[1,0,1]')
    I('s_barrier')
    if 'cdiag' in dbg: st.mark()
    common_tables()
    I(f'v_mov_b32 v{vT0}, 0')
    I(f'ds_read_b64 {vr(vU,2)}, v{vT0} offset:{TG_LDS}')
    I(f's_cmp_eq_u32 s{sSec}, 3')
    I(f's_cbranch_scc1 {name}_e1x')
    I(f's_cmp_eq_u32 s{sSec}, 2')
    I(f's_cbranch_scc1 {name}_e1v')
    sREC, sHS, sI0 = 54, 55, 56
    sBase = [58, 59]
    I(f's_lshl_b32 s{sT}, s{sG}, 8')
    I(f'v_lshlrev_b32 v{vT0}, 4, v{vHk}')
    I(f'v_add_u32 v{vT2}, s{sT}, v{vT0}')
    for rq in range(4):
        I(f'ds_read_b128 {vr(CSR+4*rq)}, v{vT2} offset:{CS_LDS+32*rq}')
    I(f's_cmp_eq_u32 s{sSec}, 1')
    I(f's_movk_i32 s{sREC}, {QREC}')
    I(f's_cselect_b32 s{sREC}, {KVREC}, s{sREC}')
    I(f's_cselect_b32 s{sT2}, {KV_OFF}, {QF_OFF}')
    I(f's_cselect_b32 s57, 1.0, 0x{f2u(QSCALE):08x}')
    I(f's_lshl_b32 s{sHS}, s{sREC}, 6')
    for t in range(2):
        I(f's_mul_i32 s{sBase[t]}, s{sGT[t]}, s{sREC}')
        I(f's_add_u32 s{sBase[t]}, s{sBase[t]}, s{sT2}')
    I(f's_lshl_b32 s{sI0}, s{sSub}, 4')
    I(f's_lshl_b32 s{sT}, s{sG}, 3')
    I(f's_add_u32 s{sI0}, s{sI0}, s{sT}')
    vFull, vSplit, vRS = 20, 21, [58, 58]
    I(f'v_mul_lo_u32 v{vT1}, v{vHk}, s{sREC}')
    I(f'v_lshl_add_u32 v{vFull}, v{vTok}, 4, v{vT1}')
    I(f'v_mul_lo_u32 v{vT1}, v{vHk}, s{sHS}')
    I(f'v_lshl_add_u32 v{vSplit}, v{vTok}, 3, v{vT1}')
    for i in range(2):
        I('s_waitcnt lgkmcnt(0)')
        for t in range(2):
            fix(Acc1(t, i), t, CSR)
        if i == 0:
            for rq in range(4):
                I(f'ds_read_b128 {vr(CSR+4*rq)}, v{vT2} offset:{CS_LDS+128+32*rq}')
        for t in range(2):
            I(f'v_mul_f32 v{vRS[t]}, s57, v{vR[t]}')
            A = Acc1(t, i)
            for r in range(0, 16, 2):
                I(f'v_pk_mul_f32 {vr(A+r,2)}, {vr(A+r,2)}, {vr(vRS[t],2)} op_sel_hi:[1,0]')
        A0, B0 = Acc1(0, i), Acc1(1, i)
        for rq in range(4):
            I(f'v_cvt_pk_bf16_f32 v{A0+4*rq}, v{A0+4*rq}, v{A0+4*rq+1}')
            I(f'v_cvt_pk_bf16_f32 v{A0+4*rq+1}, v{A0+4*rq+2}, v{A0+4*rq+3}')
            I(f'v_cvt_pk_bf16_f32 v{A0+4*rq+2}, v{B0+4*rq}, v{B0+4*rq+1}')
            I(f'v_cvt_pk_bf16_f32 v{A0+4*rq+3}, v{B0+4*rq+2}, v{B0+4*rq+3}')
        for rq in range(4):
            for t in range(2):
                I(f'v_dot2_f32_bf16 v{B0+2*rq+t}, v{A0+4*rq+2*t}, v{A0+4*rq+2*t}, 0')
        for rq in range(4):
            for t in range(2):
                I(f'v_dot2c_f32_bf16 v{B0+2*rq+t}, v{A0+4*rq+2*t+1}, v{A0+4*rq+2*t+1}')
        for rq in range(4):
            Q = A0 + 4 * rq
            L1, L2 = f'{name}_sp{i}{rq}', f'{name}_it{i}{rq}'
            I(f's_add_u32 s{sT}, s{sI0}, {4*i+rq}')
            I(f's_mul_i32 s{sT2}, s{sT}, 13108')
            I(f's_lshr_b32 s{sT2}, s{sT2}, 16')
            I(f's_mul_i32 s46, s{sT2}, 5')
            I(f's_sub_u32 s{sT}, s{sT}, s46')
            I(f's_lshl_b32 s{sT2}, s{sT2}, 1')
            I(f's_mul_i32 s46, s{sT2}, s{sHS}')
            I(f's_cmp_eq_u32 s{sT}, 2')
            I(f's_cbranch_scc1 {L1}')
            I(f'v_permlane32_swap_b32 v{Q}, v{Q+2}')
            I(f'v_permlane32_swap_b32 v{Q+1}, v{Q+3}')
            I(f's_sub_u32 s47, s{sHS}, 1536')
            I(f's_cmp_ge_u32 s{sT}, 3')
            I(f's_cselect_b32 s47, s47, 0')
            I(f's_lshl_b32 s{sT}, s{sT}, 9')
            I(f's_add_u32 s46, s46, s47')
            I(f's_add_u32 s46, s46, s{sT}')
            I(f's_add_u32 s46, s46, s{sBase[0]}')
            I(f'buffer_store_dwordx4 {vr(Q)}, v{vFull}, {srd(sWS)}, s46 offen{sc}')
            I(f's_branch {L2}')
            a.label(L1)
            for t in range(2):
                I(f's_add_u32 s47, s46, s{sBase[t]}')
                I(f'buffer_store_dwordx2 {vr(Q+2*t,2)}, v{vSplit}, {srd(sWS)}, s47 offen offset:1024{sc}')
            a.label(L2)
    I(f's_cmp_eq_u32 s{sSec}, 0')
    I(f's_cbranch_scc1 {name}_e1x')
    def KN(v): return Acc1(1, (v >> 2) & 1) + 2 * (v & 3) + (v >> 3)
    def K2(v): return KN(v) + 8
    I(f'v_and_b32 v{vT0}, 1, v0')
    I(f'v_cmp_eq_u32 s[46:47], 0, v{vT0}')
    I(f'v_and_b32 v{vT0}, 2, v0')
    I(f'v_cmp_eq_u32 s[48:49], 0, v{vT0}')
    for n, msk, dp in ((8, 's[46:47]', 'quad_perm:[1,0,3,2]'), (4, 's[48:49]', 'quad_perm:[2,3,0,1]')):
        for k in range(n):
            I(f'v_cndmask_b32 v{K2(k)}, v{KN(k)}, v{KN(k+n)}, {msk}')
            I(f'v_cndmask_b32 v{KN(k)}, v{KN(k+n)}, v{KN(k)}, {msk}')
        for k in range(n):
            I(f'v_max_f32_dpp v{KN(k)}, v{K2(k)}, v{KN(k)} {dp} row_mask:0xf bank_mask:0xf')
    for dp in ('row_ror:4', 'row_ror:8'):
        for k in range(4):
            I(f'v_max_f32_dpp v{KN(k)}, v{KN(k)}, v{KN(k)} {dp} row_mask:0xf bank_mask:0xf')
    for k in range(4):
        I(f'v_mov_b32 v{K2(k)}, v{KN(k)}')
    for k in range(4):
        I(f'v_permlane16_swap_b32 v{K2(k)}, v{KN(k)}')
    for k in range(4):
        I(f'v_max_f32 v{KN(k)}, v{KN(k)}, v{K2(k)}')
    I(f'v_lshrrev_b32 v{vT0}, 2, v{vTok}')
    for k in range(1, 4):
        I(f'v_cmp_eq_u32 vcc, {k}, v{vT0}')
        I(f'v_cndmask_b32 v{KN(0)}, v{KN(0)}, v{KN(k)}, vcc')
    I(f'v_bfe_u32 v{vT1}, v{vTok}, 1, 1')
    I(f'v_lshl_add_u32 v{vT0}, v{vT1}, 2, v{vT0}')
    I(f'v_add_u32 v{vT0}, s{sI0}, v{vT0}')
    I(f'v_lshl_add_u32 v{vT0}, v{vT0}, 1, v{vHk}')
    I(f'v_lshlrev_b32 v{vT0}, 8, v{vT0}')
    I(f'v_and_b32 v{vT1}, 1, v{vTok}')
    I(f'v_lshl_add_u32 v{vT0}, v{vT1}, 2, v{vT0}')
    I(f's_lshl_b32 s{sT}, s{sGT[0]}, 2')
    I(f's_add_u32 s{sT}, s{sT}, {KN_OFF}')
    I('s_mov_b32 exec_lo, 0xffff')
    I('s_mov_b32 exec_hi, 0xffff')
    I(f'buffer_store_dword v{KN(0)}, v{vT0}, {srd(sWS)}, s{sT} offen{sc}')
    I('s_mov_b64 exec, -1')
    I(f's_branch {name}_e1x')
    a.label(f'{name}_e1v')
    I(f's_lshl_b32 s{sT}, s{sG}, 8')
    I(f'v_add_u32 v{vT1}, s{sT}, v{vT1}')
    vCSV = [58, 60]
    for i in range(2):
        I(f'ds_read_b32 v{vCSV[i]}, v{vT1} offset:{CS_LDS+128*i}')
    I(f'v_lshlrev_b32 v{vT1}, 4, v{vHk}')
    I(f's_lshl_b32 s{sT}, s{sRP}, 8')
    I(f'v_add_u32 v{vT2}, s{sT}, v{vT1}')
    vVA = [20, 21]
    for i in range(2):
        I(f's_lshl_b32 s{sT}, s{sSub}, 7')
        I(f's_lshl_b32 s{sT2}, s{sG}, 6')
        I(f's_add_u32 s{sT}, s{sT}, s{sT2}')
        I(f's_add_u32 s{sT}, s{sT}, {32*i}')
        I(f'v_add_u32 v{vT0}, s{sT}, v{vTok}')
        I(f'v_mul_u32_u24 v{vT1}, 3277, v{vT0}')
        I(f'v_lshrrev_b32 v{vT1}, 16, v{vT1}')
        I(f'v_mul_u32_u24 v{vT3}, 20, v{vT1}')
        I(f'v_sub_u32 v{vT0}, v{vT0}, v{vT3}')
        I(f's_mov_b32 s{sT}, {NT*KVREC}')
        I(f'v_mul_lo_u32 v{vT1}, v{vT1}, s{sT}')
        I(f'v_mul_u32_u24 v{vT3}, 320, v{vHk}')
        I(f'v_lshl_add_u32 v{vT3}, v{vT0}, 4, v{vT3}')
        I(f'v_add_u32 v{vVA[i]}, v{vT3}, v{vT1}')
    for t in range(2):
        I(f's_mul_i32 s{58+t}, s{sGT[t]}, {KVREC}')
        I(f's_add_u32 s{58+t}, s{58+t}, {KV_OFF}')
    for t in range(2):
        for half, tab in ((0, NM_LDS), (1, RR_LDS)):
            for rq in range(4):
                I(f'ds_read_b128 {vr(CSR+4*rq)}, v{vT2} offset:{tab+128*t+32*rq}')
            I('s_waitcnt lgkmcnt(0)')
            for i in range(2):
                A = Acc1(t, i)
                for r in range(0, 16, 2):
                    if half == 0:
                        I(f'v_pk_fma_f32 {vr(A+r,2)}, {vr(CSR+r,2)}, {vr(vCSV[i],2)}, {vr(A+r,2)} op_sel_hi:[1,0,1]')
                    else:
                        I(f'v_pk_mul_f32 {vr(A+r,2)}, {vr(A+r,2)}, {vr(CSR+r,2)}')
        for i in range(2):
            A = Acc1(t, i)
            for r in range(8):
                I(f'v_cvt_pk_bf16_f32 v{A+r}, v{A+2*r}, v{A+2*r+1}')
            I(f'buffer_store_dwordx4 {vr(A)}, v{vVA[i]}, {srd(sWS)}, s{58+t} offen offset:1280{sc}')
            I(f'buffer_store_dwordx4 {vr(A+4)}, v{vVA[i]}, {srd(sWS)}, s{58+t} offen offset:1920{sc}')
    a.label(f'{name}_e1x')
    I('s_waitcnt lgkmcnt(0)')
    I(f'v_readfirstlane_b32 s{sTag}, v{vU}')
    I(f'v_readfirstlane_b32 s{sTag+1}, v{vU+1}')
    if f0early:
        I('s_waitcnt vmcnt(0)')
        I('s_barrier')
    I(f's_mul_i32 s{sT}, s{sG}, 384')
    I(f'v_lshlrev_b32 v{vT0}, 4, v{vHk}')
    I(f'v_add_u32 v{vT2}, s{sT}, v{vT0}')
    CS2 = [34, 50, 66]
    for i in range(3):
        for rq in range(4):
            I(f'ds_read_b128 {vr(CS2[i]+4*rq)}, v{vT2} offset:{CS_LDS+512+128*i+32*rq}')
    for t in range(2):
        I(f's_mul_i32 s{58+t}, s{sGT[t]}, {AREC}')
    I(f's_mul_i32 s{sT}, s{sCG}, 6144')
    I(f's_mul_i32 s{sT2}, s{sG}, 3072')
    I(f's_add_u32 s{sT}, s{sT}, s{sT2}')
    I(f's_add_u32 s{sT}, s{sT}, {AF_OFF + 40*1024}')
    for t in range(2):
        I(f's_add_u32 s{58+t}, s{58+t}, s{sT}')
        I(f'v_mul_f32 v{vR[t]}, v{vR[t]}, v{vR[t]}')
    for i in range(3):
        I(f's_waitcnt lgkmcnt({8-4*i})')
        for t in range(2):
            A = Acc2(t, i)
            fix(A, t, CS2[i])
            for r in range(8):
                I(f'v_max_f32 v{A+r}, 0, v{A+r}')
            for r in range(0, 8, 2):
                I(f'v_pk_mul_f32 {vr(A+8+r,2)}, {vr(A+8+r,2)}, {vr(vR[t],2)} op_sel_hi:[1,0]')
            for r in range(0, 8, 2):
                I(f'v_pk_mul_f32 {vr(A+r,2)}, {vr(A+r,2)}, {vr(A+8+r,2)}')
            for r in range(4):
                I(f'v_cvt_pk_bf16_f32 v{HP(t,i)+r}, v{A+2*r}, v{A+2*r+1}')
    I(f's_mul_i32 s{sT}, s{sL}, 6144')
    I(f'v_add_u32 v{vT0}, s{sT}, v{vLane16}')
    for t in range(2):
        for i in range(3):
            I(f'ds_write_b128 v{vT0}, {vr(HP(t,i))} offset:{B_LDS + 3072*t + 1024*i}')
    if 'cdiag' in dbg: st.mark()
    I('s_waitcnt vmcnt(0) lgkmcnt(0)')
    if 'cdiag' in dbg: st.mark()
    if not f0early:
        I('s_barrier')
    I('s_barrier')
    if 'cdiag' in dbg:
        st.mark()
        st.end(sWave, 4, 5)
        st.on = False
    a.label(f'{name}_att')
    if inv and not ldmod:
        I('buffer_inv sc1')
    st.mark()
    I(f's_setprio {aprio}')
    bar = lambda: I('s_barrier')
    gen_attn(name + '_a', a=a, entry=False, stmod=stmod, ldmod=ldmod, endstamp=False, st=st, ids=False, NS=NS, al=al, apad=apad)
    if f3w:
        I(f'v_mov_b32 v240, {SYB}')
        a.label(f'{name}_f3')
        I(f'ds_read_b32 v241, v240 offset:{SY_LDS+8}')
        I('s_waitcnt lgkmcnt(0)')
        I('v_readfirstlane_b32 s4, v241')
        I('s_cmp_lt_u32 s4, 4')
        I(f's_cbranch_scc1 {name}_f3')
    else:
        I('s_barrier')
    gen_gemm3(name + '_o', a=a, fused=True, st=st, sTag=sTag, pre=pre, NR=NR, gmod=gmod)
    a.label(f'{name}_end')
    I('s_endpgm')
    return a
CODEKB = 20
```

```python
from build import assemble
from k_mega3 import gen_mega3, K1_LDS
import sys
a = gen_mega3('m_kernel', stamps=True)
assemble([('m_kernel', a, 256, 512, K1_LDS)], 'mega3.s')
n='m_kernel_'
tail=[n+'a_store', n+'o_go', n+'o_nosigy', n+'o_nopoll', n+'a_nt1', n+'a_nt12']
for take in ([n+'nopf', n+'notag', n+'tagok', n+'stok'], [n+'nopf', n+'notag', n+'tagok', n+'stok', n+'o1', n+'o2'], [n+'rd', n+'comp', n+'e1v']+tail, [n+'rd', n+'comp', n+'mainQ']+tail, [n+'rd', n+'comp', n+'mainQ']+[n+f'sp{i}{r}' for i in range(2) for r in range(4)]+tail):
    for e in a.check_waits(take=take)[:6]: print('WAITERR2', e)
for nm, kw in (('a', dict(hth=False)), ('b', dict(hdel=64)), ('c', dict(hdel=64, hth=False)), ('d', dict(hdel=127))):
    assemble([('m_kernel', gen_mega3('m_kernel', stamps=True, **kw), 256, 512, K1_LDS)], f'm3_{nm}.s')
```

```python
from asmlib import Asm
from layout import *
from stamp import Stamps
from common import *
from k_attn import gen_attn
from k_gemm3 import gen_gemm3
import struct
def f2u(f): return struct.unpack('<I', struct.pack('<f', f))[0]

BSLOT, XSLOT = 20512, 16384
GOFF, UOFF = 8192, 6144 + 32
NM_LDS = 0
RR_LDS = NM_LDS + 512
CS_LDS = RR_LDS + 512
TG_LDS = 2304
SY_LDS = 0
ST_LDS = 2320
CP_LDS = 2560
B_LDS = 8192
X_LDS = B_LDS + 4 * BSLOT
R_LDS = X_LDS + 2 * XSLOT
SYB = R_LDS + 16384
K1_LDS = SYB + 64

def gen_mega3(name, stamps=False, kidx=0, codepf=True, stmod=' sc1', prio=True, dbg='', warm=0, wj=0, lin=0, lin2=0, ldmod='', hdefer=True, lprio=0, ctr=False, repf=True, fsleep=4, t2=12, NS=4, pre=6, pth=2, gs=64, schedv=1, aprio=3, NR=3, f3w=True, al=3, apad=0, hth=True, hdel=0, gmod=' sc1', f0early=True, inv=False):
    a = Asm()
    I = a.I
    st = Stamps(a, stamps, kidx)
    def vr(b, n=4): return f'v[{b}:{b+n-1}]'
    vLane16, vT0, vT1, vT2, vT3, vTok, vHk = 1, 2, 3, 4, 5, 6, 7
    vU = 8
    vXB = [12, 13, 14, 15]
    vWB = [[16 + 3 * ss + i for i in range(3)] for ss in range(2)]
    WFR = [26, 46]
    XFR = [[66, 70], [74, 78 - 0]]
    XFR = [[66, 70], [74, 60 + 18]]
    ACC = 82
    vEP = 242
    def Acc(t, u): return ACC + 80 * t + 16 * u
    def Wf(s, u): return WFR[s] + 4 * u
    vD = [26, 27, 28, 29, 30]
    vDX = [31, 32, 33, 34]
    vSA = 36
    vSel = 40
    LW = 44
    LX = [64, 68]
    LCS = 72
    vPF = 248
    sWave, sRB, sCG, sG, sRP, sT, sT2, sL = 3, 28, 29, 30, 31, 33, 34, 32
    sX, sD0, sD1, sD2, sWS = 8, 12, 16, 20, 60
    sO0, sO2, sOX, sSt0, sCnt, sXi = 35, 37, 38, 39, 41, 42
    sLo = 44
    sMX = 47
    sType = 48
    sM = [36, 40, 46]
    def srd(s): return f's[{s}:{s+3}]'

    a.label(name)
    I('s_cmp_ge_u32 s2, 256')
    I(f's_cbranch_scc1 {name}_end')
    st.start()
    I(f's_load_dwordx4 s[4:7], s[0:1], {KA_X}')
    I(f's_load_dwordx4 s[52:55], s[0:1], {KA_WG}')
    I(f's_load_dwordx2 s[{sWS}:{sWS+1}], s[0:1], {KA_WS}')
    I(f's_load_dwordx2 s[24:25], s[0:1], {KA_DBG}')
    I(f'v_lshrrev_b32 v{vT0}, 6, v0')
    I(f'v_and_b32 v{vT3}, 255, v0')
    I('v_and_b32 v0, 63, v0')
    I(f'v_readfirstlane_b32 s{sWave}, v{vT0}')
    I(f'v_lshlrev_b32 v{vLane16}, 4, v0')
    I(f's_and_b32 s{sT}, s2, 7')
    I(f's_lshr_b32 s{sT2}, s2, 3')
    I(f's_and_b32 s{sRB}, s{sT}, 1')
    I(f's_lshl_b32 s{sRB}, s{sRB}, 3')
    I(f's_and_b32 s{sCG}, s{sT2}, 7')
    I(f's_add_u32 s{sRB}, s{sRB}, s{sCG}')
    I(f's_lshr_b32 s{sCG}, s{sT}, 1')
    I(f's_lshl_b32 s{sCG}, s{sCG}, 2')
    I(f's_lshr_b32 s{sT2}, s{sT2}, 3')
    I(f's_add_u32 s{sCG}, s{sCG}, s{sT2}')
    I(f's_and_b32 s{sL}, s{sWave}, 3')
    I(f's_lshr_b32 s{sG}, s{sL}, 1')
    I(f's_and_b32 s{sRP}, s{sL}, 1')
    I(f's_cmp_lt_u32 s{sWave}, 4')
    I(f's_cbranch_scc1 {name}_rd')
    I(f'v_lshrrev_b32 v{vT0}, 3, v0')
    I(f'v_lshrrev_b32 v{vT1}, 4, v0')
    I(f'v_xor_b32 v{vT1}, v{vT1}, v0')
    I(f'v_and_b32 v{vT1}, 7, v{vT1}')
    I(f'v_mul_u32_u24 v{vT0}, 1280, v{vT0}')
    I(f'v_lshl_add_u32 v{vDX[0]}, v{vT1}, 4, v{vT0}')
    I(f'v_xor_b32 v{vT1}, 4, v{vT1}')
    I(f'v_lshl_add_u32 v{vDX[1]}, v{vT1}, 4, v{vT0}')
    I(f'v_add_u32 v{vDX[2]}, {16*1280-2048}, v{vDX[0]}')
    I(f'v_add_u32 v{vDX[3]}, {24*1280-3072}, v{vDX[1]}')
    I(f'v_add_u32 v{vDX[1]}, {8*1280-1024}, v{vDX[1]}')
    I(f's_lshl_b32 s{sOX}, s{sRB}, 7')
    I(f's_lshl_b32 s{sT}, s{sL}, 5')
    I(f's_add_u32 s{sOX}, s{sOX}, s{sT}')
    I(f's_mul_i32 s{sOX}, s{sOX}, 1280')
    I(f's_lshl_b32 s{sMX}, s{sL}, 12')
    I(f's_add_u32 s{sMX}, s{sMX}, {X_LDS}')
    I(f's_mov_b32 s{sX+2}, {S*D*2}')
    for s in (sX, sD0, sD1, sD2):
        I(f's_mov_b32 s{s+3}, 0x20000')
    I(f's_mov_b32 s{sD2+2}, {D*3*D*2}')
    I(f's_mov_b32 s{sD0+2}, {D*F*2}')
    I(f's_mov_b32 s{sXi}, 0')
    I(f'v_lshrrev_b32 v{vT0}, 4, v0')
    I(f'v_lshlrev_b32 v{vT1}, 2, v{vT0}')
    I(f'v_xor_b32 v{vT1}, v{vT1}, v0')
    I(f'v_and_b32 v{vT1}, 15, v{vT1}')
    I(f'v_mul_u32_u24 v{vT0}, 3840, v{vT0}')
    I(f'v_lshl_add_u32 v{vD[0]}, v{vT1}, 4, v{vT0}')
    I(f'v_add_u32 v{vD[1]}, {4*3840-1024}, v{vD[0]}')
    for j in range(3):
        I(f'v_add_u32 v{vT0}, {64*j}, v0')
        I(f'v_mul_u32_u24 v{vT1}, 5462, v{vT0}')
        I(f'v_lshrrev_b32 v{vT1}, 16, v{vT1}')
        I(f'v_mul_u32_u24 v{vT1}, {3072-192}, v{vT1}')
        I(f'v_lshl_add_u32 v{vD[2+j]}, v{vT0}, 4, v{vT1}')
        if j:
            I(f'v_subrev_u32 v{vD[2+j]}, {1024*j}, v{vD[2+j]}')
    I(f's_mul_i32 s{sO2}, s{sL}, {8*3840}')
    I(f's_lshl_b32 s{sT}, s{sCG}, 8')
    I(f's_add_u32 s{sO2}, s{sO2}, s{sT}')
    I(f's_mul_i32 s{sO0}, s{sRP}, {16*3072}')
    I(f's_mul_i32 s{sT}, s{sCG}, 192')
    I(f's_add_u32 s{sO0}, s{sO0}, s{sT}')
    I(f's_lshl_b32 s{sM[0]}, s{sL}, 11')
    I(f's_mul_i32 s{sM[1]}, s{sRP}, 3072')
    I(f's_mul_i32 s{sT}, s{sG}, {UOFF}')
    I(f's_add_u32 s{sM[1]}, s{sM[1]}, s{sT}')
    I(f's_add_u32 s{sM[1]}, s{sM[1]}, {GOFF}')
    I(f's_cmp_eq_u32 s{sCG}, 15')
    I(f's_cselect_b32 s{sD2+2}, 0, s{sD2+2}')
    I('s_waitcnt lgkmcnt(0)')
    I(f's_cmp_eq_u32 s{sG}, 0')
    I(f's_cselect_b32 s{sD0}, s52, s54')
    I(f's_cselect_b32 s{sD0+1}, s53, s55')
    I(f's_mov_b32 s{sD2}, s6'); I(f's_mov_b32 s{sD2+1}, s7')
    I(f's_mov_b32 s{sX}, s4'); I(f's_mov_b32 s{sX+1}, s5')

    q = []
    def V(text, tag):
        I(text); q.append(tag)
    def wait_for(*tags, lgkm=False):
        last = max((i for i, t in enumerate(q) if t in tags), default=-1)
        n = len(q) - 1 - last
        if last >= 0:
            I(f's_waitcnt vmcnt({min(n, 63)})' + (' lgkmcnt(0)' if lgkm else ''))
            del q[:last + 1]
        elif lgkm:
            I('s_waitcnt lgkmcnt(0)')
    def IQ(x, tag):
        if x.startswith('buffer_load'): V(x, tag)
        else: I(x)
    def dmaB(j):
        slot = j & 3
        for x in [
            f's_add_u32 m0, s{sM[0]}, {B_LDS+slot*BSLOT}',
            f's_nop 0',
            f'buffer_load_dwordx4 v{vD[0]}, {srd(sD2)}, s{sO2} offen lds',
            f'buffer_load_dwordx4 v{vD[1]}, {srd(sD2)}, s{sO2} offen offset:1024 lds',
            f's_add_u32 m0, s{sM[1]}, {B_LDS+slot*BSLOT}',
            f's_add_u32 s{sO2}, s{sO2}, {32*3840}',
            f'buffer_load_dwordx4 v{vD[2]}, {srd(sD0)}, s{sO0} offen lds',
            f'buffer_load_dwordx4 v{vD[3]}, {srd(sD0)}, s{sO0} offen offset:1024 lds',
            f'buffer_load_dwordx4 v{vD[4]}, {srd(sD0)}, s{sO0} offen offset:2048 lds',
            f's_add_u32 s{sO0}, s{sO0}, {32*3072}']: IQ(x, f'B{j}')
    def dmaX(i):
        slot = i & 1
        for x in [
            f's_cmp_ge_u32 s{sXi}, 10',
            f's_cselect_b32 s{sX+2}, 0, s{sX+2}',
            f's_add_u32 m0, s{sMX}, {slot*XSLOT}',
            f's_add_u32 s{sXi}, s{sXi}, 1',
            f'buffer_load_dwordx4 v{vDX[0]}, {srd(sX)}, s{sOX} offen lds',
            f'buffer_load_dwordx4 v{vDX[1]}, {srd(sX)}, s{sOX} offen offset:1024 lds',
            f'buffer_load_dwordx4 v{vDX[2]}, {srd(sX)}, s{sOX} offen offset:2048 lds',
            f'buffer_load_dwordx4 v{vDX[3]}, {srd(sX)}, s{sOX} offen offset:3072 lds',
            f's_add_u32 s{sOX}, s{sOX}, 128']: IQ(x, f'X{i}')
    sRU, sRK, sRC = 64, 65, 66
    dmaX(0); dmaB(0)
    if 'fine' in dbg: st.mark()
    dmaB(1)
    if 'fine' in dbg: st.mark()
    a.label(f'{name}_rd')
    npf = 0
    sSec, sSub = 48, 39
    I(f's_mul_i32 s{sSec}, s{sCG}, 13108')
    I(f's_lshr_b32 s{sSec}, s{sSec}, 16')
    I(f's_mul_i32 s{sT}, s{sSec}, 5')
    I(f's_sub_u32 s{sSub}, s{sCG}, s{sT}')
    I(f's_cmp_ge_u32 s{sWave}, 4')
    I(f's_cbranch_scc1 {name}_nopf')
    vWA, vWI = 244, 246
    def touch(mask='s[64:65]'):
        for x in [f's_mov_b64 exec, {mask}',
                  f'global_load_dword v{vPF}, v[{vWA}:{vWA+1}], off',
                  's_mov_b64 exec, -1',
                  f'v_add_co_u32 v{vWA}, vcc, v{vWA}, v{vWI}',
                  f'v_addc_co_u32 v{vWA+1}, vcc, 0, v{vWA+1}, vcc']:
            I(x, tag='pf')
    if lin:
        I(f's_lshl_b32 s{sT}, s2, 2')
        I(f's_add_u32 s{sT}, s{sT}, s{sL}')
        I(f'v_lshrrev_b32 v{vT0}, 3, v0')
        I(f'v_and_b32 v{vT1}, 7, v0')
        I(f'v_cmp_gt_u32 vcc, 4, v{vT0}')
        I(f'v_cndmask_b32 v{vT1}, v{vT1}, v0, vcc')
        I(f'v_mov_b32 v{vT2}, 20')
        I(f'v_mov_b32 v{vWI}, {S*D*2}')
        I('s_waitcnt lgkmcnt(0)')
        I(f'v_mov_b32 v{vWA}, s4'); I(f'v_mov_b32 v{vWA+1}, s5')
        for grp, n, qq, p in ((4, 5, 160*3840, 6), (5, 4, 160*3072, 52), (6, 4, 160*3072, 54)):
            I(f'v_cmp_eq_u32 vcc, {grp}, v{vT0}')
            I(f'v_mov_b32 v{vU}, s{p}'); I(f'v_mov_b32 v{vU+1}, s{p+1}'); I(f'v_mov_b32 v{vU+2}, {qq}')
            I(f'v_cndmask_b32 v{vWA}, v{vWA}, v{vU}, vcc')
            I(f'v_cndmask_b32 v{vWA+1}, v{vWA+1}, v{vU+1}, vcc')
            I(f'v_cndmask_b32 v{vWI}, v{vWI}, v{vU+2}, vcc')
            I(f'v_mov_b32 v{vU}, {n}')
            I(f'v_cndmask_b32 v{vT2}, v{vT2}, v{vU}, vcc')
        I(f'v_mul_lo_u32 v{vT2}, v{vT2}, s{sT}')
        I(f'v_add_u32 v{vT2}, v{vT2}, v{vT1}')
        I(f'v_lshlrev_b32 v{vT2}, 7, v{vT2}')
        I(f'v_subrev_u32 v{vT1}, 128, v{vWI}')
        I(f'v_min_u32 v{vT2}, v{vT2}, v{vT1}')
        I(f'v_add_co_u32 v{vWA}, vcc, v{vWA}, v{vT2}')
        I(f'v_addc_co_u32 v{vWA+1}, vcc, 0, v{vWA+1}, vcc')
        I(f's_mov_b32 s64, 0')
        I(f's_mov_b32 s65, 0x000f0f1f')
        I(f's_mov_b32 s66, 0x000fffff')
        I(f's_mov_b32 s67, 0x000f0f1f')
        touch('s[66:67]')
        for i in range(lin - 1):
            touch()
    if codepf and schedv != 2:
        code_prefetch(a, f'{name}_nopf', f'{name}_end', sL, 4, vLane16, vPF, 56, sT, 32)
    a.label(f'{name}_nopf')
    I(f'v_and_b32 v{vTok}, 31, v0')
    I(f'v_lshrrev_b32 v{vHk}, 5, v0')
    I(f's_lshl_b32 s{sT}, s{sRP}, 1')
    I(f's_cmp_ge_u32 s{sWave}, 4')
    I(f's_cselect_b32 s{sT}, s{sL}, s{sT}')
    I(f's_cselect_b32 s{sT2}, s{sRP}, 0')
    I(f's_lshl_b32 s{sT}, s{sT}, 12')
    I(f's_add_u32 s{sT}, s{sT}, {X_LDS}')
    I(f'v_bfe_u32 v{vT1}, v0, 1, 3')
    I(f'v_xor_b32 v{vT1}, v{vT1}, v{vHk}')
    I(f'v_lshlrev_b32 v{vT0}, 7, v{vTok}')
    I(f'v_add_u32 v{vT0}, s{sT}, v{vT0}')
    for ks in range(4):
        I(f'v_xor_b32 v{vU}, {2*ks}, v{vT1}')
        I(f'v_lshl_add_u32 v{vXB[ks]}, v{vU}, 4, v{vT0}')
    I(f'v_bfe_u32 v{vT0}, v0, 2, 2')
    I(f'v_lshl_add_u32 v{vT1}, v{vHk}, 3, v{vT0}')
    I(f's_lshl_b32 s{sT2}, s{sT2}, 4')
    I(f'v_add_u32 v{vT1}, s{sT2}, v{vT1}')
    I(f'v_and_b32 v{vT2}, 3, v0')
    I(f'v_lshlrev_b32 v{vT2}, 3, v{vT2}')
    I(f'v_add_u32 v{vT2}, {B_LDS}, v{vT2}')
    vG16 = vU
    I(f'v_bfe_u32 v{vG16}, v0, 4, 1')
    W0 = vWB[0]
    I(f'v_lshlrev_b32 v{vU+1}, 8, v{vT1}')
    I(f'v_lshl_add_u32 v{vU+1}, v{vG16}, 5, v{vU+1}')
    I(f'v_add_u32 v{vU+1}, v{vU+1}, v{vT2}')
    I(f's_lshl_b32 s{sT}, s{sG}, 1')
    I(f'v_xor_b32 v{vU+2}, s{sT}, v{vT0}')
    I(f'v_lshl_add_u32 v{W0[0]}, v{vU+2}, 6, v{vU+1}')
    I(f'v_xor_b32 v{vU+2}, 1, v{vU+2}')
    I(f'v_lshl_add_u32 v{W0[1]}, v{vU+2}, 6, v{vU+1}')
    I(f'v_mul_u32_u24 v{W0[2]}, 192, v{vT1}')
    I(f'v_mul_u32_u24 v{vU+1}, {UOFF}, v{vG16}')
    I(f'v_add3_u32 v{W0[2]}, v{W0[2]}, v{vU+1}, v{vT2}')
    I(f's_mul_i32 s{sT}, s{sG}, 96')
    I(f's_add_u32 s{sT}, s{sT}, {GOFF}')
    I(f'v_add_u32 v{W0[2]}, s{sT}, v{W0[2]}')
    for i in range(3):
        I(f'v_add_u32 v{vWB[1][i]}, {2*BSLOT}, v{W0[i]}')
    I(f's_mov_b32 s{sCnt}, 5')
    I(f's_cmp_lt_u32 s{sWave}, 4')
    I(f's_cbranch_scc1 {name}_comp')
    I(f's_setprio {lprio}')
    I(f's_mov_b32 s{sLo}, -1')
    I(f's_mov_b32 s{sLo+1}, 0')
    sDb, sTag = 24, 50
    vXS, vLA, vWS, vWSH, vCA, vS, vP, vTg, vFO = 84, 94, 96, 100, 140, 148, 176, 216, 218
    I(f's_mov_b32 s{sDb+2}, 256'); I(f's_mov_b32 s{sDb+3}, 0x20000')
    I(f's_mov_b32 s{sWS+2}, {WS_END}'); I(f's_mov_b32 s{sWS+3}, 0x20000')
    I(f's_or_b32 s{sT}, s2, s{sL}')
    I(f's_cmp_lg_u32 s{sT}, 0')
    I(f's_cbranch_scc1 {name}_notag')
    tag_publish(a, sDb, sTag, vTg, vT0)
    a.label(f'{name}_notag')
    I(f'v_mov_b32 v{vFO+1}, {SYB}')
    I(f'v_mov_b32 v{vP}, 0'); I(f'v_mov_b32 v{vP+1}, 0')
    I(f'ds_write_b64 v{vFO+1}, {vr(vP,2)}')
    I(f'ds_write_b64 v{vFO+1}, {vr(vP,2)} offset:8')
    wait_for('X0', 'B0', lgkm=True)
    I('s_barrier')
    st.mark()
    dmaB(2); dmaX(1); dmaB(3)
    vXA = vT3
    def share_setup():
        I(f's_lshl_b32 s{sT}, s{sRB}, 7')
        I(f's_lshl_b32 s{sT2}, s{sCG}, 3')
        I(f's_add_u32 s{sT}, s{sT}, s{sT2}')
        I(f's_lshl_b32 s{sT2}, s{sL}, 1')
        I(f's_add_u32 s{sT}, s{sT}, s{sT2}')
        I(f's_mul_i32 s43, s{sT}, 1280')
        I(f'v_mul_u32_u24 v{vXA}, 1280, v{vHk}')
        I(f'v_lshl_add_u32 v{vXA}, v{vTok}, 3, v{vXA}')
        for j in range(5):
            V(f'buffer_load_dwordx2 {vr(vXS+2*j,2)}, v{vXA}, {srd(sX)}, s43 offen offset:{256*j}', 'xs')
        I(f's_min_u32 s{sT}, s{sCG}, 14')
        I(f's_lshl_b32 s{sT}, s{sT}, 8')
        I(f'v_add_u32 v{vT0}, s{sT}, v{vLane16}')
        I(f's_mul_i32 s{sT}, s{sCG}, 192')
        I(f's_sub_u32 s{sT2}, s{sT}, {16*16}')
        I(f'v_add_u32 v{vT1}, s{sT2}, v{vLane16}')
        I(f's_sub_u32 s{sT2}, s{sT}, {28*16}')
        I(f'v_add_u32 v{vT2}, s{sT2}, v{vLane16}')
        I(f'v_mov_b32 v{vLA}, s54'); I(f'v_mov_b32 v{vLA+1}, s55'); I(f'v_mov_b32 v{vWS}, 3072')
        I(f'v_cmp_gt_u32 vcc, 28, v0')
        I(f'v_mov_b32 v{vU}, s52'); I(f'v_mov_b32 v{vU+1}, s53')
        I(f'v_cndmask_b32 v{vT2}, v{vT2}, v{vT1}, vcc')
        I(f'v_cndmask_b32 v{vLA}, v{vLA}, v{vU}, vcc')
        I(f'v_cndmask_b32 v{vLA+1}, v{vLA+1}, v{vU+1}, vcc')
        I(f'v_cmp_gt_u32 vcc, 16, v0')
        I(f'v_mov_b32 v{vU}, s6'); I(f'v_mov_b32 v{vU+1}, s7'); I(f'v_mov_b32 v{vU+2}, 3840')
        I(f'v_cndmask_b32 v{vT2}, v{vT2}, v{vT0}, vcc')
        I(f'v_cndmask_b32 v{vLA}, v{vLA}, v{vU}, vcc')
        I(f'v_cndmask_b32 v{vLA+1}, v{vLA+1}, v{vU+1}, vcc')
        I(f'v_cndmask_b32 v{vWS}, v{vWS}, v{vU+2}, vcc')
        I(f's_mul_i32 s{sT}, s{sRB}, 40')
        I(f's_mul_i32 s{sT2}, s{sL}, 10')
        I(f's_add_u32 s{sT}, s{sT}, s{sT2}')
        I(f'v_mul_lo_u32 v{vT0}, v{vWS}, s{sT}')
        I(f'v_add_u32 v{vT2}, v{vT2}, v{vT0}')
        I(f'v_add_co_u32 v{vLA}, vcc, v{vLA}, v{vT2}')
        I(f'v_addc_co_u32 v{vLA+1}, vcc, 0, v{vLA+1}, vcc')
    sc = stmod
    def w_share_issue(i0=0, i1=10):
        I('s_mov_b32 exec_hi, 0xff')
        for i in range(i0, i1):
            V(f'global_load_dwordx4 {vr(vWSH+4*i)}, v[{vLA}:{vLA+1}], off', 'ws')
            if i < 9:
                I(f'v_add_co_u32 v{vLA}, vcc, v{vLA}, v{vWS}')
                I(f'v_addc_co_u32 v{vLA+1}, vcc, 0, v{vLA+1}, vcc')
        I('s_mov_b64 exec, -1')
    def red32(r, t):
        for d in ('quad_perm:[1,0,3,2]', 'quad_perm:[2,3,0,1]', 'row_half_mirror', 'row_mirror'):
            I(f'v_add_f32_dpp v{r}, v{r}, v{r} {d} row_mask:0xf bank_mask:0xf')
        I(f'v_mov_b32 v{t}, v{r}')
        I(f'v_permlane16_swap_b32 v{t}, v{r}')
        I(f'v_add_f32 v{r}, v{r}, v{t}')
    def capture(fn):
        keep = a.ins
        a.ins = []
        fn()
        got, a.ins = a.ins, keep
        return got
    def x_stats():
        m, t = vS + 20, vS + 21
        v2, t2 = vS + 22, vS + 23
        for k in range(10):
            I(f'v_lshlrev_b32 v{vS+2*k}, 16, v{vXS+k}')
            I(f'v_and_b32 v{vS+2*k+1}, 0xffff0000, v{vXS+k}')
        I(f'v_add_f32 v{m}, v{vS}, v{vS+1}')
        I(f'v_add_f32 v{t}, v{vS+2}, v{vS+3}')
        for k in range(4, 20, 2):
            I(f'v_add_f32 v{m}, v{m}, v{vS+k}')
            I(f'v_add_f32 v{t}, v{t}, v{vS+k+1}')
        I(f'v_add_f32 v{m}, v{m}, v{t}')
        red32(m, t)
        I(f'v_mul_f32 v{m}, 0x{f2u(-1.0/640):08x}, v{m}')
        for k in range(20):
            I(f'v_add_f32 v{vS+k}, v{m}, v{vS+k}')
        I(f'v_mul_f32 v{v2}, v{vS}, v{vS}')
        I(f'v_mul_f32 v{t2}, v{vS+1}, v{vS+1}')
        for k in range(2, 20, 2):
            I(f'v_fmac_f32 v{v2}, v{vS+k}, v{vS+k}')
            I(f'v_fmac_f32 v{t2}, v{vS+k+1}, v{vS+k+1}')
        I(f'v_add_f32 v{v2}, v{v2}, v{t2}')
        red32(v2, t2)
        I(f'v_mul_f32 v{v2}, 0x{f2u(1.0/640):08x}, v{v2}')
        I(f'v_cvt_pk_bf16_f32 v{t}, v{v2}, v{m}')
        I(f'v_and_b32 v{m}, 0xffff0000, v{t}')
        I(f'v_lshlrev_b32 v{t}, 16, v{t}')
        I(f'v_add_f32 v{t}, 0x{f2u(1e-5):08x}, v{t}')
        I(f'v_cvt_pk_bf16_f32 v{t}, v{t}, v{t}')
        I(f'v_lshlrev_b32 v{t}, 16, v{t}')
        I(f'v_sqrt_f32 v{t}, v{t}')
        I(f'v_cvt_pk_bf16_f32 v{t}, v{t}, v{t}')
        I(f'v_lshlrev_b32 v{t}, 16, v{t}')
        I(f'v_rcp_f32 v{t}, v{t}')
        I(f'v_lshlrev_b32 v{v2}, 3, v{vHk}')
        I(f'v_add_u32 v{v2}, s49, v{v2}')
        I(f'ds_write_b64 v{v2}, {vr(m,2)} offset:{ST_LDS}')
    vCI = vS + 24
    def w_sum():
        for i in range(10):
            for d in range(4):
                src = vWSH + 4 * i + d
                if i == 0:
                    I(f'v_lshlrev_b32 v{vCA+2*d}, 16, v{src}')
                    I(f'v_and_b32 v{vCA+2*d+1}, 0xffff0000, v{src}')
                else:
                    t = vS + 2 * d
                    I(f'v_lshlrev_b32 v{t}, 16, v{src}')
                    I(f'v_and_b32 v{t+1}, 0xffff0000, v{src}')
                    I(f'v_add_f32 v{vCA+2*d}, v{vCA+2*d}, v{t}')
                    I(f'v_add_f32 v{vCA+2*d+1}, v{vCA+2*d+1}, v{t+1}')
    def w_index():
        I(f'v_subrev_u32 v{vT0}, 16, v0')
        I(f'v_subrev_u32 v{vT1}, 28, v0')
        I(f'v_cmp_gt_u32 vcc, 28, v0')
        I(f'v_cndmask_b32 v{vT0}, v{vT1}, v{vT0}, vcc')
        I(f'v_cndmask_b32 v{vT2}, 16, 0, vcc')
        I(f'v_lshrrev_b32 v{vT1}, 1, v{vT0}')
        I(f'v_lshl_add_u32 v{vT2}, v{vT1}, 5, v{vT2}')
        I(f'v_and_b32 v{vT0}, 1, v{vT0}')
        I(f'v_lshl_add_u32 v{vT2}, v{vT0}, 3, v{vT2}')
        I(f'v_add_u32 v{vT2}, 128, v{vT2}')
        I(f'v_lshlrev_b32 v{vT0}, 3, v0')
        I(f'v_cmp_gt_u32 vcc, 16, v0')
        I(f'v_cndmask_b32 v{vT2}, v{vT2}, v{vT0}, vcc')
        I(f'v_lshlrev_b32 v{vT2}, 2, v{vT2}')
        I(f's_mul_i32 s{sT}, s{sL}, 1280')
        I(f'v_add_u32 v{vCI}, s{sT}, v{vT2}')
        I(f's_lshl_b32 s49, s{sL}, 4')
    def w_write():
        I('s_mov_b32 exec_hi, 0xff')
        I(f'ds_write_b128 v{vCI}, {vr(vCA)} offset:{CP_LDS}')
        I(f'ds_write_b128 v{vCI}, {vr(vCA+4)} offset:{CP_LDS+16}')
        I('s_mov_b64 exec, -1')
    xs_l, ws_l = capture(x_stats), capture(w_sum)
    def sl(lst, k, n, w=None):
        def g():
            if w: wait_for(w)
            a.ins.extend(lst[len(lst) * k // n: len(lst) * (k + 1) // n])
        return g
    def only0(fn, lab):
        I(f's_cmp_lg_u32 s{sL}, 0')
        I(f's_cbranch_scc1 {lab}')
        n0 = len(q)
        fn()
        del q[n0:]
        a.label(lab)
    def publish_store():
        for h, (n, off) in enumerate(((64, 0), (16, 1024))):
            for w in range(4):
                I(f'ds_read_b128 {vr(vP+16*h+4*w)}, v{vLane16} offset:{CP_LDS+1280*w+off}')
        I(f'ds_read_b128 {vr(vP+32)}, v{vLane16} offset:{ST_LDS}')
        I(f's_lshl_b32 s{sT}, s{sCG}, 4')
        I(f's_add_u32 s{sT}, s{sT}, s{sRB}')
        I(f's_mul_i32 s{sT}, s{sT}, 1280')
        I(f's_add_u32 s{sT}, s{sT}, {CSQ_OFF}')
        I(f's_lshl_b32 s{sT2}, s{sRB}, 10')
        I(f's_lshl_b32 s43, s{sCG}, 6')
        I(f's_add_u32 s{sT2}, s{sT2}, s43')
        I(f's_add_u32 s{sT2}, s{sT2}, {RSQ_OFF}')
        I('s_waitcnt lgkmcnt(0)')
        for h in range(2):
            b = vP + 16 * h
            for r in range(0, 4, 2):
                I(f'v_pk_add_f32 {vr(b+r,2)}, {vr(b+r,2)}, {vr(b+4+r,2)}')
                I(f'v_pk_add_f32 {vr(b+8+r,2)}, {vr(b+8+r,2)}, {vr(b+12+r,2)}')
                I(f'v_pk_add_f32 {vr(b+r,2)}, {vr(b+r,2)}, {vr(b+8+r,2)}')
        V(f'buffer_store_dwordx4 {vr(vP)}, v{vLane16}, {srd(sWS)}, s{sT} offen{sc}', 'pub')
        I('s_mov_b64 exec, 0xffff')
        V(f'buffer_store_dwordx4 {vr(vP+16)}, v{vLane16}, {srd(sWS)}, s{sT} offen offset:1024{sc}', 'pub')
        I('s_mov_b64 exec, 0xf')
        V(f'buffer_store_dwordx4 {vr(vP+32)}, v{vLane16}, {srd(sWS)}, s{sT2} offen{sc}', 'pub')
        I('s_mov_b64 exec, -1')
    def tag_issue():
        I(f'v_mov_b32 v{vT0}, 0')
        V(f'buffer_load_dwordx2 {vr(vTg,2)}, v{vT0}, {srd(sDb)}, 0 offen sc1', 'tag')
    def tag_check():
        wait_for('tag')
        I(f'v_readfirstlane_b32 s{sTag}, v{vTg}')
        I(f'v_readfirstlane_b32 s{sTag+1}, v{vTg+1}')
        I(f's_cmp_lg_u32 s{sTag}, 0')
        I(f's_cbranch_scc1 {name}_tagok')
        tag_get(a, f'{name}_tg', sDb, sTag, vTg, vT0, sT)
        a.label(f'{name}_tagok')
        I(f'v_mov_b32 v{vTg}, s{sTag}')
        I(f'v_mov_b32 v{vTg+1}, s{sTag+1}')
        I(f'v_mov_b32 v{vT0}, 0')
        I(f'ds_write_b64 v{vT0}, {vr(vTg,2)} offset:{TG_LDS}')
    sIdx = 49
    def setflag(kind):
        I(f's_lshl_b32 s{sIdx}, s{sRB}, 4')
        I(f's_add_u32 s{sIdx}, s{sIdx}, s{sCG}')
        flag_set(a, sWS, sTag, kind, sIdx, vTg, vT0, sT)
    def poll_issue():
        I(f'v_and_b32 v{vT0}, 15, v0')
        I(f'v_lshlrev_b32 v{vT1}, 4, v{vT0}')
        I(f'v_add_u32 v{vT1}, s{sCG}, v{vT1}')
        I(f's_lshl_b32 s{sT}, s{sRB}, 4')
        I(f'v_add_u32 v{vT0}, s{sT}, v{vT0}')
        I(f'v_and_b32 v{vT2}, 16, v0')
        I(f'v_cmp_eq_u32 vcc, 0, v{vT2}')
        I(f'v_cndmask_b32 v{vFO}, v{vT0}, v{vT1}, vcc')
        I(f'v_lshlrev_b32 v{vFO}, 7, v{vFO}')
        I(f's_mov_b32 s{sT}, {FL_OFF}')
        V(f'buffer_load_dwordx2 {vr(vP,2)}, v{vFO}, {srd(sWS)}, s{sT} offen sc1', 'poll')
    def poll_check_and_load():
        wait_for('poll')
        I(f'v_xor_b32 v{vP}, s{sTag}, v{vP}')
        I(f'v_xor_b32 v{vP+1}, s{sTag+1}, v{vP+1}')
        I(f'v_or_b32 v{vP}, v{vP}, v{vP+1}')
        I(f'v_cmp_ne_u32 vcc, 0, v{vP}')
        I(f's_cbranch_vccz {name}_stok')
        flag_wait(a, f'{name}_stw', sWS, sTag, 0, 1, vFO, vP, sT2, sT)
        a.label(f'{name}_stok')
        I(f'v_lshrrev_b32 v{vT0}, 4, v0')
        I(f'v_mul_u32_u24 v{vT0}, {1280-256}, v{vT0}')
        I(f'v_add_u32 v{vT0}, v{vT0}, v{vLane16}')
        I(f's_mul_i32 s{sT}, s{sCG}, {16*1280}')
        I(f's_add_u32 s{sT}, s{sT}, {CSQ_OFF}')
        I(f's_lshl_b32 s{sT2}, s{sL}, 8')
        I(f's_add_u32 s{sT2}, s{sT2}, s{sT}')
        for i in range(4):
            V(f'buffer_load_dwordx4 {vr(vP+4*i)}, v{vT0}, {srd(sWS)}, s{sT2} offen sc1', 'cs')
            V(f'buffer_load_dwordx4 {vr(vP+16+4*i)}, v{vT0}, {srd(sWS)}, s{sT} offen offset:1024 sc1', 'cs')
            if i < 3:
                I(f's_add_u32 s{sT}, s{sT}, {4*1280}')
                I(f's_add_u32 s{sT2}, s{sT2}, {4*1280}')
        I(f's_lshl_b32 s{sT}, s{sRB}, 10')
        I(f's_add_u32 s{sT}, s{sT}, {RSQ_OFF}')
        V(f'buffer_load_dwordx4 {vr(vP+32)}, v{vLane16}, {srd(sWS)}, s{sT} offen sc1', 'cs')
    def tables():
        wait_for('cs')
        for h in range(2):
            b = vP + 16 * h
            for r in range(0, 4, 2):
                I(f'v_pk_add_f32 {vr(b+r,2)}, {vr(b+r,2)}, {vr(b+4+r,2)}')
                I(f'v_pk_add_f32 {vr(b+8+r,2)}, {vr(b+8+r,2)}, {vr(b+12+r,2)}')
                I(f'v_pk_add_f32 {vr(b+r,2)}, {vr(b+r,2)}, {vr(b+8+r,2)}')
        for sw in ('v_permlane16_swap_b32', 'v_permlane32_swap_b32'):
            for h in range(2):
                for r in range(4):
                    I(f'v_mov_b32 v{vP+16*h+4+r}, v{vP+16*h+r}')
            for h in range(2):
                for r in range(4):
                    I(f'{sw} v{vP+16*h+4+r}, v{vP+16*h+r}')
            for h in range(2):
                for r in range(4):
                    I(f'v_add_f32 v{vP+16*h+r}, v{vP+16*h+r}, v{vP+16*h+4+r}')
        I(f'v_and_b32 v{vT0}, 15, v0')
        I(f'v_lshlrev_b32 v{vT0}, 4, v{vT0}')
        I(f's_lshl_b32 s{sT}, s{sL}, 8')
        I(f'v_add_u32 v{vT1}, s{sT}, v{vT0}')
        I(f'ds_write_b128 v{vT1}, {vr(vP)} offset:{CS_LDS}')
        I(f'ds_write_b128 v{vT0}, {vr(vP+16)} offset:{CS_LDS+1024}')
        I(f'v_lshlrev_b32 v{vT0}, 3, v0')
        I(f'v_mov_b32 v{vP+36}, v{vP+33}')
        I(f'v_mov_b32 v{vP+33}, v{vP+34}')
        I(f'v_mov_b32 v{vP+37}, v{vP+35}')
        I(f'ds_write_b64 v{vT0}, {vr(vP+32,2)} offset:{NM_LDS}')
        I(f'ds_write_b64 v{vT0}, {vr(vP+36,2)} offset:{RR_LDS}')
    def wf_issue():
        I(f's_load_dwordx2 s[68:69], s[0:1], {KA_WO}')
        I(f's_load_dwordx2 s[72:73], s[0:1], {KA_WD}')
        I(f's_lshl_b32 s{sRU}, s2, 2')
        I(f's_add_u32 s{sRU}, s{sRU}, s{sL}')
        I(f's_mul_i32 s{sRK}, s{sRU}, 13108')
        I(f's_lshr_b32 s{sRK}, s{sRK}, 16')
        I(f's_mul_i32 s{sT}, s{sRK}, 5')
        I(f's_sub_u32 s{sRC}, s{sRU}, s{sT}')
        I(f'v_lshrrev_b32 v{vT0}, 4, v0')
        I(f'v_mul_u32_u24 v{vT0}, {1280-256}, v{vT0}')
        I(f'v_add_u32 v{vT0}, v{vT0}, v{vLane16}')
        I(f's_mul_i32 s{sT}, s{sRK}, 13108')
        I(f's_lshr_b32 s{sT}, s{sT}, 16')
        I(f's_mul_i32 s{sT2}, s{sT}, 5')
        I(f's_sub_u32 s{sT2}, s{sRK}, s{sT2}')
        I(f's_mul_i32 s{sT}, s{sT}, 80')
        I(f's_mul_i32 s74, s{sT2}, 20')
        I(f's_add_u32 s74, s74, s{sT}')
        I(f's_add_u32 s{sT}, s{sT}, 16')
        I(f's_cmp_eq_u32 s{sT2}, 4')
        I(f's_cselect_b32 s74, s{sT}, s74')
        I(f's_cselect_b32 s43, 1, 0')
        I(f's_sub_u32 s{sT}, s{sRK}, 40')
        I(f's_lshl_b32 s{sT}, s{sT}, 4')
        I(f's_mov_b32 s70, {D*D*2}')
        I(f's_mov_b32 s71, 0x20000')
        I('s_waitcnt lgkmcnt(0)')
        I(f's_cmp_ge_u32 s{sRK}, 40')
        I(f's_cselect_b32 s68, s72, s68')
        I(f's_cselect_b32 s69, s73, s69')
        I(f's_cselect_b32 s70, {F*D*2}, s70')
        I(f's_cselect_b32 s74, s{sT}, s74')
        I(f's_cselect_b32 s43, 0, s43')
        I(f's_cmp_ge_u32 s{sRU}, 680')
        I(f's_cselect_b32 s70, 0, s70')
        I(f's_mul_i32 s74, s74, 1280')
        I(f's_lshl_b32 s{sT2}, s{sRC}, 8')
        I(f's_add_u32 s74, s74, s{sT2}')
        I(f's_lshl_b32 s67, s{sL}, 12')
        I(f's_add_u32 s67, s67, {R_LDS}')
        for j in range(4):
            I(f's_mov_b32 s{sT}, {4*j*1280}')
            I(f's_cmp_eq_u32 s43, 1')
            I(f's_cselect_b32 s{sT}, {20*[0,2,1,3][j]*1280}, s{sT}')
            I(f's_add_u32 s{sT}, s{sT}, s74')
            I(f's_add_u32 m0, s67, {1024*j}')
            I(f's_nop 0')
            V(f'buffer_load_dwordx4 v{vT0}, s[68:71], s{sT} offen lds', 'wf')
    def wf_store():
        wait_for('wf')
        I(f'v_bfe_u32 v{vT0}, v0, 2, 2')
        I(f'v_lshl_add_u32 v{vT0}, v{vHk}, 2, v{vT0}')
        I(f'v_lshlrev_b32 v{vT0}, 8, v{vT0}')
        I(f'v_bfe_u32 v{vT1}, v0, 4, 1')
        I(f'v_lshl_add_u32 v{vT0}, v{vT1}, 5, v{vT0}')
        I(f'v_and_b32 v{vT1}, 3, v0')
        I(f'v_lshl_add_u32 v{vT0}, v{vT1}, 3, v{vT0}')
        I(f'v_add_u32 v{vT0}, s67, v{vT0}')
        for j in range(4):
            I(f'ds_read_b64_tr_b16 {vr(vWSH+4*j,2)}, v{vT0} offset:{64*j}')
            I(f'ds_read_b64_tr_b16 {vr(vWSH+4*j+2,2)}, v{vT0} offset:{64*j+2048}')
        I(f's_mul_i32 s{sT}, s{sRC}, {4*AREC}')
        I(f's_lshl_b32 s{sT2}, s{sRK}, 10')
        I(f's_add_u32 s{sT}, s{sT}, s{sT2}')
        I(f's_add_u32 s{sT}, s{sT}, {WF_OFF}')
        I(f's_cmp_ge_u32 s{sRU}, 680')
        I(f's_cselect_b32 s{sWS+2}, 0, s{sWS+2}')
        for j in range(4):
            I(f's_waitcnt lgkmcnt({6-2*j})')
            V(f'buffer_store_dwordx4 {vr(vWSH+4*j)}, v{vLane16}, {srd(sWS)}, s{sT} offen{sc}', 'wfs')
            I(f's_add_u32 s{sT}, s{sT}, {AREC}')
        I(f's_mov_b32 s{sWS+2}, {WS_END}')
    def const_lines():
        I(f's_cmp_lg_u32 s{sL}, 1')
        I(f's_cbranch_scc1 {name}_ncl')
        I(f'v_lshrrev_b32 v{vT0}, 3, v0')
        I(f'v_mul_u32_u24 v{vT0}, {KVREC-128}, v{vT0}')
        I(f'v_add_u32 v{vT0}, v{vT0}, v{vLane16}')
        I(f'v_and_b32 v{vT1}, 7, v0')
        I(f'v_cmp_eq_u32 vcc, 0, v{vT1}')
        I(f'v_mov_b32 v{vT1}, 0x3f803f80')
        for r in range(4):
            I(f'v_cndmask_b32 v{vP+r}, 0, v{vT1}, vcc')
        I(f's_mul_i32 s{sT}, s2, {8*KVREC}')
        I(f's_add_u32 s{sT}, s{sT}, {KV_OFF + 2560}')
        I(f'buffer_store_dwordx4 {vr(vP)}, v{vT0}, {srd(sWS)}, s{sT} offen{sc}')
        a.label(f'{name}_ncl')
    def pubflag():
        I('s_waitcnt vmcnt(9)')
        setflag(0)
    if schedv == 2:
      sched = {0: [tag_issue], 1: [lambda: only0(publish_store, f'{name}_o1'), const_lines], 3: [tag_check],
               4: [lambda: only0(pubflag, f'{name}_o2')], 5: [wf_issue], 16: [wf_store, poll_issue], 18: [poll_check_and_load]}
    else:
      sched = {
        1: [share_setup, tag_issue, w_share_issue, w_index], 4: [sl(xs_l, 0, 1, 'xs'), tag_check, sl(ws_l, 0, 1, 'ws'), w_write],
        5: [lambda: only0(publish_store, f'{name}_o1'), const_lines, wf_issue],
        8: [lambda: only0(pubflag, f'{name}_o2')], 16: [wf_store, poll_issue], 18: [poll_check_and_load]}
    def trace(idx, v=250):
        if 'trace' not in dbg: return
        I('s_memtime s[76:77]')
        I(f's_lshl_b32 s78, s2, 3')
        I(f's_add_u32 s78, s78, s{sWave}')
        I(f's_lshl_b32 s78, s78, 8')
        I(f's_add_u32 s78, s78, {STAMP_OFF + 0x200000 + 4*idx}')
        I(f's_mov_b32 s{sWS+2}, 0x10000000')
        I('s_waitcnt lgkmcnt(0)')
        I(f's_sub_u32 s76, s76, s82')
        I(f'v_mov_b32 v{v}, s76')
        I(f'v_mov_b32 v{v+1}, 0')
        I('s_mov_b64 exec, 1')
        V(f'buffer_store_dword v{v}, v{v+1}, {srd(sWS)}, s78 offen', 'tr')
        I('s_mov_b64 exec, -1')
        I(f's_mov_b32 s{sWS+2}, {WS_END}')
    for j in range(20):
        for fn in sched.get(j, []):
            fn()
        wait_for(f'B{j+1}', f'X{(j+1)//2}', lgkm=True)
        I('s_barrier')
        trace(3 * j + 2)
        if j & 1 and (j + 3) // 2 < 10:
            dmaX((j + 3) // 2)
        if j + 4 < 20:
            dmaB(j + 4)
    st.mark()
    tables()
    I('s_waitcnt vmcnt(0) lgkmcnt(0)')
    I('s_barrier')
    I(f'v_lshlrev_b32 v{vFO}, 7, v0')
    I('s_barrier')
    I(f's_cmp_lg_u32 s{sL}, 0')
    I(f's_cbranch_scc1 {name}_nq')
    setflag(1)
    flag_wait(a, f'{name}_qw', sWS, sTag, 1, 4, vFO, vP, sT2, sT, sleep=fsleep)
    a.label(f'{name}_nq')
    I('s_barrier')
    I('s_setprio 0')
    if hdel: I(f's_sleep {hdel}')
    I(f's_lshl_b32 s{sT}, s{sRB}, 2')
    I(f's_lshl_b32 s{sT2}, s{sRP}, 1')
    I(f's_add_u32 s{sT}, s{sT}, s{sT2}')
    I(f's_mul_i32 s{sT}, s{sT}, {AREC}')
    I(f's_mul_i32 s{sT2}, s{sCG}, 6144')
    I(f's_add_u32 s{sT}, s{sT}, s{sT2}')
    I(f's_mul_i32 s{sT2}, s{sG}, 3072')
    I(f's_add_u32 s{sT}, s{sT}, s{sT2}')
    I(f's_add_u32 s{sT}, s{sT}, {AF_OFF + 40*1024}')
    I(f's_add_u32 s43, s{sT}, {AREC}')
    I(f's_mul_i32 s{sT2}, s{sL}, 6144')
    I(f'v_add_u32 v{vT0}, s{sT2}, v{vLane16}')
    for k in range(6):
        I(f'ds_read_b128 {vr(vWSH+4*k)}, v{vT0} offset:{B_LDS + 1024*k}')
    for k in range(6):
        t, i = divmod(k, 3)
        I(f's_waitcnt lgkmcnt({5-k})')
        I(f'buffer_store_dwordx4 {vr(vWSH+4*k)}, v{vLane16}, {srd(sWS)}, s{43 if t else sT} offen offset:{1024*i}{sc}')
        if hth: I('s_waitcnt vmcnt(0)')
    I('s_waitcnt vmcnt(0)')
    def lwait(lab, off, val, sleep):
        I(f's_branch {lab}_f')
        a.label(lab)
        I(f's_sleep {sleep}')
        a.label(lab + '_f')
        I(f'ds_read_b32 v{vP}, v{vFO+1} offset:{off}')
        I('s_waitcnt lgkmcnt(0)')
        I(f'v_readfirstlane_b32 s{sT}, v{vP}')
        I(f's_cmp_lt_u32 s{sT}, {val}')
        I(f's_cbranch_scc1 {lab}')
    I(f'v_mov_b32 v{vP}, 1')
    I('s_mov_b64 exec, 1')
    I(f'ds_add_u32 v{vFO+1}, v{vP} offset:{SY_LDS}')
    I('s_mov_b64 exec, -1')
    I(f's_cmp_lg_u32 s{sL}, 0')
    I(f's_cbranch_scc1 {name}_nh')
    lwait(f'{name}_hc', SY_LDS, 4, 16)
    setflag(2)
    flag_wait(a, f'{name}_hw', sWS, sTag, 2, 4, vFO, vP, sT2, sT, sleep=gs)
    I(f'v_mov_b32 v{vP}, 1')
    I(f'ds_write_b32 v{vFO+1}, v{vP} offset:{SY_LDS+4}')
    a.label(f'{name}_nh')
    lwait(f'{name}_go', SY_LDS + 4, 1, gs)
    if pre:
        I('s_and_b32 s6, s2, 7')
        I('s_lshr_b32 s7, s2, 3')
        I(f's_lshr_b32 s{sT}, s7, 3')
        I('s_and_b32 s4, s6, 1')
        I('s_lshl_b32 s4, s4, 2')
        I(f's_add_u32 s{sT}, s{sT}, s4')
        I(f's_cmp_ge_u32 s{sT}, 7')
        I(f's_cbranch_scc1 {name}_nopre')
        I('s_lshr_b32 s6, s6, 1')
        I('s_lshl_b32 s6, s6, 3')
        I('s_and_b32 s7, s7, 7')
        I('s_add_u32 s6, s6, s7')
        I(f's_mul_i32 s6, s6, {2*AREC}')
        I(f's_add_u32 s6, s6, {AF_OFF + 40*1024}')
        I(f's_mul_i32 s7, s{sT}, {3*AREC}')
        I(f's_add_u32 s7, s7, {WF_OFF + 40*1024}')
        I(f's_mov_b32 s{sWS+2}, {WF_END}')
        I(f's_lshl_b32 s4, s{sL}, 10')
        I(f'v_add_u32 v{vT1}, s4, v{vLane16}')
        I('s_mov_b32 s5, 0')
        a.label(f'{name}_pst')
        I(f's_cmp_lt_u32 s5, 2')
        I(f's_cselect_b32 s{sT2}, s6, s7')
        I(f's_cselect_b32 s6, s7, s6') if False else None
        for gidx in range(pre):
            I(f's_add_u32 m0, s4, {4096*gidx}')
            I(f's_add_u32 s{sT}, s{sT2}, {4096*gidx}')
            I(f'buffer_load_dwordx4 v{vT1}, {srd(sWS)}, s{sT} offen sc1 lds')
            I(f's_waitcnt vmcnt({pth})')
        I(f's_cmp_lt_u32 s5, 2')
        I(f's_cselect_b32 s{sT}, {AREC}, 0')
        I(f's_add_u32 s6, s6, s{sT}')
        I(f's_cmp_lt_u32 s5, 2')
        I(f's_cselect_b32 s{sT}, 0, {AREC}')
        I(f's_add_u32 s7, s7, s{sT}')
        I(f's_add_u32 s4, s4, {4096*pre}')
        I('s_add_u32 s5, s5, 1')
        I('s_cmp_lt_u32 s5, 5')
        I(f's_cbranch_scc1 {name}_pst')
        I('s_waitcnt vmcnt(0)')
        a.label(f'{name}_nopre')
    if f3w:
        I(f'v_mov_b32 v{vP}, 1')
        I('s_mov_b64 exec, 1')
        I(f'ds_add_u32 v{vFO+1}, v{vP} offset:{SY_LDS+8}')
        I('s_mov_b64 exec, -1')
        I('s_waitcnt lgkmcnt(0)')
    else:
        I('s_barrier')
    I(f's_branch {name}_end')
    a.label(f'{name}_comp')
    st.n = 0
    if 'fine' in dbg:
        for i in range(3): st.mark()
    if prio:
        I('s_setprio 1')
    I(f's_mov_b32 s{sWS+2}, {WS_END}')
    I(f's_mov_b32 s{sWS+3}, 0x20000')
    I(f's_mov_b32 s{sLo}, -1')
    I(f's_mov_b32 s{sLo+1}, 0')
    I('s_waitcnt lgkmcnt(0)')
    if schedv == 2:
        I(f's_mov_b32 s{sX}, s4'); I(f's_mov_b32 s{sX+1}, s5'); I(f's_mov_b32 s{sX+2}, {S*D*2}'); I(f's_mov_b32 s{sX+3}, 0x20000')
        q.clear()
        share_setup(); w_share_issue(); w_index()
        if codepf:
            code_prefetch(a, f'{name}_nopf', f'{name}_end', sL, 4, vLane16, vPF, 56, sT, 32)
        wait_for('xs')
        a.ins.extend(capture(x_stats))
        I('s_waitcnt vmcnt(0)')
        a.ins.extend(capture(w_sum))
        w_write()
    for r in range(160):
        I(f'v_mov_b32 v{ACC+r}, 0')
    I('s_waitcnt lgkmcnt(0)')
    if warm:
        I(f'v_mul_u32_u24 v{vT0}, 13108, v0')
        I(f'v_lshrrev_b32 v{vT0}, 16, v{vT0}')
        I(f'v_mul_u32_u24 v{vT1}, 5, v{vT0}')
        I(f'v_sub_u32 v{vT1}, v0, v{vT1}')
        I(f's_and_b32 s{sT}, s{sRB}, 7')
        I(f's_lshl_b32 s{sT}, s{sT}, 2')
        I(f's_lshl_b32 s{sT2}, s{sL}, 5')
        I(f's_add_u32 s{sT}, s{sT}, s{sT2}')
        I(f's_add_u32 s{sT}, s{sT}, 128')
        I(f'v_add_u32 v{vT0}, s{sT}, v{vT0}')
        I(f'v_mov_b32 v{vWA}, s6')
        I(f'v_mov_b32 v{vWA+1}, s7')
        I(f'v_mov_b32 v{vT2}, 3840')
        I(f's_cmp_ge_u32 s{sType}, 2')
        I(f's_cbranch_scc1 {name}_warm_qk')
        I(f's_min_u32 s{sT}, s{sCG}, 9')
        I(f's_lshl_b32 s{sT}, s{sT}, 7')
        I(f's_add_u32 s{sT}, s{sT}, 2560')
        I(f'v_mov_b32 v{vT3}, s{sT}')
        I(f's_lshl_b32 s{sT}, s{sCG}, 8')
        I(f'v_and_b32 v{26}, 1, v{vT1}')
        I(f'v_lshlrev_b32 v{26}, 7, v{26}')
        I(f'v_add_u32 v{26}, s{sT}, v{26}')
        I(f'v_cmp_gt_u32 vcc, 4, v{vT1}')
        I(f'v_mov_b32 v{27}, 3072')
        I(f'v_cndmask_b32 v{vT2}, v{vT2}, v{27}, vcc')
        I(f'v_cndmask_b32 v{vT3}, v{vT3}, v{26}, vcc')
        I(f'v_mov_b32 v{26}, s54'); I(f'v_mov_b32 v{27}, s55')
        I(f'v_cndmask_b32 v{vWA}, v{vWA}, v{26}, vcc')
        I(f'v_cndmask_b32 v{vWA+1}, v{vWA+1}, v{27}, vcc')
        I(f'v_cmp_gt_u32 vcc, 2, v{vT1}')
        I(f'v_mov_b32 v{26}, s52'); I(f'v_mov_b32 v{27}, s53')
        I(f'v_cndmask_b32 v{vWA}, v{vWA}, v{26}, vcc')
        I(f'v_cndmask_b32 v{vWA+1}, v{vWA+1}, v{27}, vcc')
        I(f's_branch {name}_warm_done')
        a.label(f'{name}_warm_qk')
        I(f's_sub_u32 s{sT}, s{sCG}, 12')
        I(f's_mul_i32 s{sT}, s{sT}, 640')
        I(f'v_lshlrev_b32 v{vT3}, 7, v{vT1}')
        I(f'v_add_u32 v{vT3}, s{sT}, v{vT3}')
        a.label(f'{name}_warm_done')
        I(f'v_mul_u32_u24 v{vT0}, v{vT0}, v{vT2}')
        I(f'v_add_u32 v{vT3}, v{vT3}, v{vT0}')
        I(f'v_lshlrev_b32 v{vWI}, 7, v{vT2}')
        I(f's_lshl_b32 s{sT}, s{sRB}, 7')
        I(f's_and_b32 s{sT2}, s{sCG}, 3')
        I(f's_lshl_b32 s{sT2}, s{sT2}, 5')
        I(f's_add_u32 s{sT}, s{sT}, s{sT2}')
        I(f's_lshl_b32 s{sT2}, s{sRP}, 4')
        I(f's_add_u32 s{sT}, s{sT}, s{sT2}')
        I(f's_mul_i32 s{sT}, s{sT}, 1280')
        I(f's_lshl_b32 s{sT2}, s{sG}, 7')
        I(f's_add_u32 s{sT}, s{sT}, s{sT2}')
        I(f's_add_u32 s{sT}, s{sT}, 256')
        I(f'v_and_b32 v{vT0}, 15, v0')
        I(f'v_mul_u32_u24 v{vT0}, 1280, v{vT0}')
        I(f'v_add_u32 v{vT0}, s{sT}, v{vT0}')
        I(f'v_mov_b32 v{26}, s4'); I(f'v_mov_b32 v{27}, s5'); I(f'v_mov_b32 v{28}, 256')
        I(f'v_cndmask_b32 v{vT3}, v{vT0}, v{vT3}, s[{sLo}:{sLo+1}]')
        I(f'v_cndmask_b32 v{vWA}, v{26}, v{vWA}, s[{sLo}:{sLo+1}]')
        I(f'v_cndmask_b32 v{vWA+1}, v{27}, v{vWA+1}, s[{sLo}:{sLo+1}]')
        I(f'v_cndmask_b32 v{vWI}, v{28}, v{vWI}, s[{sLo}:{sLo+1}]')
        I(f'v_add_co_u32 v{vWA}, vcc, v{vWA}, v{vT3}')
        I(f'v_addc_co_u32 v{vWA+1}, vcc, 0, v{vWA+1}, vcc')
        I(f's_mov_b32 s64, 0x000fffff')
        I(f's_mov_b32 s65, 0x0000ffff')
    for i in range(lin2):
        touch()
    if warm:
        for i in range(warm):
            touch()
    if 'fine' in dbg: st.mark()
    I('s_barrier')
    st.mark()

    def loop(typ):
        def rdW(fset, u, slot, sp):
            b = vWB[slot >> 1][min(u, 2)]
            rs = 256 if u < 2 else 192
            o = (slot & 1) * BSLOT + 16 * sp * rs + (32 * (u - 2) if u >= 2 else 0)
            return [f'ds_read_b64_tr_b16 {vr(Wf(fset,u),2)}, v{b} offset:{o}',
                    f'ds_read_b64_tr_b16 {vr(Wf(fset,u)+2,2)}, v{b} offset:{o+4*rs}']
        def rdX(fset, j, sp):
            return [f'ds_read_b128 {vr(XFR[fset][t])}, v{vXB[2*(j&1)+sp]} offset:{((j >> 1) & 1) * XSLOT + 4096 * t}' for t in range(2)]
        def mf(fset, u, t):
            acc = vr(Acc(t, u), 16)
            if typ == 'A' and u < 2:
                return f'v_mfma_f32_32x32x16_bf16 {acc}, {vr(XFR[fset][t])}, {vr(Wf(fset,u))}, {acc}'
            return f'v_mfma_f32_32x32x16_bf16 {acc}, {vr(Wf(fset,u))}, {vr(XFR[fset][t])}, {acc}'
        def emit_phase(mf_list, lst, f1, tail=()):
            for k in range(len(mf_list)):
                I(mf_list[k])
                if k < f1:
                    lo, hi = len(lst) * k // f1, len(lst) * (k + 1) // f1
                    for x in lst[lo:hi]:
                        if 'nord' not in dbg: I(x)
                if k == len(mf_list) - 2:
                    for x in tail: I(x)
        L = f'{name}_loop{typ}'
        for x in rdX(0, 0, 0): I(x)
        for u in range(5):
            for x in rdW(0, u, 0, 0): I(x)
        I('s_waitcnt lgkmcnt(0)')
        a.I('.p2align 3')
        a.label(L)
        order = [(u, t) for u in range(5) for t in range(2)]
        for j in range(4):
            if repf and j == 2:
                I(f's_cmp_lg_u32 s{sCnt}, 2')
                I(f's_cbranch_scc1 {L}_np')
                code_prefetch(a, f'{name}_post', f'{name}_end', sL, 4, vLane16, vPF, 56, sT, 24)
                a.label(f'{L}_np')
            if (warm or lin) and j == wj and (warm or lin + lin2 < 4):
                I(f's_cmp_le_u32 s{sCnt}, {1 + (warm if warm else lin + lin2)}')
                I(f's_cbranch_scc1 {L}_nt')
                touch()
                a.label(f'{L}_nt')
            lds = rdX(1, j, 1)
            for u in range(5):
                lds += rdW(1, u, j, 1)
            emit_phase([mf(0, u, t) for u, t in order], lds, 6, ['s_waitcnt lgkmcnt(0)'])
            I('s_barrier')
            jn = (j + 1) & 3
            lds = rdX(0, jn, 0)
            for u in range(5):
                lds += rdW(0, u, jn, 0)
            tail = ['s_waitcnt lgkmcnt(0)']
            if j == 3:
                tail += [f's_sub_u32 s{sCnt}, s{sCnt}, 1', f's_cmp_lg_u32 s{sCnt}, 0']
            emit_phase([mf(1, u, t) for u, t in order], lds, 6, tail)
        I(f's_cbranch_scc1 {L}')
    I(f's_cmp_lg_u32 s{sSec}, 2')
    I(f's_cbranch_scc1 {name}_mainQ')
    loop('A')
    I(f's_branch {name}_post')
    a.label(f'{name}_mainQ')
    loop('Q')
    a.label(f'{name}_post')
    st.mark()
    vE = 26
    sc = stmod
    def Acc1(t, i): return Acc(t, i)
    def Acc2(t, i): return Acc(t, 2 + i)
    def HP(t, i): return 164 + 12 * t + 4 * i
    vNM, vR = [vE, vE + 2], [vE + 4, vE + 6]
    CSR = vE + 8
    sGT = [52, 53]
    def common_tables():
        I(f'v_lshlrev_b32 v{vT1}, 2, v{vTok}')
        I(f's_lshl_b32 s{sT}, s{sRP}, 8')
        I(f'v_add_u32 v{vT3}, s{sT}, v{vT1}')
        for t in range(2):
            I(f'ds_read_b32 v{vNM[t]}, v{vT3} offset:{NM_LDS+128*t}')
            I(f'ds_read_b32 v{vR[t]}, v{vT3} offset:{RR_LDS+128*t}')
        I(f's_lshl_b32 s{sT}, s{sRB}, 2')
        I(f's_lshl_b32 s{sGT[0]}, s{sRP}, 1')
        I(f's_add_u32 s{sGT[0]}, s{sGT[0]}, s{sT}')
        I(f's_add_u32 s{sGT[1]}, s{sGT[0]}, 1')
    def fix(A, t, cs):
        for r in range(0, 16, 2):
            I(f'v_pk_fma_f32 {vr(A+r,2)}, {vr(cs+r,2)}, {vr(vNM[t],2)}, {vr(A+r,2)} op_sel_hi:[1,0,1]')
    I('s_barrier')
    if 'cdiag' in dbg: st.mark()
    common_tables()
    I(f'v_mov_b32 v{vT0}, 0')
    I(f'ds_read_b64 {vr(vU,2)}, v{vT0} offset:{TG_LDS}')
    I(f's_cmp_eq_u32 s{sSec}, 3')
    I(f's_cbranch_scc1 {name}_e1x')
    I(f's_cmp_eq_u32 s{sSec}, 2')
    I(f's_cbranch_scc1 {name}_e1v')
    sREC, sHS, sI0 = 54, 55, 56
    sBase = [58, 59]
    I(f's_lshl_b32 s{sT}, s{sG}, 8')
    I(f'v_lshlrev_b32 v{vT0}, 4, v{vHk}')
    I(f'v_add_u32 v{vT2}, s{sT}, v{vT0}')
    for rq in range(4):
        I(f'ds_read_b128 {vr(CSR+4*rq)}, v{vT2} offset:{CS_LDS+32*rq}')
    I(f's_cmp_eq_u32 s{sSec}, 1')
    I(f's_movk_i32 s{sREC}, {QREC}')
    I(f's_cselect_b32 s{sREC}, {KVREC}, s{sREC}')
    I(f's_cselect_b32 s{sT2}, {KV_OFF}, {QF_OFF}')
    I(f's_cselect_b32 s57, 1.0, 0x{f2u(QSCALE):08x}')
    I(f's_lshl_b32 s{sHS}, s{sREC}, 6')
    for t in range(2):
        I(f's_mul_i32 s{sBase[t]}, s{sGT[t]}, s{sREC}')
        I(f's_add_u32 s{sBase[t]}, s{sBase[t]}, s{sT2}')
    I(f's_lshl_b32 s{sI0}, s{sSub}, 4')
    I(f's_lshl_b32 s{sT}, s{sG}, 3')
    I(f's_add_u32 s{sI0}, s{sI0}, s{sT}')
    vFull, vSplit, vRS = 20, 21, [58, 58]
    I(f'v_mul_lo_u32 v{vT1}, v{vHk}, s{sREC}')
    I(f'v_lshl_add_u32 v{vFull}, v{vTok}, 4, v{vT1}')
    I(f'v_mul_lo_u32 v{vT1}, v{vHk}, s{sHS}')
    I(f'v_lshl_add_u32 v{vSplit}, v{vTok}, 3, v{vT1}')
    for i in range(2):
        I('s_waitcnt lgkmcnt(0)')
        for t in range(2):
            fix(Acc1(t, i), t, CSR)
        if i == 0:
            for rq in range(4):
                I(f'ds_read_b128 {vr(CSR+4*rq)}, v{vT2} offset:{CS_LDS+128+32*rq}')
        for t in range(2):
            I(f'v_mul_f32 v{vRS[t]}, s57, v{vR[t]}')
            A = Acc1(t, i)
            for r in range(0, 16, 2):
                I(f'v_pk_mul_f32 {vr(A+r,2)}, {vr(A+r,2)}, {vr(vRS[t],2)} op_sel_hi:[1,0]')
        A0, B0 = Acc1(0, i), Acc1(1, i)
        for rq in range(4):
            I(f'v_cvt_pk_bf16_f32 v{A0+4*rq}, v{A0+4*rq}, v{A0+4*rq+1}')
            I(f'v_cvt_pk_bf16_f32 v{A0+4*rq+1}, v{A0+4*rq+2}, v{A0+4*rq+3}')
            I(f'v_cvt_pk_bf16_f32 v{A0+4*rq+2}, v{B0+4*rq}, v{B0+4*rq+1}')
            I(f'v_cvt_pk_bf16_f32 v{A0+4*rq+3}, v{B0+4*rq+2}, v{B0+4*rq+3}')
        for rq in range(4):
            for t in range(2):
                I(f'v_dot2_f32_bf16 v{B0+2*rq+t}, v{A0+4*rq+2*t}, v{A0+4*rq+2*t}, 0')
        for rq in range(4):
            for t in range(2):
                I(f'v_dot2c_f32_bf16 v{B0+2*rq+t}, v{A0+4*rq+2*t+1}, v{A0+4*rq+2*t+1}')
        for rq in range(4):
            Q = A0 + 4 * rq
            L1, L2 = f'{name}_sp{i}{rq}', f'{name}_it{i}{rq}'
            I(f's_add_u32 s{sT}, s{sI0}, {4*i+rq}')
            I(f's_mul_i32 s{sT2}, s{sT}, 13108')
            I(f's_lshr_b32 s{sT2}, s{sT2}, 16')
            I(f's_mul_i32 s46, s{sT2}, 5')
            I(f's_sub_u32 s{sT}, s{sT}, s46')
            I(f's_lshl_b32 s{sT2}, s{sT2}, 1')
            I(f's_mul_i32 s46, s{sT2}, s{sHS}')
            I(f's_cmp_eq_u32 s{sT}, 2')
            I(f's_cbranch_scc1 {L1}')
            I(f'v_permlane32_swap_b32 v{Q}, v{Q+2}')
            I(f'v_permlane32_swap_b32 v{Q+1}, v{Q+3}')
            I(f's_sub_u32 s47, s{sHS}, 1536')
            I(f's_cmp_ge_u32 s{sT}, 3')
            I(f's_cselect_b32 s47, s47, 0')
            I(f's_lshl_b32 s{sT}, s{sT}, 9')
            I(f's_add_u32 s46, s46, s47')
            I(f's_add_u32 s46, s46, s{sT}')
            I(f's_add_u32 s46, s46, s{sBase[0]}')
            I(f'buffer_store_dwordx4 {vr(Q)}, v{vFull}, {srd(sWS)}, s46 offen{sc}')
            I(f's_branch {L2}')
            a.label(L1)
            for t in range(2):
                I(f's_add_u32 s47, s46, s{sBase[t]}')
                I(f'buffer_store_dwordx2 {vr(Q+2*t,2)}, v{vSplit}, {srd(sWS)}, s47 offen offset:1024{sc}')
            a.label(L2)
    I(f's_cmp_eq_u32 s{sSec}, 0')
    I(f's_cbranch_scc1 {name}_e1x')
    def KN(v): return Acc1(1, (v >> 2) & 1) + 2 * (v & 3) + (v >> 3)
    def K2(v): return KN(v) + 8
    I(f'v_and_b32 v{vT0}, 1, v0')
    I(f'v_cmp_eq_u32 s[46:47], 0, v{vT0}')
    I(f'v_and_b32 v{vT0}, 2, v0')
    I(f'v_cmp_eq_u32 s[48:49], 0, v{vT0}')
    for n, msk, dp in ((8, 's[46:47]', 'quad_perm:[1,0,3,2]'), (4, 's[48:49]', 'quad_perm:[2,3,0,1]')):
        for k in range(n):
            I(f'v_cndmask_b32 v{K2(k)}, v{KN(k)}, v{KN(k+n)}, {msk}')
            I(f'v_cndmask_b32 v{KN(k)}, v{KN(k+n)}, v{KN(k)}, {msk}')
        for k in range(n):
            I(f'v_max_f32_dpp v{KN(k)}, v{K2(k)}, v{KN(k)} {dp} row_mask:0xf bank_mask:0xf')
    for dp in ('row_ror:4', 'row_ror:8'):
        for k in range(4):
            I(f'v_max_f32_dpp v{KN(k)}, v{KN(k)}, v{KN(k)} {dp} row_mask:0xf bank_mask:0xf')
    for k in range(4):
        I(f'v_mov_b32 v{K2(k)}, v{KN(k)}')
    for k in range(4):
        I(f'v_permlane16_swap_b32 v{K2(k)}, v{KN(k)}')
    for k in range(4):
        I(f'v_max_f32 v{KN(k)}, v{KN(k)}, v{K2(k)}')
    I(f'v_lshrrev_b32 v{vT0}, 2, v{vTok}')
    for k in range(1, 4):
        I(f'v_cmp_eq_u32 vcc, {k}, v{vT0}')
        I(f'v_cndmask_b32 v{KN(0)}, v{KN(0)}, v{KN(k)}, vcc')
    I(f'v_bfe_u32 v{vT1}, v{vTok}, 1, 1')
    I(f'v_lshl_add_u32 v{vT0}, v{vT1}, 2, v{vT0}')
    I(f'v_add_u32 v{vT0}, s{sI0}, v{vT0}')
    I(f'v_lshl_add_u32 v{vT0}, v{vT0}, 1, v{vHk}')
    I(f'v_lshlrev_b32 v{vT0}, 8, v{vT0}')
    I(f'v_and_b32 v{vT1}, 1, v{vTok}')
    I(f'v_lshl_add_u32 v{vT0}, v{vT1}, 2, v{vT0}')
    I(f's_lshl_b32 s{sT}, s{sGT[0]}, 2')
    I(f's_add_u32 s{sT}, s{sT}, {KN_OFF}')
    I('s_mov_b32 exec_lo, 0xffff')
    I('s_mov_b32 exec_hi, 0xffff')
    I(f'buffer_store_dword v{KN(0)}, v{vT0}, {srd(sWS)}, s{sT} offen{sc}')
    I('s_mov_b64 exec, -1')
    I(f's_branch {name}_e1x')
    a.label(f'{name}_e1v')
    I(f's_lshl_b32 s{sT}, s{sG}, 8')
    I(f'v_add_u32 v{vT1}, s{sT}, v{vT1}')
    vCSV = [58, 60]
    for i in range(2):
        I(f'ds_read_b32 v{vCSV[i]}, v{vT1} offset:{CS_LDS+128*i}')
    I(f'v_lshlrev_b32 v{vT1}, 4, v{vHk}')
    I(f's_lshl_b32 s{sT}, s{sRP}, 8')
    I(f'v_add_u32 v{vT2}, s{sT}, v{vT1}')
    vVA = [20, 21]
    for i in range(2):
        I(f's_lshl_b32 s{sT}, s{sSub}, 7')
        I(f's_lshl_b32 s{sT2}, s{sG}, 6')
        I(f's_add_u32 s{sT}, s{sT}, s{sT2}')
        I(f's_add_u32 s{sT}, s{sT}, {32*i}')
        I(f'v_add_u32 v{vT0}, s{sT}, v{vTok}')
        I(f'v_mul_u32_u24 v{vT1}, 3277, v{vT0}')
        I(f'v_lshrrev_b32 v{vT1}, 16, v{vT1}')
        I(f'v_mul_u32_u24 v{vT3}, 20, v{vT1}')
        I(f'v_sub_u32 v{vT0}, v{vT0}, v{vT3}')
        I(f's_mov_b32 s{sT}, {NT*KVREC}')
        I(f'v_mul_lo_u32 v{vT1}, v{vT1}, s{sT}')
        I(f'v_mul_u32_u24 v{vT3}, 320, v{vHk}')
        I(f'v_lshl_add_u32 v{vT3}, v{vT0}, 4, v{vT3}')
        I(f'v_add_u32 v{vVA[i]}, v{vT3}, v{vT1}')
    for t in range(2):
        I(f's_mul_i32 s{58+t}, s{sGT[t]}, {KVREC}')
        I(f's_add_u32 s{58+t}, s{58+t}, {KV_OFF}')
    for t in range(2):
        for half, tab in ((0, NM_LDS), (1, RR_LDS)):
            for rq in range(4):
                I(f'ds_read_b128 {vr(CSR+4*rq)}, v{vT2} offset:{tab+128*t+32*rq}')
            I('s_waitcnt lgkmcnt(0)')
            for i in range(2):
                A = Acc1(t, i)
                for r in range(0, 16, 2):
                    if half == 0:
                        I(f'v_pk_fma_f32 {vr(A+r,2)}, {vr(CSR+r,2)}, {vr(vCSV[i],2)}, {vr(A+r,2)} op_sel_hi:[1,0,1]')
                    else:
                        I(f'v_pk_mul_f32 {vr(A+r,2)}, {vr(A+r,2)}, {vr(CSR+r,2)}')
        for i in range(2):
            A = Acc1(t, i)
            for r in range(8):
                I(f'v_cvt_pk_bf16_f32 v{A+r}, v{A+2*r}, v{A+2*r+1}')
            I(f'buffer_store_dwordx4 {vr(A)}, v{vVA[i]}, {srd(sWS)}, s{58+t} offen offset:1280{sc}')
            I(f'buffer_store_dwordx4 {vr(A+4)}, v{vVA[i]}, {srd(sWS)}, s{58+t} offen offset:1920{sc}')
    a.label(f'{name}_e1x')
    I('s_waitcnt lgkmcnt(0)')
    I(f'v_readfirstlane_b32 s{sTag}, v{vU}')
    I(f'v_readfirstlane_b32 s{sTag+1}, v{vU+1}')
    if f0early:
        I('s_waitcnt vmcnt(0)')
        I('s_barrier')
    I(f's_mul_i32 s{sT}, s{sG}, 384')
    I(f'v_lshlrev_b32 v{vT0}, 4, v{vHk}')
    I(f'v_add_u32 v{vT2}, s{sT}, v{vT0}')
    CS2 = [34, 50, 66]
    for i in range(3):
        for rq in range(4):
            I(f'ds_read_b128 {vr(CS2[i]+4*rq)}, v{vT2} offset:{CS_LDS+512+128*i+32*rq}')
    for t in range(2):
        I(f's_mul_i32 s{58+t}, s{sGT[t]}, {AREC}')
    I(f's_mul_i32 s{sT}, s{sCG}, 6144')
    I(f's_mul_i32 s{sT2}, s{sG}, 3072')
    I(f's_add_u32 s{sT}, s{sT}, s{sT2}')
    I(f's_add_u32 s{sT}, s{sT}, {AF_OFF + 40*1024}')
    for t in range(2):
        I(f's_add_u32 s{58+t}, s{58+t}, s{sT}')
        I(f'v_mul_f32 v{vR[t]}, v{vR[t]}, v{vR[t]}')
    for i in range(3):
        I(f's_waitcnt lgkmcnt({8-4*i})')
        for t in range(2):
            A = Acc2(t, i)
            fix(A, t, CS2[i])
            for r in range(8):
                I(f'v_max_f32 v{A+r}, 0, v{A+r}')
            for r in range(0, 8, 2):
                I(f'v_pk_mul_f32 {vr(A+8+r,2)}, {vr(A+8+r,2)}, {vr(vR[t],2)} op_sel_hi:[1,0]')
            for r in range(0, 8, 2):
                I(f'v_pk_mul_f32 {vr(A+r,2)}, {vr(A+r,2)}, {vr(A+8+r,2)}')
            for r in range(4):
                I(f'v_cvt_pk_bf16_f32 v{HP(t,i)+r}, v{A+2*r}, v{A+2*r+1}')
    I(f's_mul_i32 s{sT}, s{sL}, 6144')
    I(f'v_add_u32 v{vT0}, s{sT}, v{vLane16}')
    for t in range(2):
        for i in range(3):
            I(f'ds_write_b128 v{vT0}, {vr(HP(t,i))} offset:{B_LDS + 3072*t + 1024*i}')
    if 'cdiag' in dbg: st.mark()
    I('s_waitcnt vmcnt(0) lgkmcnt(0)')
    if 'cdiag' in dbg: st.mark()
    if not f0early:
        I('s_barrier')
    I('s_barrier')
    if 'cdiag' in dbg:
        st.mark()
        st.end(sWave, 4, 5)
        st.on = False
    a.label(f'{name}_att')
    if inv and not ldmod:
        I('buffer_inv sc1')
    st.mark()
    I(f's_setprio {aprio}')
    bar = lambda: I('s_barrier')
    gen_attn(name + '_a', a=a, entry=False, stmod=stmod, ldmod=ldmod, endstamp=False, st=st, ids=False, NS=NS, al=al, apad=apad)
    if f3w:
        I(f'v_mov_b32 v240, {SYB}')
        a.label(f'{name}_f3')
        I(f'ds_read_b32 v241, v240 offset:{SY_LDS+8}')
        I('s_waitcnt lgkmcnt(0)')
        I('v_readfirstlane_b32 s4, v241')
        I('s_cmp_lt_u32 s4, 4')
        I(f's_cbranch_scc1 {name}_f3')
    else:
        I('s_barrier')
    gen_gemm3(name + '_o', a=a, fused=True, st=st, sTag=sTag, pre=pre, NR=NR, gmod=gmod)
    a.label(f'{name}_end')
    I('s_endpgm')
    return a
CODEKB = 20
```
